```python
import torch

def _softmax(x, axis=-1):
    return torch.softmax(x, dim=axis)

def _gelu(x):
    return torch.nn.functional.gelu(x, approximate='tanh')

def _silu(x):
    return torch.nn.functional.silu(x)

def _sigmoid(x):
    return torch.sigmoid(x)

def _layernorm(x, axis=-1, eps=1e-05):
    m = x.mean(dim=axis, keepdim=True)
    v = x.var(dim=axis, keepdim=True, unbiased=False)
    return (x - m) / torch.sqrt(v + eps)

def _scatter_add(tgt, idx, src, axis=0):
    return tgt.clone().index_add_(axis, idx, src)

def _segment_sum(src, seg, n):
    out = torch.zeros((n,) + src.shape[1:], dtype=src.dtype)
    return out.index_add_(0, seg, src)

def _pad(x, pw):
    flat = tuple((v for pair in reversed(pw) for v in pair))
    return torch.nn.functional.pad(x, flat)
kernel_name = 'standalone__tensor_product_equiv_tfn__graph'

def setup_inputs():

    _w = lambda a: (lambda t: t.to(torch.bfloat16) if t.is_floating_point() else t)(torch.as_tensor(a))
    N, deg, C, L, DE = (10000, 32, 128, 1, 16)
    E = N * deg
    M = (L + 1) ** 2
    src = (lambda lo, hi, *s: torch.randint(lo, hi, s))(0, N, E).to(torch.int64)
    dst = (lambda lo, hi, *s: torch.randint(lo, hi, s))(0, N, E).to(torch.int64)
    r = (lambda *s: torch.randn(*s, dtype=torch.bfloat16) * 0.05)(E, 3)
    r = r / (torch.linalg.norm(r, dim=-1, keepdim=True) + 1e-09)
    rx, ry, rz = (r[:, 0].clone(), r[:, 1].clone(), r[:, 2].clone())
    Ys = [torch.ones((E, 1), dtype=float)]
    if L >= 1:
        Ys.append(r.to(float))
    if L >= 2:
        Ys.append(torch.stack([2 * rx * ry, 2 * ry * rz, (3 * rz * rz - 1.0) / (lambda _x: torch.sqrt(torch.as_tensor(_x)))(3.0), 2 * rx * rz, rx * rx - ry * ry], dim=-1).to(float))
    for _l in range(3, L + 1):
        Ys.append(((lambda *s: torch.randn(*s, dtype=torch.bfloat16) * 0.05)(E, 2 * _l + 1) * 0.3).to(float))
    Y = torch.cat(Ys, dim=-1)
    cg = torch.zeros((M, M, M), dtype=float)
    off = [_l * _l for _l in range(L + 2)]
    for l1 in range(L + 1):
        for l2 in range(L + 1):
            for l3 in range(abs(l1 - l2), min(L, l1 + l2) + 1):
                d1, d2, d3 = (2 * l1 + 1, 2 * l2 + 1, 2 * l3 + 1)
                cg[off[l1]:off[l1 + 1], off[l2]:off[l2 + 1], off[l3]:off[l3 + 1]] = (lambda *s: torch.randn(*s, dtype=torch.bfloat16) * 0.05)(d1, d2, d3) / (lambda _x: torch.sqrt(torch.as_tensor(_x)))(float(d1 * d2))
    return {'x': _w((lambda *s: torch.randn(*s, dtype=torch.bfloat16) * 0.05)(N, C, M) * 0.2), 'src': _w(src), 'dst': _w(dst), 'Y': _w(Y), 'edge_feat': _w((lambda *s: torch.randn(*s, dtype=torch.bfloat16) * 0.05)(E, DE)), 'w_rad': _w((lambda *s: torch.randn(*s, dtype=torch.bfloat16) * 0.05)(DE, C) * (1.0 / max(1.0, DE) ** 0.5)), 'cg': _w(cg), 'w_mix': _w((lambda *s: torch.randn(*s, dtype=torch.bfloat16) * 0.05)(C, C) * (1.0 / max(1.0, C) ** 0.5))}

def reference(x, src, dst, Y, edge_feat, w_rad, cg, w_mix):
    N, C, M = (x.shape[0], x.shape[1], x.shape[2])
    R = _silu(edge_feat @ w_rad)
    xs = x[src]
    tp = torch.einsum('eci,ef,ifo->eco', xs, Y, cg)
    msg = R[:, :, None] * tp
    agg = _segment_sum(msg.reshape(-1, C * M), dst, N).reshape(N, C, M)
    return torch.einsum('ncm,cd->ndm', agg, w_mix)
```

```python
import re, sys
REG = re.compile(r"^-?\|?(v|s|a)(\d+)\|?$|^-?(v|s|a)\[(\d+):(\d+)\]$")
def regs(tok):
    tok = tok.strip()
    if tok in ("vcc",): return {("s", "vcc")}
    if tok in ("exec", "exec_hi", "exec_lo"): return {("s", "exec")}
    if tok == "m0": return {("s", "m0")}
    m = REG.match(tok)
    if not m: return set()
    if m.group(1): return {(m.group(1), int(m.group(2)))}
    return {(m.group(3), i) for i in range(int(m.group(4)), int(m.group(5)) + 1)}
TRANS = ("v_exp_", "v_log_", "v_rcp_", "v_rsq_", "v_sqrt_", "v_sin_", "v_cos_")
class I:
    def __init__(self, line, no):
        self.line = line; self.no = no
        p = line.split(None, 1)
        self.op = p[0]
        rest = p[1] if len(p) > 1 else ""
        ops = []; depth = 0; cur = ""
        for ch in rest:
            if ch in "[(": depth += 1
            if ch in "])": depth -= 1
            if ch == "," and depth == 0: ops.append(cur.strip()); cur = ""
            else: cur += ch
        if cur.strip(): ops.append(cur.strip())
        self.mods = ""
        if ops:
            q = ops[-1].split(None, 1)
            ops[-1] = q[0]; self.mods = q[1] if len(q) > 1 else ""
        self.ops = ops
        op = self.op
        self.valu = op.startswith("v_")
        self.mfma = op.startswith("v_mfma")
        self.trans = op.startswith(TRANS)
        self.dpp = "_dpp" in op or "row_" in self.mods or "quad_perm" in self.mods
        self.vmem = op.startswith(("buffer_", "global_"))
        self.ds = op.startswith("ds_")
        self.salu = op.startswith("s_")
        d, u = set(), set()
        R = [regs(o) for o in ops]
        if self.valu:
            if op.startswith("v_cmp"):
                d = R[0]; u = set().union(*R[1:])
                if op.startswith("v_cmpx"): d = d | {("s", "exec")}
            elif op.startswith(("v_add_co", "v_sub_co", "v_addc_co", "v_subb_co", "v_mad_u64")):
                d = R[0] | R[1]; u = set().union(*R[2:])
            elif op.startswith("v_permlane"):
                d = R[0] | R[1]; u = R[0] | R[1]
            elif op == "v_nop": pass
            else:
                d = R[0]; u = set().union(*R[1:]) if len(R) > 1 else set()
                if op.startswith(("v_fmac", "v_pk_fmac", "v_writelane")) or self.dpp: u |= R[0]
            if self.mfma:
                self.srcA, self.srcB, self.srcC = R[1], R[2], R[3]
                self.passes = 2 if "4x4x4" in op else 4 if "16x16" in op else 8
        elif self.vmem:
            lds = " lds" in (" " + self.mods)
            if "load" in op and not lds: d = R[0]; u = set().union(*R[1:])
            elif "atomic" in op and "sc0" in self.mods: d = R[0]; u = set().union(*R)
            else: u = set().union(*R) if R else set()
            if lds: u |= {("s", "m0")}
            self.ldsdma = lds
        elif self.ds:
            if "read" in op or "rtn" in op or "permute" in op or "swizzle" in op: d = R[0]; u = set().union(*R[1:])
            else: u = set().union(*R)
        elif self.salu:
            if op.startswith(("s_cmp", "s_cbranch", "s_branch", "s_waitcnt", "s_nop", "s_barrier", "s_endpgm", "s_setprio", "s_bitcmp", "s_sleep")):
                u = set().union(*R) if R else set()
            elif op.startswith("s_set_gpr_idx"):
                u = set().union(*R) if R else set(); d = {("s", "m0")}
            else:
                d = R[0] if R else set(); u = set().union(*R[1:]) if len(R) > 1 else set()
                if "saveexec" in op: d = d | {("s", "exec")}
        self.d, self.u = d, u
        self.ws = 1
        if op == "s_nop": self.ws = int(ops[0], 0) + 1
def need(a, b):
    n = 0
    vd = {r for r in a.d if r[0] in "va"}; sd = {r for r in a.d if r[0] == "s"}
    if a.valu and not a.mfma:
        if b.mfma and (vd & b.u): n = max(n, 2)
        if b.valu and b.dpp and (vd & b.u): n = max(n, 2)
        if b.op.startswith(("v_readlane", "v_readfirstlane")) and (vd & b.u): n = max(n, 1)
        if b.op.startswith("v_permlane") and (vd & b.u): n = max(n, 2)
        if a.trans and b.valu and not b.trans and (vd & b.u): n = max(n, 1)
        if sd:
            if b.vmem and (sd & b.u): n = max(n, 5)
            if b.valu and (sd & b.u):
                n = max(n, 4 if b.op.startswith(("v_readlane", "v_writelane")) else 2)
            if b.op.startswith("v_cndmask") and len(b.ops) == 4 and (sd & regs(b.ops[3])): n = max(n, 2)
            if ("s", "exec") in sd:
                if b.dpp: n = max(n, 5)
                if b.mfma or b.op.startswith(("v_readlane", "v_readfirstlane", "v_writelane", "v_permlane")): n = max(n, 4)
    if a.mfma:
        P = {2: 0, 4: 1, 8: 2, 16: 3}[a.passes]
        if b.mfma:
            if vd & (b.srcA | b.srcB): n = max(n, [5, 8, 12, 20][P])
            if vd & b.srcC:
                if vd == b.srcC and a.passes == b.passes: n = max(n, [2, 0, 0, 0][P])
                else: n = max(n, [4, 6, 10, 18][P])
            elif vd & b.d: n = max(n, [4, 6, 10, 18][P])
        elif (b.valu or b.vmem or b.ds) and (vd & (b.u | b.d)): n = max(n, [5, 8, 12, 20][P])
        if b.valu and not b.mfma and (a.srcC & b.d): n = max(n, [1, 3, 7, 15][P])
    if a.vmem and "store" in a.op and ("x3" in a.op or "x4" in a.op):
        data = regs(a.ops[0]) if a.op.startswith("buffer") else regs(a.ops[1])
        if data & b.d: n = max(n, 2 if b.valu else 1)
    if a.salu and ("s", "m0") in a.d and b.vmem and getattr(b, "ldsdma", False): n = max(n, 1)
    return n
def check(text, maxd=22):
    ins = []; labels = {}
    for no, l in enumerate(text.splitlines(), 1):
        l = l.split(";")[0].strip()
        if not l or l.startswith("."): continue
        if l.endswith(":"): labels[l[:-1]] = len(ins); continue
        ins.append(I(l, no))
    errs = []
    def succ(i):
        x = ins[i]
        if x.op == "s_endpgm": return []
        if x.op == "s_branch": return [labels[x.ops[0]]]
        if x.op.startswith("s_cbranch"): return [i + 1, labels[x.ops[0]]]
        return [i + 1]
    for i, a in enumerate(ins):
        if not (a.valu or a.vmem or (a.salu and ("s", "m0") in a.d)): continue
        stack = [(j, 0) for j in succ(i)]; seen = {}
        while stack:
            j, dist = stack.pop()
            if j >= len(ins) or dist >= maxd: continue
            if seen.get(j, 99) <= dist: continue
            seen[j] = dist
            b = ins[j]
            n = need(a, b)
            if n > dist: errs.append(f"line {a.no}: '{a.line}' -> line {b.no}: '{b.line}' needs {n} has {dist}")
            for k in succ(j): stack.append((k, dist + b.ws))
    return errs
if __name__ == "__main__":
    e = check(open(sys.argv[1]).read())
    print("\n".join(e) if e else "hazards: clean")
```

```python
import sys, struct, math
sys.path.insert(0, "gen")
import hazard

OPT = dict(HILO=0, D=8, BAR=0, R=16, K1NT=1, K1ST="", PAYNT="", OUTST="", STAMP=0)
for a in sys.argv[2:]:
    k, v = a.split("=")
    OPT[k] = int(v) if v.lstrip("-").isdigit() else v.replace("+", " ")
globals().update(OPT)

N, E, C = 10000, 320000, 128
CH = 1250; CHP = 1280
WS_EF = 0; WS_YM = 256 * CHP * 32; WS_TBL = WS_YM + 256 * CHP * 16
WS_WMIX = WS_TBL + 256 * 256 * 4; WS_WB = WS_WMIX + 32768; WS_CG = WS_WB + 8192
WS_STAMP = 0x1000000
WS_SIZE = 0x1000000 + (0x100000 if STAMP else 0)
def f32(x): return "0x%08x" % struct.unpack("<I", struct.pack("<f", x))[0]
LOG2E = math.log2(math.e); LN2 = math.log(2.0)
RMUL, RSH = {8: (6711, 23), 16: (6711, 22), 32: (6711, 21)}[R]
assert (9999 * RMUL) >> RSH == R - 1

out = []
def e(s=""):
    for l in s.split("\n"):
        l = l.strip()
        if not l: continue
        out.append(l if l.endswith(":") or l.startswith((".", ";")) else "    " + l)
def vr(a, n): return f"v[{a}:{a+n-1}]" if n > 1 else f"v{a}"
def sr(a, n): return f"s[{a}:{a+n-1}]" if n > 1 else f"s{a}"
def srd(d, base, nbytes):
    e(f"s_mov_b32 s{d}, s{base}\ns_mov_b32 s{d+1}, s{base+1}\ns_mov_b32 s{d+2}, {nbytes}\ns_mov_b32 s{d+3}, 0x00020000")
def scan(v):
    for m in ("row_shr:1 row_mask:0xf", "row_shr:2 row_mask:0xf", "row_shr:4 row_mask:0xf", "row_shr:8 row_mask:0xf",
              "row_bcast:15 row_mask:0xa", "row_bcast:31 row_mask:0xc"):
        e(f"s_nop 1\nv_add_u32_dpp v{v}, v{v}, v{v} {m} bank_mask:0xf")
def stamp(i):
    if STAMP: e(f"s_memrealtime s[{84+2*i}:{85+2*i}]")
def stamp_out(n, wsrd, slot_s, tmp):
    if not STAMP: return
    e("s_waitcnt lgkmcnt(0)\ns_mov_b64 exec, 1")
    e(f"s_lshl_b32 s{slot_s}, s{slot_s}, 5\ns_add_u32 s{slot_s}, s{slot_s}, {WS_STAMP}\nv_mov_b32 v{tmp}, 0")
    for i in range(n):
        e(f"v_mov_b32 v{tmp+1}, s{84+2*i}\nbuffer_store_dword v{tmp+1}, v{tmp}, s[{wsrd}:{wsrd+3}], s{slot_s} offen offset:{4*i}")

K1_EF = 0; K1_YM = CHP * 32; K1_INV = K1_YM + CHP * 16; K1_HIST = K1_INV + CHP * 2; K1_START = K1_HIST + 1024
K1_LDS = K1_HIST + 2560
def k1():
    nt = "nt" if K1NT else ""
    SRC, DST, YY, EF, WS, AUX = 4, 8, 12, 16, 20, 24
    sW, sCH, sO4, sO8, sO8b, sT = 28, 29, 30, 31, 32, 33
    mB, mE = 52, 54
    vT4, vT8, vT16, vL = 1, 2, 3, 4
    vDA, vDB, vSA, vSB = 5, 6, 7, 44
    vA, vB = 8, 12
    vRA, vRB, vONE, vP, vPO = 16, 17, 18, 19, 45
    vC, vST = 20, 24
    e(""".globl bin_kernel
.p2align 8
.type bin_kernel,@function
bin_kernel:""")
    e("s_cmp_ge_u32 s2, 256\ns_cbranch_scc1 L_k1_end")
    stamp(0)
    e("""s_load_dwordx8 s[36:43], s[0:1], 8
s_load_dwordx4 s[44:47], s[0:1], 40
s_load_dwordx2 s[48:49], s[0:1], 56
s_load_dwordx2 s[50:51], s[0:1], 80""")
    e(f"""v_lshrrev_b32 v{vL}, 6, v0
v_lshlrev_b32 v{vT4}, 2, v0
v_readfirstlane_b32 s{sW}, v{vL}
v_lshlrev_b32 v{vT8}, 3, v0
v_lshlrev_b32 v{vT16}, 4, v0
v_and_b32 v{vL}, 63, v0
v_mov_b32 v{vONE}, 0
ds_write_b32 v{vT4}, v{vONE} offset:{K1_HIST}
v_mov_b32 v{vONE}, 1
s_and_b32 s{sCH}, s2, 7
s_lshl_b32 s{sCH}, s{sCH}, 5
s_lshr_b32 s{sT}, s2, 3
s_or_b32 s{sCH}, s{sCH}, s{sT}
s_mul_i32 s{sO4}, s{sCH}, {CH*4}
s_mul_i32 s{sO8}, s{sCH}, {CH*8}
s_add_u32 s{sO8b}, s{sO8}, {640*8}
s_movk_i32 s{sT}, {CH-640}
v_cmp_gt_u32 s[{mB}:{mB+1}], s{sT}, v0
s_movk_i32 s{sT}, {2*CH-3*640}
v_cmp_gt_u32 s[{mE}:{mE+1}], s{sT}, v0
s_waitcnt lgkmcnt(0)""")
    srd(DST, 38, E * 4)
    e(f"""buffer_load_dword v{vDA}, v{vT4}, s[{DST}:{DST+3}], s{sO4} offen {nt}
buffer_load_dword v{vDB}, v{vT4}, s[{DST}:{DST+3}], s{sO4} offen offset:{640*4} {nt}""")
    srd(SRC, 36, E * 4)
    e(f"""buffer_load_dword v{vSA}, v{vT4}, s[{SRC}:{SRC+3}], s{sO4} offen {nt}
buffer_load_dword v{vSB}, v{vT4}, s[{SRC}:{SRC+3}], s{sO4} offen offset:{640*4} {nt}""")
    srd(YY, 40, E * 8)
    e(f"""buffer_load_dwordx2 {vr(vA,2)}, v{vT8}, s[{YY}:{YY+3}], s{sO8} offen {nt}
buffer_load_dwordx2 {vr(vB,2)}, v{vT8}, s[{YY}:{YY+3}], s{sO8b} offen {nt}""")
    srd(EF, 42, E * 32)
    srd(WS, 50, WS_SIZE)
    e(f"""s_lshl_b32 s{sT}, s2, 6
v_or_b32 v{vPO}, s{sT}, v{vL}
s_cmp_eq_u32 s{sW}, 0
s_cbranch_scc0 L_k1_r1""")
    srd(AUX, 48, C * C * 2)
    e(f"""v_and_b32 v20, 7, v{vPO}
v_bfe_u32 v21, v{vPO}, 7, 2
v_lshl_add_u32 v20, v21, 3, v20
v_bfe_u32 v21, v{vPO}, 9, 2
v_lshl_add_u32 v20, v21, 5, v20
v_bfe_u32 v21, v{vPO}, 11, 1
v_bfe_u32 v22, v{vPO}, 3, 4
v_lshl_add_u32 v21, v22, 1, v21
v_lshrrev_b32 v22, 12, v{vPO}
v_lshl_add_u32 v21, v22, 5, v21
v_lshlrev_b32 v21, 1, v21
v_lshl_add_u32 v20, v20, 8, v21
buffer_load_ushort v{vP}, v20, s[{AUX}:{AUX+3}], 0 offen
s_branch L_k1_rdone
L_k1_r1:
s_cmp_eq_u32 s{sW}, 1
s_cbranch_scc0 L_k1_r2
s_cmp_lt_u32 s2, 32
s_cbranch_scc0 L_k1_rdone""")
    srd(AUX, 44, 16 * C * 2)
    e(f"""v_and_b32 v20, 7, v{vPO}
v_bfe_u32 v21, v{vPO}, 8, 1
v_lshl_add_u32 v20, v21, 3, v20
v_bfe_u32 v21, v{vPO}, 9, 1
v_bfe_u32 v22, v{vPO}, 3, 5
v_lshl_add_u32 v21, v22, 1, v21
v_lshrrev_b32 v22, 10, v{vPO}
v_lshl_add_u32 v21, v22, 6, v21
v_lshlrev_b32 v21, 1, v21
v_lshl_add_u32 v20, v20, 8, v21
buffer_load_ushort v{vP}, v20, s[{AUX}:{AUX+3}], 0 offen
s_branch L_k1_rdone
L_k1_r2:
s_cmp_eq_u32 s{sW}, 2
s_cbranch_scc0 L_k1_rdone
s_cmp_eq_u32 s2, 0
s_cbranch_scc0 L_k1_rdone""")
    srd(AUX, 46, 128)
    e(f"""v_and_b32 v20, 0x30, v{vL}
v_and_b32 v21, 3, v{vL}
v_lshl_add_u32 v20, v21, 2, v20
v_bfe_u32 v21, v{vL}, 2, 2
v_add_lshl_u32 v20, v20, v21, 1
buffer_load_ushort v{vP}, v20, s[{AUX}:{AUX+3}], 0 offen
L_k1_rdone:""")
    e(f"s_mul_i32 s34, s{sCH}, {CH*32}\ns_lshl_b32 s35, s{sW}, 10")
    for k in range(4):
        if k == 3: e(f"s_mov_b64 exec, s[{mE}:{mE+1}]")
        e(f"s_add_u32 m0, s35, {K1_EF + k*10240}")
        if k: e(f"s_add_u32 s34, s34, 10240")
        else: e("s_nop 0")
        e(f"buffer_load_dwordx4 v{vT16}, s[{EF}:{EF+3}], s34 offen {nt} lds")
    e("s_mov_b64 exec, -1\ns_barrier")
    e(f"""s_waitcnt vmcnt(8)
v_and_b32 v20, 255, v{vDA}
v_and_b32 v21, 255, v{vDB}
v_lshlrev_b32 v28, 2, v20
v_lshlrev_b32 v29, 2, v21
ds_add_rtn_u32 v{vRA}, v28, v{vONE} offset:{K1_HIST}
s_mov_b64 exec, s[{mB}:{mB+1}]
ds_add_rtn_u32 v{vRB}, v29, v{vONE} offset:{K1_HIST}
s_mov_b64 exec, -1
s_movk_i32 s{sT}, {RMUL}
s_waitcnt vmcnt(6)""")
    stamp(1)
    for (d, s, r) in ((vDA, vSA, vA), (vDB, vSB, vB)):
        e(f"""v_lshrrev_b32 v20, 11, v{d}
v_lshlrev_b32 v20, 3, v20
v_lshl_or_b32 v{r+2}, v{s}, 10, v20
v_mul_u32_u24 v20, s{sT}, v{s}
v_lshrrev_b32 v20, {RSH}, v20
v_bfe_u32 v21, v{d}, 8, 3
v_lshl_add_u32 v20, v21, {int(math.log2(R))}, v20
v_lshlrev_b32 v{r+3}, 2, v20""")
    e(f"""v_lshlrev_b32 v30, 4, v{vL}
s_waitcnt lgkmcnt(0)
s_barrier
ds_read_b128 {vr(vC,4)}, v30 offset:{K1_HIST}
s_waitcnt lgkmcnt(0)
v_add_u32 v{vST+2}, v{vC}, v{vC+1}
v_add_u32 v{vST+3}, v{vST+2}, v{vC+2}
v_add_u32 v31, v{vST+3}, v{vC+3}
v_mov_b32 v32, v31""")
    scan(32)
    e(f"""v_sub_u32 v{vST}, v32, v31
v_add_u32 v{vST+1}, v{vST}, v{vC}
v_add_u32 v{vST+2}, v{vST}, v{vST+2}
v_add_u32 v{vST+3}, v{vST}, v{vST+3}
ds_write_b128 v30, {vr(vST,4)} offset:{K1_START}
ds_read_b32 v33, v28 offset:{K1_START}
ds_read_b32 v34, v29 offset:{K1_START}
v_lshlrev_b32 v35, 5, v0
v_add_u32 v36, {640*32}, v35
s_waitcnt lgkmcnt(0)
v_add_lshl_u32 v33, v33, v{vRA}, 1
v_add_lshl_u32 v34, v34, v{vRB}, 1
ds_write_b16 v33, v35 offset:{K1_INV}
v_lshlrev_b32 v33, 3, v33
s_waitcnt vmcnt(4)
ds_write_b128 v33, {vr(vA,4)} offset:{K1_YM}
s_mov_b64 exec, s[{mB}:{mB+1}]
ds_write_b16 v34, v36 offset:{K1_INV}
v_lshlrev_b32 v34, 3, v34
ds_write_b128 v34, {vr(vB,4)} offset:{K1_YM}
s_mov_b64 exec, -1""")
    e(f"""s_cmp_eq_u32 s{sW}, 3
s_cbranch_scc0 L_k1_s0
s_lshl_b32 s{sT}, s{sCH}, 2
s_add_u32 s{sT}, s{sT}, {WS_TBL}
v_lshlrev_b32 v37, 12, v{vL}""")
    for k in range(4):
        e(f"v_lshl_or_b32 v{40+k}, v{vC+k}, 16, v{vST+k}\nbuffer_store_dword v{40+k}, v37, s[{WS}:{WS+3}], s{sT} offen offset:{1024*k} {K1ST}")
    e(f"""s_branch L_k1_sdone
L_k1_s0:
v_lshlrev_b32 v37, 1, v{vPO}
s_cmp_eq_u32 s{sW}, 0
s_cbranch_scc0 L_k1_s1
s_mov_b32 s{sT}, {WS_WMIX}
buffer_store_short v{vP}, v37, s[{WS}:{WS+3}], s{sT} offen {K1ST}
s_branch L_k1_sdone
L_k1_s1:
s_cmp_eq_u32 s{sW}, 1
s_cbranch_scc0 L_k1_s2
s_cmp_lt_u32 s2, 32
s_cbranch_scc0 L_k1_sdone
v_lshlrev_b32 v38, 16, v{vP}
v_mul_f32 v38, {f32(-LOG2E)}, v38
v_cvt_pk_bf16_f32 v39, v38, v38
v_lshlrev_b32 v40, 16, v39
v_sub_f32 v38, v38, v40
v_cvt_pk_bf16_f32 v40, v38, v38
s_mov_b32 s{sT}, {WS_WB}
buffer_store_short v39, v37, s[{WS}:{WS+3}], s{sT} offen {K1ST}
s_mov_b32 s{sT}, {WS_WB+4096}
buffer_store_short v40, v37, s[{WS}:{WS+3}], s{sT} offen {K1ST}
s_branch L_k1_sdone
L_k1_s2:
s_cmp_eq_u32 s{sW}, 2
s_cbranch_scc0 L_k1_sdone
s_cmp_eq_u32 s2, 0
s_cbranch_scc0 L_k1_sdone
s_mov_b32 s{sT}, {WS_CG}
buffer_store_short v{vP}, v37, s[{WS}:{WS+3}], s{sT} offen {K1ST}
L_k1_sdone:""")
    e(f"""v_and_b32 v33, 0x3fe, v0
v_and_b32 v34, 1, v0
v_lshlrev_b32 v34, 4, v34
s_mul_i32 s34, s{sCH}, {CHP*16}
s_add_u32 s34, s34, {WS_YM}
s_add_u32 s35, s34, 10240
s_waitcnt lgkmcnt(0)
s_barrier""")
    stamp(2)
    e(f"""ds_read_b128 v[8:11], v{vT16} offset:{K1_YM}
ds_read_b128 v[12:15], v{vT16} offset:{K1_YM+10240}""")
    for k in range(4):
        e(f"ds_read_u16 v{36+k}, v33 offset:{K1_INV + 640*k}")
    if STAMP: e("s_waitcnt lgkmcnt(0)")
    e(f"""s_waitcnt lgkmcnt(5)
buffer_store_dwordx4 v[8:11], v{vT16}, s[{WS}:{WS+3}], s34 offen {K1ST}
s_waitcnt lgkmcnt(4)
s_mov_b64 exec, s[{mB}:{mB+1}]
buffer_store_dwordx4 v[12:15], v{vT16}, s[{WS}:{WS+3}], s35 offen {K1ST}
s_mov_b64 exec, -1
s_waitcnt lgkmcnt(0)""")
    for k in range(4): e(f"v_or_b32 v{36+k}, v{36+k}, v34")
    e(f"s_mul_i32 s34, s{sCH}, {CHP*32}\ns_waitcnt vmcnt(2)\ns_barrier")
    stamp(3)
    for k in range(4):
        if k == 3: e(f"s_mov_b64 exec, s[{mE}:{mE+1}]")
        e(f"ds_read_b128 v[{16+4*k}:{19+4*k}], v{36+k} offset:{K1_EF}")
    e("s_mov_b64 exec, -1")
    if STAMP: e("s_waitcnt lgkmcnt(0)")
    for k in range(4):
        if k == 3: e(f"s_mov_b64 exec, s[{mE}:{mE+1}]")
        e(f"s_waitcnt lgkmcnt({3-k})\nbuffer_store_dwordx4 v[{16+4*k}:{19+4*k}], v{vT16}, s[{WS}:{WS+3}], s34 offen {K1ST}")
        if k < 3: e("s_add_u32 s34, s34, 10240")
    if STAMP:
        e("s_waitcnt vmcnt(0)"); stamp(4)
        e(f"s_mul_i32 s34, s2, 10\ns_add_u32 s34, s34, s{sW}")
        stamp_out(5, WS, 34, 40)
    e("L_k1_end:\ns_endpgm")

CAPW = 256
L_EF = 0; L_ST = 8 * CAPW * 32; L_WM = L_ST + 8 * CAPW * 16 + 2048; L_LIST = L_WM + 32768
L_HIST = L_LIST + 8 * CAPW * 4; L_NR = L_HIST + 8 * R * 4; L_BASE = L_HIST + 2048
M_LDS = L_BASE + 8 * R * 4
TROW = 272
ACC = 8; X = 48; T0 = X + 4 * D; T0 = (T0 + 15) // 16 * 16
T = [T0, T0 + 32]; TP = T0 + 64; TMP = TP + 16; AE = TMP + 4; EFA = AE + 8; WB = EFA + 8
CG = WB + (32 if HILO else 16); ENT = CG + 8; META = ENT + 4; EFAD = META + 1
vEntA = EFAD + 1; vEfA = vEntA + 1; vL16 = vEfA + 1; vH16 = vL16 + 1; vQ = vH16 + 1
vPS = vQ + 1; vPE = vPS + 1; vDL = vPE + 1; NV = vDL + 1
assert NV <= 256, NV
RING = 64
DUMMY = (N * 1024) | 40
def main():
    XS, WS, OS = 4, 8, 12
    sW, sKB, sN, sCW, sW0, sNR, sT, sT2, sBAR, sS0, sRem = 16, 17, 18, 19, 24, 25, 26, 27, 28, 29, 30
    mU0, mU1 = 20, 22
    mV = 36
    sMASK, sDUM, sEFM = 31, 32, 33
    sOFF = 80
    vL = 1
    e(""".globl main_kernel
.p2align 8
.type main_kernel,@function
main_kernel:""")
    e("s_cmp_ge_u32 s2, 256\ns_cbranch_scc1 L_m_end")
    stamp(0)
    e(f"""s_load_dwordx2 s[44:45], s[0:1], 80
s_load_dwordx2 s[46:47], s[0:1], 0
s_load_dwordx2 s[48:49], s[0:1], 64
v_lshrrev_b32 v2, 6, v0
v_and_b32 v{vL}, 63, v0
v_readfirstlane_b32 s{sW}, v2
s_and_b32 s{sKB}, s2, 7
s_lshl_b32 s{sKB}, s{sKB}, 5
s_lshr_b32 s{sT}, s2, 3
s_or_b32 s{sKB}, s{sKB}, s{sT}
v_lshlrev_b32 v2, 2, v0
v_mov_b32 v3, 0
v_add_u32 v2, {L_HIST}, v2
ds_write_b32 v2, v3
v_lshrrev_b32 v4, 1, v0
v_lshlrev_b32 v5, 2, v4
s_lshl_b32 s{sT}, s{sKB}, 10
s_add_u32 s{sT}, s{sT}, {WS_TBL}
v_lshlrev_b32 v{vL16}, 4, v{vL}
s_waitcnt lgkmcnt(0)""")
    srd(WS, 44, WS_SIZE)
    e(f"buffer_load_dword v6, v5, s[{WS}:{WS+3}], s{sT} offen")
    e(f"s_mov_b32 s{sT}, {WS_WB}")
    nwb = 8 if HILO else 4
    for k in range(nwb):
        if k == 4: e(f"s_mov_b32 s{sT}, {WS_WB+4096}")
        e(f"buffer_load_dwordx4 {vr(WB+4*k,4)}, v{vL16}, s[{WS}:{WS+3}], s{sT} offen offset:{1024*(k%4)}")
    e(f"v_and_b32 v7, 3, v0\nv_lshlrev_b32 v7, 3, v7\ns_mov_b32 s{sT}, {WS_CG}")
    for k in range(4):
        e(f"buffer_load_dwordx2 {vr(CG+2*k,2)}, v7, s[{WS}:{WS+3}], s{sT} offen offset:{32*k}")
    e(f"s_lshl_b32 s{sT}, s{sW}, 12\ns_add_u32 m0, s{sT}, {L_WM}\ns_add_u32 s{sT}, s{sT}, {WS_WMIX}")
    for k in range(4):
        e(f"buffer_load_dwordx4 v{vL16}, s[{WS}:{WS+3}], s{sT} offen offset:{1024*k} lds")
    nw_after = nwb + 8
    srd(XS, 46, N * 1024)
    srd(OS, 48, N * 1024)
    e(f"""s_mov_b32 s{mU0}, 0x0f0f0f0f
s_mov_b32 s{mU0+1}, 0x0f0f0f0f
s_mov_b32 s{mU1}, 0xf0f0f0f0
s_mov_b32 s{mU1+1}, 0xf0f0f0f0
s_mov_b32 s{sMASK}, 0xfffffc00
s_mov_b32 s{sDUM}, {hex(DUMMY)}
s_mov_b32 s{sEFM}, 0xffe0
s_mov_b32 s{sW0}, 0""")
    for i in range(40): e(f"v_mov_b32 v{ACC+i}, 0")
    for i in range(8): e(f"v_mov_b32 v{EFA+i}, 0")
    e(f"""v_and_b32 v2, 3, v{vL}
v_lshrrev_b32 v3, 2, v{vL}
v_lshl_add_u32 v{vQ}, v2, 4, v3
v_lshrrev_b32 v2, 5, v{vL}
v_lshlrev_b32 v{vH16}, 4, v2
s_barrier
s_waitcnt vmcnt({nw_after})""")
    stamp(1)
    e(f"""v_lshrrev_b32 v2, 16, v6
v_and_b32 v6, 0xffff, v6
v_and_b32 v3, 1, v0
v_cmp_eq_u32 vcc, 0, v3
s_movk_i32 s{sT}, {CHP}
v_mad_u32_u24 v6, v4, s{sT}, v6
v_cndmask_b32 v{vPE}, 0, v2, vcc""")
    scan(vPE)
    e(f"""s_nop 0
v_readlane_b32 s{sCW}, v{vPE}, 63
v_sub_u32 v{vPS}, v{vPE}, v2
v_sub_u32 v{vDL}, v6, v{vPS}
s_add_u32 s{sT}, s{sCW}, {CAPW-1}
s_lshr_b32 s{sT}, s{sT}, 8
v_mov_b32 v2, s{sT}
v_mov_b32 v3, {L_NR}
ds_max_u32 v3, v2""")
    e("L_round:")
    tY = T0
    tI = T0 + 16
    tR = T0 + 28
    e(f"""s_lshl_b32 s{sT}, s{sW}, 10
s_add_u32 s{sT}, s{sT}, {L_LIST}
v_add_u32 v7, s{sT}, v{vL16}
v_mov_b32 v{tY}, 0x04000000
v_mov_b32 v{tY+1}, 0x04000000
v_mov_b32 v{tY+2}, 0x04000000
v_mov_b32 v{tY+3}, 0x04000000
ds_write_b128 v7, {vr(tY,4)}
v_and_b32 v2, 1, v0
v_max_u32 v3, s{sW0}, v{vPS}
v_add_u32 v3, v3, v2
s_add_u32 s{sT2}, s{sW0}, {CAPW}
v_min_u32 v4, s{sT2}, v{vPE}
v_add_u32 v5, v{vDL}, v3
s_lshl_b32 s{sT2}, s{sW0}, 2
s_sub_u32 s{sT2}, s{sT}, s{sT2}
v_lshl_add_u32 v6, v3, 2, s{sT2}
L_exp:
v_cmpx_lt_u32 vcc, v3, v4
s_cbranch_execz L_exp_done
ds_write_b32 v6, v5
v_add_u32 v3, 2, v3
v_add_u32 v5, 2, v5
v_add_u32 v6, 8, v6
s_branch L_exp
L_exp_done:
s_mov_b64 exec, -1
v_lshl_add_u32 v3, v{vL}, 2, s{sT}
v_lshrrev_b32 v4, 1, v{vL}
v_lshl_add_u32 v4, v4, 2, s{sT}
v_lshlrev_b32 v2, 4, v2""")
    for k in range(4): e(f"ds_read_b32 v{tI+k}, v3 offset:{256*k}")
    for k in range(8): e(f"ds_read_b32 v{tI+4+k}, v4 offset:{128*k}")
    e(f"s_mov_b32 s{sT}, {WS_YM}\ns_mov_b32 s{sT2}, 0x04000000")
    if STAMP: e("s_waitcnt lgkmcnt(0)")
    for k in range(4):
        e(f"""s_waitcnt lgkmcnt({11-k})
v_cmp_gt_u32 s[{mV+2*k}:{mV+2*k+1}], s{sT2}, v{tI+k}
v_lshlrev_b32 v{tI+k}, 4, v{tI+k}
buffer_load_dwordx4 {vr(tY+4*k,4)}, v{tI+k}, s[{WS}:{WS+3}], s{sT} offen {PAYNT}""")
    e(f"s_lshl_b32 s{sT}, s{sW}, 13")
    for k in range(8):
        e(f"""s_add_u32 m0, s{sT}, {L_EF + 1024*k}
s_waitcnt lgkmcnt({7-k})
v_lshl_or_b32 v{tI+4+k}, v{tI+4+k}, 5, v2
buffer_load_dwordx4 v{tI+4+k}, s[{WS}:{WS+3}], 0 offen {PAYNT} lds""")
    stamp(2)
    e(f"v_mov_b32 v2, 1\nv_lshl_add_u32 v5, v{vL}, 5, s{sT}")
    for k in range(4):
        e(f"""s_waitcnt vmcnt({11-k})
s_mov_b64 exec, s[{mV+2*k}:{mV+2*k+1}]
v_add_u32 v{tY+4*k+3}, {L_HIST}, v{tY+4*k+3}
ds_add_rtn_u32 v{tR+k}, v{tY+4*k+3}, v2""")
    per = 8 * R // 64
    e(f"""s_mov_b64 exec, -1
v_lshlrev_b32 v3, {int(math.log2(per*4))}, v{vL}
v_add_u32 v3, {L_HIST}, v3
v_mov_b32 v4, {L_NR}
s_waitcnt lgkmcnt(0)
s_barrier""")
    stamp(3)
    cN = T0 + 32; cP = T0 + 36
    e(f"ds_read_b{32*per} {vr(cN,per)}, v3\nds_read_b32 v4, v4\ns_waitcnt lgkmcnt(0)")
    e(f"v_readfirstlane_b32 s{sNR}, v4")
    e(f"v_mov_b32 v6, v{cN}")
    for j in range(1, per): e(f"v_add_u32 v6, v6, v{cN+j}")
    e("v_mov_b32 v7, v6")
    scan(7)
    e(f"v_sub_u32 v{cP}, v7, v6")
    for j in range(1, per): e(f"v_add_u32 v{cP+j}, v{cP+j-1}, v{cN+j-1}")
    e(f"""ds_write_b{32*per} v3, {vr(cP,per)} offset:{L_BASE-L_HIST}
s_lshl_b32 s{sT}, s{sW}, 3
s_add_u32 s{sT2}, s{sT}, 7""")
    for k in range(4): e(f"ds_read_b32 v{tI+k}, v{tY+4*k+3} offset:{L_BASE-L_HIST}")
    e(f"""v_readlane_b32 s{sS0}, v{cP}, s{sT}
v_readlane_b32 s{sN}, v7, s{sT2}
v_readlane_b32 s{sBAR}, v7, 63""")
    for k in range(4):
        e(f"""s_waitcnt lgkmcnt(3)
s_mov_b64 exec, s[{mV+2*k}:{mV+2*k+1}]
v_add_lshl_u32 v{tI+k}, v{tI+k}, v{tR+k}, 4
v_add_u32 v{tY+4*k+3}, {2048*k}, v5
v_add_u32 v{tI+k}, {L_ST}, v{tI+k}
ds_write_b128 v{tI+k}, {vr(tY+4*k,4)}""")
    e(f"""s_mov_b64 exec, -1
s_sub_u32 s{sN}, s{sN}, s{sS0}
s_min_u32 s{sN}, s{sN}, {8*CAPW}
s_min_u32 s{sBAR}, s{sBAR}, {8*CAPW}
s_min_u32 s{sNR}, s{sNR}, {32*CH//CAPW+1}
s_lshl_b32 s{sT}, s{sS0}, 4
s_add_u32 s{sT}, s{sT}, {L_ST}
v_lshl_add_u32 v{vEntA}, v{vQ}, 4, s{sT}
v_and_b32 v2, 3, v{vL}
v_bfe_u32 v3, v{vL}, 3, 2
v_lshl_add_u32 v2, v3, 2, v2
v_lshl_add_u32 v{vEfA}, v2, 4, s{sT}""")
    if BAR: e(f"s_lshr_b32 s{sBAR}, s{sBAR}, {3 + int(math.log2(BAR))}")
    e(f"""v_lshlrev_b32 v2, 2, v0
v_add_u32 v2, {L_HIST}, v2
v_mov_b32 v3, 0
s_waitcnt lgkmcnt(0)
s_barrier""")
    stamp(4)
    e(f"""ds_read_b128 {vr(ENT,4)}, v{vEntA}
ds_read_b32 v{EFAD}, v{vEfA} offset:12
s_movk_i32 s{sT}, {8*R}
v_cmp_gt_u32 vcc, s{sT}, v0
s_and_saveexec_b64 s[34:35], vcc
ds_write_b32 v2, v3
s_mov_b64 exec, -1
v_cmp_gt_i32 vcc, s{sN}, v{vQ}
v_mov_b32 v4, s{sDUM}
s_waitcnt lgkmcnt(0)
v_cndmask_b32 v{META}, v4, v{ENT+2}, vcc
v_and_or_b32 v{EFAD}, v{EFAD}, s{sEFM}, v{vH16}""")
    lane_of = lambda q: 4 * (q % 16) + (q % 64) // 16
    ring = lambda q: RING + q % 16
    for q in range(D): e(f"v_readlane_b32 s{ring(q)}, v{META}, {lane_of(q)}")
    for q in range(D):
        e(f"s_and_b32 s{sOFF+q%4}, s{ring(q)}, s{sMASK}\nbuffer_load_dwordx4 {vr(X+4*q,4)}, v{vL16}, s[{XS}:{XS+3}], s{sOFF+q%4} offen")
    e(f"s_waitcnt vmcnt({D})\ns_barrier")
    stamp(5)
    def rd_efa(u): e(f"s_mov_b64 exec, s[{(mU0,mU1)[u]}:{(mU0,mU1)[u]+1}]\nds_read_b128 {vr(EFA+4*u,4)}, v{EFAD}\ns_mov_b64 exec, -1")
    def rmfma(buf, j):
        if HILO: u, par, lo = j // 4, j % 2, (j // 2) % 2
        else: u, par, lo = j // 2, j % 2, 0
        d = T[buf] + 16 * par
        c = "0" if (u == 0 and lo == 0) else vr(d, 16)
        return f"v_mfma_f32_32x32x16_bf16 {vr(d,16)}, {vr(EFA+4*u,4)}, {vr(WB+16*lo+4*(2*u+par),4)}, {c}"
    NM = 8 if HILO else 4
    rd_efa(0); rd_efa(1)
    e(f"s_waitcnt lgkmcnt(0)")
    e(f"ds_read_b32 v{EFAD}, v{vEfA} offset:{256+12}")
    for j in range(NM): e(rmfma(0, j))
    e(f"s_waitcnt lgkmcnt(0)\nv_and_or_b32 v{EFAD}, v{EFAD}, s{sEFM}, v{vH16}")
    if HILO:
        e("s_nop 7"); rd_efa(0)
    e(f"s_mov_b32 s{sRem}, s{sN}")
    e("L_sb:")
    for i in range(4): e(f"v_mfma_f32_4x4x4_16b_bf16 {vr(TP+4*i,4)}, {vr(ENT,2)}, {vr(CG+2*i,2)}, 0")
    e(f"v_add_u32 v{vEntA}, 1024, v{vEntA}\ns_sub_u32 s{sT}, s{sRem}, 64\ns_nop 2")
    for r in range(4):
        e(f"v_cvt_pk_bf16_f32 v{AE+2*r}, v{TP+r}, v{TP+4+r}\nv_cvt_pk_bf16_f32 v{AE+2*r+1}, v{TP+8+r}, v{TP+12+r}")
    e(f"ds_read_b128 {vr(ENT,4)}, v{vEntA}\nv_cmp_gt_i32 s[34:35], s{sT}, v{vQ}")
    for q in range(0, 64, 2):
        b, p = q // 16, (q % 16) // 2
        cur = b % 2
        te, to = T[cur] + q % 16, T[cur] + 16 + q % 16
        e(f"; ---- pair q={q}")
        e(f"s_cmp_le_i32 s{sRem}, {q}\ns_cbranch_scc1 L_exit")
        if BAR and q % BAR == 0:
            e(f"s_cmp_eq_u32 s{sBAR}, 0\ns_cbranch_scc1 L_nb{q}\ns_sub_u32 s{sBAR}, s{sBAR}, 1\ns_barrier\nL_nb{q}:")
        pre = []
        if q + D == 64:
            e(f"s_waitcnt lgkmcnt(0)\nv_cndmask_b32 v{META}, v4, v{ENT+2}, s[34:35]")
        if not HILO:
            if p == 0: rd_efa(0); rd_efa(1)
            if p == 6: e(f"ds_read_b32 v{EFAD}, v{vEfA} offset:{256*(b+2)+12}")
            if p == 7: e(f"s_waitcnt lgkmcnt(0)\nv_and_or_b32 v{EFAD}, v{EFAD}, s{sEFM}, v{vH16}")
            mm = rmfma(1 - cur, p - 2) if 2 <= p <= 5 else None
            mwait = (p == 2)
        else:
            if p == 1: rd_efa(1)
            if p == 3: e(f"ds_read_b32 v2, v{vEfA} offset:{256*(b+2)+12}")
            if p == 5:
                e(f"v_and_or_b32 v{EFAD}, v2, s{sEFM}, v{vH16}"); rd_efa(0)
            mm = rmfma(1 - cur, p)
            mwait = p in (0, 4)
        xa, xb = X + 4 * (q % D), X + 4 * ((q + 1) % D)
        mf = lambda d, x, qq: f"v_mfma_f32_4x4x4_16b_bf16 {vr(d,4)}, {vr(AE+2*b,2)}, {vr(x,2)}, 0 cbsz:4 abid:{qq%16}"
        e(f"""s_waitcnt vmcnt({D-1})
{mf(TP, xa, q)}
v_exp_f32 v{TMP}, v{te}
{mf(TP+4, xa+2, q)}
v_exp_f32 v{TMP+1}, v{te+1}
s_waitcnt vmcnt({D-2})
{mf(TP+8, xb, q+1)}
v_exp_f32 v{TMP+2}, v{to}
{mf(TP+12, xb+2, q+1)}
v_exp_f32 v{TMP+3}, v{to+1}
v_readlane_b32 s{ring(q+D)}, v{META}, {lane_of(q+D)}
v_readlane_b32 s{ring(q+D+1)}, v{META}, {lane_of(q+D+1)}
v_pk_add_f32 {vr(TMP,2)}, {vr(TMP,2)}, 1.0 op_sel_hi:[1,0]
v_pk_add_f32 {vr(TMP+2,2)}, {vr(TMP+2,2)}, 1.0 op_sel_hi:[1,0]
s_and_b32 s{sOFF}, s{ring(q+D)}, s{sMASK}
s_and_b32 s{sOFF+1}, s{ring(q+D+1)}, s{sMASK}""")
        if mm:
            if mwait: e("s_waitcnt lgkmcnt(0)")
            e(mm)
        e(f"""v_rcp_f32 v{TMP}, v{TMP}
buffer_load_dwordx4 {vr(xa,4)}, v{vL16}, s[{XS}:{XS+3}], s{sOFF} offen
v_rcp_f32 v{TMP+1}, v{TMP+1}
buffer_load_dwordx4 {vr(xb,4)}, v{vL16}, s[{XS}:{XS+3}], s{sOFF+1} offen
v_rcp_f32 v{TMP+2}, v{TMP+2}
v_rcp_f32 v{TMP+3}, v{TMP+3}
v_pk_mul_f32 {vr(TMP,2)}, {vr(TMP,2)}, {vr(te,2)}
v_pk_mul_f32 {vr(TMP+2,2)}, {vr(TMP+2,2)}, {vr(to,2)}""")
        for s in range(2):
            e(f"s_set_gpr_idx_on s{ring(q+s)}, gpr_idx(SRC2,DST)" if s == 0 else f"s_set_gpr_idx_idx s{ring(q+s)}")
            for j in range(4):
                e(f"v_pk_fma_f32 {vr(ACC+2*j,2)}, {vr(TMP+2*(j//2),2)}, {vr(TP+8*s+2*j,2)}, {vr(ACC+2*j,2)} op_sel:[{s},0,0] op_sel_hi:[{s},1,1]")
        e("s_set_gpr_idx_off")
    e(f"""v_add_u32 v{vEfA}, 1024, v{vEfA}
s_sub_u32 s{sRem}, s{sRem}, 64
s_branch L_sb
L_exit:""")
    if BAR:
        e(f"L_bl:\ns_cmp_eq_u32 s{sBAR}, 0\ns_cbranch_scc1 L_bd\ns_sub_u32 s{sBAR}, s{sBAR}, 1\ns_barrier\ns_branch L_bl\nL_bd:")
    stamp(6)
    e(f"""s_add_u32 s{sW0}, s{sW0}, {CAPW}
s_lshl_b32 s{sT}, s{sNR}, 8
s_cmp_lt_u32 s{sW0}, s{sT}
s_cbranch_scc0 L_epi
s_waitcnt vmcnt(0) lgkmcnt(0)
s_nop 15
s_barrier
s_branch L_round
L_epi:""")
    e(f"""s_mov_b32 s34, {f32(-LN2)}
s_mov_b32 s35, {f32(-LN2)}
s_mul_i32 s{sT}, s{sW}, {4*TROW}
v_lshl_add_u32 v2, v{vL}, 2, s{sT}""")
    for i in range(20): e(f"v_pk_mul_f32 {vr(ACC+2*i,2)}, {vr(ACC+2*i,2)}, s[34:35]")
    for s in range(5):
        for o in range(4): e(f"v_cvt_pk_bf16_f32 v{ACC+8*s+o}, v{ACC+8*s+o}, v{ACC+8*s+4+o}")
    FB = T0
    FA = T0 + 32
    FD = TP
    e(f"""s_and_b32 s{sT}, s{sW}, 3
s_lshl_b32 s{sT2}, s{sT}, 13
s_add_u32 s{sT2}, s{sT2}, {L_WM}
v_add_u32 v3, s{sT2}, v{vL16}
s_waitcnt lgkmcnt(0)""")
    for k in range(8): e(f"ds_read_b128 {vr(FB+4*k,4)}, v3 offset:{1024*k}")
    e("s_barrier")
    for s in range(5):
        for o in range(4): e(f"ds_write_b32 v2, v{ACC+8*s+o} offset:{(s*32+o)*TROW}")
    e(f"""s_lshr_b32 s{sT2}, s{sW}, 2
v_and_b32 v4, 15, v{vL}
v_lshrrev_b32 v5, 4, v{vL}
s_movk_i32 s36, {TROW}
v_mul_u32_u24 v6, s36, v4
v_lshl_add_u32 v6, v5, 4, v6
s_mul_i32 s36, s{sT2}, {80*TROW}
v_add_u32 v6, s36, v6
v_lshlrev_b32 v7, 18, v5
v_lshl_add_u32 v7, v4, 4, v7
s_mul_i32 s36, s{sT2}, {20*256*1024}
s_lshl_b32 s37, s{sKB}, 10
s_add_u32 s36, s36, s37
s_lshl_b32 s37, s{sT}, 8
s_add_u32 s36, s36, s37
v_add_u32 v7, s36, v7
s_waitcnt lgkmcnt(0)
s_barrier""")
    def rdA(t):
        for ks in range(4): e(f"ds_read_b128 {vr(FA+16*(t%2)+4*ks,4)}, v6 offset:{t*16*TROW + 64*ks}")
    def fin(t):
        d = FD + 8 * (t % 2); o = X + 4 * (t % 2)
        for j in range(4): e(f"v_cvt_pk_bf16_f32 v{o+j}, v{d+2*j}, v{d+2*j+1}")
        e(f"buffer_store_dwordx4 {vr(o,4)}, v7, s[{OS}:{OS+3}], 0 offen {OUTST}")
        if t < 4: e(f"v_add_u32 v7, {4*256*1024}, v7")
    e("s_waitcnt vmcnt(0)")
    rdA(0); rdA(1)
    for t in range(5):
        d = FD + 8 * (t % 2)
        for ks in range(4):
            e(f"s_waitcnt lgkmcnt({(7 if t < 4 else 3) - ks})")
            for par in range(2):
                e(f"v_mfma_f32_16x16x32_bf16 {vr(d+4*par,4)}, {vr(FA+16*(t%2)+4*ks,4)}, {vr(FB+16*par+4*ks,4)}, {'0' if ks == 0 else vr(d+4*par,4)}")
        if t + 2 < 5: rdA(t + 2)
        if t >= 1: fin(t - 1)
    e("s_nop 7")
    fin(4)
    if STAMP:
        e("s_waitcnt vmcnt(0)"); stamp(7)
        e(f"s_lshl_b32 s34, s2, 3\ns_add_u32 s34, s34, s{sW}\ns_add_u32 s34, s34, 4096")
        stamp_out(8, WS, 34, 2)
    e("L_m_end:\ns_endpgm")

def desc(name, nv):
    e(f""".amdhsa_kernel {name}
.amdhsa_next_free_vgpr {nv}
.amdhsa_next_free_sgpr 100
.amdhsa_accum_offset {(nv+3)//4*4}
.amdhsa_group_segment_fixed_size 0
.amdhsa_kernarg_size 88
.amdhsa_user_sgpr_count 2
.amdhsa_user_sgpr_kernarg_segment_ptr 1
.amdhsa_system_sgpr_workgroup_id_x 1
.amdhsa_float_denorm_mode_32 3
.end_amdhsa_kernel""")

ref = open("standalone__tensor_product_equiv_tfn__graph.s.ref").read().splitlines()
for l in ref:
    if l.startswith("; Override"): break
    out.append(l)
out.append("; Generated by gen/gen.py " + " ".join(sys.argv[2:]))
out.append(f"; @launch kernel=bin_kernel grid=(256,1,1) block=(640,1,1) lds={K1_LDS}")
out.append(f"; @launch kernel=main_kernel grid=(256,1,1) block=(512,1,1) lds={M_LDS}")
e('.amdgcn_target "amdgcn-amd-amdhsa--gfx950"\n.text')
k1(); main()
e('.section .rodata,"a"\n.p2align 6')
desc("bin_kernel", 48); desc("main_kernel", NV)
text = "\n".join(out) + "\n"
errs = hazard.check(text)
for x in errs: print("HAZARD", x)
open(sys.argv[1], "w").write(text)
print(f"wrote {sys.argv[1]}: NV={NV} M_LDS={M_LDS} K1_LDS={K1_LDS} hazards={len(errs)}")
```

```python
import sys, struct, math
sys.path.insert(0, "gen")
import hazard

OPT = dict(FUSED=0, XPF=0, PAYSC=1, CPF=0, W2=0, LDLATE=1, NMUL=0, ONEW=0, WMLATE=0, YBAR=1, PRE=4, PRIO=4, NOLOAD=0, NOVALU=0, DIST=0, HILO=0, D=8, BAR=0, R=12, EF1=3, SCHED=2, K1NT=0, K1ST="sc1", PAYNT="", OUTST="sc1", STAMP=0)
for a in sys.argv[2:]:
    k, v = a.split("=")
    OPT[k] = int(v) if v.lstrip("-").isdigit() else v.replace("+", " ")
globals().update(OPT)
if not DIST: DIST = D
PRE = min(PRE, DIST)

N, E, C = 10000, 320000, 128
CH = 1250; CHP = 1280
WS_EF = 0; WS_YM = 256 * CHP * 32; WS_TBL = WS_YM + 256 * CHP * 16
WS_WMIX = WS_TBL + 256 * 256 * 4; WS_WB = WS_WMIX + 32768; WS_CG = WS_WB + 8192
WS_STAMP = 0x1000000
WS_SIZE = 0x1000000 + (0x100000 if STAMP else 0)
def f32(x): return "0x%08x" % struct.unpack("<I", struct.pack("<f", x))[0]
LOG2E = math.log2(math.e); LN2 = math.log(2.0)
RMUL, RSH = {4: (6711, 24), 8: (6711, 23), 12: (5033, 22)}[R]
assert (9999 * RMUL) >> RSH == R - 1

out = []
def e(s=""):
    for l in s.split("\n"):
        l = l.strip()
        if not l: continue
        out.append(l if l.endswith(":") or l.startswith((".", ";")) else "    " + l)
def vr(a, n): return f"v[{a}:{a+n-1}]" if n > 1 else f"v{a}"
def sr(a, n): return f"s[{a}:{a+n-1}]" if n > 1 else f"s{a}"
def srd(d, base, nbytes):
    e(f"s_mov_b32 s{d}, s{base}\ns_mov_b32 s{d+1}, s{base+1}\ns_mov_b32 s{d+2}, {nbytes}\ns_mov_b32 s{d+3}, 0x00020000")
def scan(v):
    for m in ("row_shr:1 row_mask:0xf", "row_shr:2 row_mask:0xf", "row_shr:4 row_mask:0xf", "row_shr:8 row_mask:0xf",
              "row_bcast:15 row_mask:0xa", "row_bcast:31 row_mask:0xc"):
        e(f"s_nop 1\nv_add_u32_dpp v{v}, v{v}, v{v} {m} bank_mask:0xf")
def stamp(i, set_=1):
    if STAMP == set_ or (STAMP and i in (0, 7) and set_ == 1):
        e(f"s_memrealtime s[{84+2*i}:{85+2*i}]")
        if set_ != 1: e("s_waitcnt lgkmcnt(0)")
def stamp_out(n, wsrd, slot_s, tmp, extra=()):
    if not STAMP: return
    e("s_waitcnt lgkmcnt(0)\ns_mov_b64 exec, 1")
    e(f"s_lshl_b32 s{slot_s}, s{slot_s}, 6\ns_add_u32 s{slot_s}, s{slot_s}, {WS_STAMP}\nv_mov_b32 v{tmp}, 0")
    for i in range(n):
        e(f"v_mov_b32 v{tmp+1}, s{84+2*i}\nbuffer_store_dword v{tmp+1}, v{tmp}, s[{wsrd}:{wsrd+3}], s{slot_s} offen offset:{4*i}")
    for i, r in enumerate(extra):
        e(f"v_mov_b32 v{tmp+1}, s{r}\nbuffer_store_dword v{tmp+1}, v{tmp}, s[{wsrd}:{wsrd+3}], s{slot_s} offen offset:{32+4*i}")

K1_EF = 0; K1_YM = CHP * 32; K1_INV = K1_YM + CHP * 16; K1_HIST = K1_INV + CHP * 2; K1_START = K1_HIST + 1024
K1_LDS = K1_HIST + 2560
def k1():
    nt = "nt" if K1NT else ""
    SRC, DST, YY, EF, WS, AUX = 4, 8, 12, 16, 20, 24
    sW, sCH, sO4, sO8, sO8b, sT = 28, 29, 30, 31, 32, 33
    mB, mE = 52, 54
    vT4, vT8, vT16, vL = 1, 2, 3, 4
    vDA, vDB, vSA, vSB = 5, 6, 7, 44
    vA, vB = 8, 12
    vRA, vRB, vONE, vP, vPO = 16, 17, 18, 19, 45
    vC, vST = 20, 24
    e(""".globl bin_kernel
.p2align 8
.type bin_kernel,@function
bin_kernel:""")
    e("s_cmp_ge_u32 s2, 256\ns_cbranch_scc1 L_k1_end")
    stamp(0)
    e("""s_load_dwordx8 s[36:43], s[0:1], 8
s_load_dwordx4 s[44:47], s[0:1], 40
s_load_dwordx2 s[48:49], s[0:1], 56
s_load_dwordx2 s[50:51], s[0:1], 80""")
    e(f"""v_lshrrev_b32 v{vL}, 6, v0
v_lshlrev_b32 v{vT4}, 2, v0
v_readfirstlane_b32 s{sW}, v{vL}
v_lshlrev_b32 v{vT8}, 3, v0
v_lshlrev_b32 v{vT16}, 4, v0
v_and_b32 v{vL}, 63, v0
v_mov_b32 v{vONE}, 0
ds_write_b32 v{vT4}, v{vONE} offset:{K1_HIST}
v_mov_b32 v{vONE}, 1
s_and_b32 s{sCH}, s2, 7
s_lshl_b32 s{sCH}, s{sCH}, 5
s_lshr_b32 s{sT}, s2, 3
s_or_b32 s{sCH}, s{sCH}, s{sT}
s_mul_i32 s{sO4}, s{sCH}, {CH*4}
s_mul_i32 s{sO8}, s{sCH}, {CH*8}
s_add_u32 s{sO8b}, s{sO8}, {640*8}
s_movk_i32 s{sT}, {CH-640}
v_cmp_gt_u32 s[{mB}:{mB+1}], s{sT}, v0
s_movk_i32 s{sT}, {2*CH-3*640}
v_cmp_gt_u32 s[{mE}:{mE+1}], s{sT}, v0
s_waitcnt lgkmcnt(0)""")
    srd(DST, 38, E * 4)
    e(f"""buffer_load_dword v{vDA}, v{vT4}, s[{DST}:{DST+3}], s{sO4} offen {nt}
buffer_load_dword v{vDB}, v{vT4}, s[{DST}:{DST+3}], s{sO4} offen offset:{640*4} {nt}""")
    srd(SRC, 36, E * 4)
    e(f"""buffer_load_dword v{vSA}, v{vT4}, s[{SRC}:{SRC+3}], s{sO4} offen {nt}
buffer_load_dword v{vSB}, v{vT4}, s[{SRC}:{SRC+3}], s{sO4} offen offset:{640*4} {nt}""")
    srd(YY, 40, E * 8)
    e(f"""buffer_load_dwordx2 {vr(vA,2)}, v{vT8}, s[{YY}:{YY+3}], s{sO8} offen {nt}
buffer_load_dwordx2 {vr(vB,2)}, v{vT8}, s[{YY}:{YY+3}], s{sO8b} offen {nt}""")
    srd(EF, 42, E * 32)
    srd(WS, 50, WS_SIZE)
    e(f"""s_lshl_b32 s{sT}, s2, 6
v_or_b32 v{vPO}, s{sT}, v{vL}
s_cmp_eq_u32 s{sW}, 0
s_cbranch_scc0 L_k1_r1""")
    srd(AUX, 48, C * C * 2)
    e(f"""v_and_b32 v20, 7, v{vPO}
v_bfe_u32 v21, v{vPO}, 7, 2
v_lshl_add_u32 v20, v21, 3, v20
v_bfe_u32 v21, v{vPO}, 9, 2
v_lshl_add_u32 v20, v21, 5, v20
v_bfe_u32 v21, v{vPO}, 11, 1
v_bfe_u32 v22, v{vPO}, 3, 4
v_lshl_add_u32 v21, v22, 1, v21
v_lshrrev_b32 v22, 12, v{vPO}
v_lshl_add_u32 v21, v22, 5, v21
v_lshlrev_b32 v21, 1, v21
v_lshl_add_u32 v20, v20, 8, v21
buffer_load_ushort v{vP}, v20, s[{AUX}:{AUX+3}], 0 offen
s_branch L_k1_rdone
L_k1_r1:
s_cmp_eq_u32 s{sW}, 1
s_cbranch_scc0 L_k1_r2
s_cmp_lt_u32 s2, 32
s_cbranch_scc0 L_k1_rdone""")
    srd(AUX, 44, 16 * C * 2)
    e(f"""v_and_b32 v20, 7, v{vPO}
v_bfe_u32 v21, v{vPO}, 8, 1
v_lshl_add_u32 v20, v21, 3, v20
v_bfe_u32 v21, v{vPO}, 9, 1
v_bfe_u32 v22, v{vPO}, 3, 5
v_lshl_add_u32 v21, v22, 1, v21
v_lshrrev_b32 v22, 10, v{vPO}
v_lshl_add_u32 v21, v22, 6, v21
v_lshlrev_b32 v21, 1, v21
v_lshl_add_u32 v20, v20, 8, v21
buffer_load_ushort v{vP}, v20, s[{AUX}:{AUX+3}], 0 offen
s_branch L_k1_rdone
L_k1_r2:
s_cmp_eq_u32 s{sW}, 2
s_cbranch_scc0 L_k1_rdone
s_cmp_eq_u32 s2, 0
s_cbranch_scc0 L_k1_rdone""")
    srd(AUX, 46, 128)
    e(f"""v_and_b32 v20, 0x30, v{vL}
v_and_b32 v21, 3, v{vL}
v_lshl_add_u32 v20, v21, 2, v20
v_bfe_u32 v21, v{vL}, 2, 2
v_add_lshl_u32 v20, v20, v21, 1
buffer_load_ushort v{vP}, v20, s[{AUX}:{AUX+3}], 0 offen
L_k1_rdone:""")
    e(f"s_mul_i32 s34, s{sCH}, {CH*32}\ns_lshl_b32 s35, s{sW}, 10\ns_barrier")
    for k in range(4):
        if k == 3: e(f"s_mov_b64 exec, s[{mE}:{mE+1}]")
        e(f"s_add_u32 m0, s35, {K1_EF + k*10240}")
        if k: e(f"s_add_u32 s34, s34, 10240")
        else: e("s_nop 0")
        e(f"buffer_load_dwordx4 v{vT16}, s[{EF}:{EF+3}], s34 offen {nt} lds")
    e("s_mov_b64 exec, -1")
    e(f"""s_waitcnt vmcnt(8)
v_and_b32 v20, 255, v{vDA}
v_and_b32 v21, 255, v{vDB}
v_lshlrev_b32 v28, 2, v20
v_lshlrev_b32 v29, 2, v21
ds_add_rtn_u32 v{vRA}, v28, v{vONE} offset:{K1_HIST}
s_mov_b64 exec, s[{mB}:{mB+1}]
ds_add_rtn_u32 v{vRB}, v29, v{vONE} offset:{K1_HIST}
s_mov_b64 exec, -1
s_movk_i32 s{sT}, {RMUL}
s_waitcnt vmcnt(6)""")
    stamp(1)
    for (d, s, r) in ((vDA, vSA, vA), (vDB, vSB, vB)):
        e(f"""v_lshrrev_b32 v21, 8, v{d}
v_lshlrev_b32 v20, 2, v21
v_lshl_or_b32 v{r+2}, v{s}, 10, v20
v_mul_u32_u24 v20, s{sT}, v{s}
v_lshrrev_b32 v20, {RSH}, v20
v_mad_u32_u24 v20, v21, {R}, v20
v_lshlrev_b32 v{r+3}, 2, v20""")
    e(f"""v_lshlrev_b32 v30, 4, v{vL}
s_waitcnt lgkmcnt(0)
s_barrier
ds_read_b128 {vr(vC,4)}, v30 offset:{K1_HIST}
s_waitcnt lgkmcnt(0)
v_add_u32 v{vST+2}, v{vC}, v{vC+1}
v_add_u32 v{vST+3}, v{vST+2}, v{vC+2}
v_add_u32 v31, v{vST+3}, v{vC+3}
v_mov_b32 v32, v31""")
    scan(32)
    e(f"""v_sub_u32 v{vST}, v32, v31
v_add_u32 v{vST+1}, v{vST}, v{vC}
v_add_u32 v{vST+2}, v{vST}, v{vST+2}
v_add_u32 v{vST+3}, v{vST}, v{vST+3}
ds_write_b128 v30, {vr(vST,4)} offset:{K1_START}
ds_read_b32 v33, v28 offset:{K1_START}
ds_read_b32 v34, v29 offset:{K1_START}
v_lshlrev_b32 v35, 5, v0
v_add_u32 v36, {640*32}, v35
s_waitcnt lgkmcnt(0)
v_add_lshl_u32 v33, v33, v{vRA}, 1
v_add_lshl_u32 v34, v34, v{vRB}, 1
ds_write_b16 v33, v35 offset:{K1_INV}
v_lshlrev_b32 v33, 3, v33
s_waitcnt vmcnt(4)
ds_write_b128 v33, {vr(vA,4)} offset:{K1_YM}
s_mov_b64 exec, s[{mB}:{mB+1}]
ds_write_b16 v34, v36 offset:{K1_INV}
v_lshlrev_b32 v34, 3, v34
ds_write_b128 v34, {vr(vB,4)} offset:{K1_YM}
s_mov_b64 exec, -1""")
    e(f"""s_cmp_eq_u32 s{sW}, 3
s_cbranch_scc0 L_k1_s0
s_lshl_b32 s{sT}, s{sCH}, 2
s_add_u32 s{sT}, s{sT}, {WS_TBL}
v_lshlrev_b32 v37, 12, v{vL}""")
    for k in range(4):
        e(f"v_lshl_or_b32 v{40+k}, v{vC+k}, 16, v{vST+k}\nbuffer_store_dword v{40+k}, v37, s[{WS}:{WS+3}], s{sT} offen offset:{1024*k}")
    e(f"""s_branch L_k1_sdone
L_k1_s0:
v_lshlrev_b32 v37, 1, v{vPO}
s_cmp_eq_u32 s{sW}, 0
s_cbranch_scc0 L_k1_s1
s_mov_b32 s{sT}, {WS_WMIX}
buffer_store_short v{vP}, v37, s[{WS}:{WS+3}], s{sT} offen
s_branch L_k1_sdone
L_k1_s1:
s_cmp_eq_u32 s{sW}, 1
s_cbranch_scc0 L_k1_s2
s_cmp_lt_u32 s2, 32
s_cbranch_scc0 L_k1_sdone
v_lshlrev_b32 v38, 16, v{vP}
v_mul_f32 v38, {f32(-LOG2E)}, v38
v_cvt_pk_bf16_f32 v39, v38, v38
v_lshlrev_b32 v40, 16, v39
v_sub_f32 v38, v38, v40
v_cvt_pk_bf16_f32 v40, v38, v38
s_mov_b32 s{sT}, {WS_WB}
buffer_store_short v39, v37, s[{WS}:{WS+3}], s{sT} offen
s_mov_b32 s{sT}, {WS_WB+4096}
buffer_store_short v40, v37, s[{WS}:{WS+3}], s{sT} offen
s_branch L_k1_sdone
L_k1_s2:
s_cmp_eq_u32 s{sW}, 2
s_cbranch_scc0 L_k1_sdone
s_cmp_eq_u32 s2, 0
s_cbranch_scc0 L_k1_sdone
s_mov_b32 s{sT}, {WS_CG}
buffer_store_short v{vP}, v37, s[{WS}:{WS+3}], s{sT} offen
L_k1_sdone:""")
    e(f"""v_and_b32 v33, 0x3fe, v0
v_and_b32 v34, 1, v0
v_lshlrev_b32 v34, 4, v34
s_mul_i32 s34, s{sCH}, {CHP*16}
s_add_u32 s34, s34, {WS_YM}
s_add_u32 s35, s34, 10240
s_waitcnt lgkmcnt(0)
s_barrier""")
    stamp(2)
    e(f"""ds_read_b128 v[8:11], v{vT16} offset:{K1_YM}
ds_read_b128 v[12:15], v{vT16} offset:{K1_YM+10240}""")
    for k in range(4):
        e(f"ds_read_u16 v{36+k}, v33 offset:{K1_INV + 640*k}")
    if STAMP: e("s_waitcnt lgkmcnt(0)")
    e(f"""s_waitcnt lgkmcnt(5)
buffer_store_dwordx4 v[8:11], v{vT16}, s[{WS}:{WS+3}], s34 offen {K1ST}
s_waitcnt lgkmcnt(4)
s_mov_b64 exec, s[{mB}:{mB+1}]
buffer_store_dwordx4 v[12:15], v{vT16}, s[{WS}:{WS+3}], s35 offen {K1ST}
s_mov_b64 exec, -1
s_waitcnt lgkmcnt(0)""")
    for k in range(4): e(f"v_or_b32 v{36+k}, v{36+k}, v34")
    e(f"s_mul_i32 s34, s{sCH}, {CHP*32}\ns_waitcnt vmcnt(2)\ns_barrier")
    stamp(3)
    for k in range(4):
        if k == 3: e(f"s_mov_b64 exec, s[{mE}:{mE+1}]")
        e(f"ds_read_b128 v[{16+4*k}:{19+4*k}], v{36+k} offset:{K1_EF}")
    e("s_mov_b64 exec, -1")
    if STAMP: e("s_waitcnt lgkmcnt(0)")
    for k in range(4):
        if k == 3: e(f"s_mov_b64 exec, s[{mE}:{mE+1}]")
        e(f"s_waitcnt lgkmcnt({3-k})\nbuffer_store_dwordx4 v[{16+4*k}:{19+4*k}], v{vT16}, s[{WS}:{WS+3}], s34 offen {K1ST}")
        if k < 3: e("s_add_u32 s34, s34, 10240")
    if STAMP:
        e("s_waitcnt vmcnt(0)"); stamp(4)
        e(f"s_mul_i32 s34, s2, 10\ns_add_u32 s34, s34, s{sW}")
        stamp_out(5, WS, 34, 40)
    e("L_k1_end:\ns_endpgm")

CAPW = 256
L_HIST = 0; L_DEG = 2048; L_NR = 2304; L_ENTRY = 4096; L_TBL = 4608
L_LIST = 8192; L_EF = L_LIST + 8 * CAPW * 4; L_ST = L_EF + 8 * CAPW * 32; L_WM = L_ST + 8 * CAPW * 16 + 2048
M_LDS = L_WM + 32768
assert 40 * R * 4 <= 2048 and 5 * R <= 64
TROW = 272
ACC = 8; X = 48; T0 = X + 4 * D; T0 = (T0 + 15) // 16 * 16
T = [T0, T0 + 32]; TP = T0 + 64; TMP = TP + (32 if SCHED == 2 else 16); AE = TMP + (8 if SCHED == 2 else 4); EFA = AE + 8; WB = EFA + 8
CG = WB + (32 if HILO else 16); ENT = CG + 8; META = ENT + 4; EFAD = META + 1
vEntA = EFAD + 1; vEfA = vEntA + 1; vL16 = vEfA + 1; vH16 = vL16 + 1; vQ = vH16 + 1
vPS = vQ + 1; vPE = vPS + 1; vDL = vPE + 1; vPOS = vDL + 1; NV = vPOS + 1
assert NV <= 256, NV
RING = 64
KNAME = "standalone__tensor_product_equiv_tfn__graph_kernel"
SPIN = 200000
if FUSED:
    assert not HILO
    if PAYSC: PAYNT = "sc1"
DUMMY = (N * 1024) | 40
MAP39 = [0, 5, 6, 3, 0, 7, 2, 4, 1, 0, 2, 7, 1, 0, 6, 3, 5, 4, 1, 7, 4, 6, 3, 2, 5, 4, 5, 7, 2, 1, 3, 6, 4, 1, 3, 2, 6, 7, 5, 0]
MAP40 = [7, 0, 5, 2, 4, 3, 1, 6, 4, 1, 6, 3, 7, 2, 0, 5, 5, 6, 3, 0, 7, 1, 2, 4, 2, 5, 3, 1, 4, 6, 0, 7, 6, 1, 4, 3, 2, 0, 5, 7]
def posmap(m):
    c = [0] * 8; o = []
    for w in m: o.append(c[w] * 8 + w); c[w] += 1
    assert sorted(o) == list(range(40))
    return o
def scan2(v1, v2):
    ms = ("row_shr:1 row_mask:0xf", "row_shr:2 row_mask:0xf", "row_shr:4 row_mask:0xf", "row_shr:8 row_mask:0xf",
          "row_bcast:15 row_mask:0xa", "row_bcast:31 row_mask:0xc")
    e("s_nop 0")
    for m in ms:
        e(f"s_nop 0\nv_add_u32_dpp v{v1}, v{v1}, v{v1} {m} bank_mask:0xf\nv_add_u32_dpp v{v2}, v{v2}, v{v2} {m} bank_mask:0xf")
def main():
    XS, WS, OS = 4, 8, 12
    sW, sKB, sN, sCW, sW0, sNR, sT, sT2, sNT, sS0, sRem = 16, 17, 18, 19, 24, 25, 26, 27, 28, 29, 30
    mU0, mU1 = 20, 22
    mV = 36
    sMASK, sDUM, sEFM = 31, 32, 33
    sOFF = 80
    vL = 1
    tY = T0
    tI = T0 + 16
    tR = T0 + 28
    vMAP, vNODE, vR4, vS = T0 + 32, T0 + 33, T0 + 34, T0 + 35
    def common_init():
        e(f"""s_mov_b32 s{mU0}, 0x0f0f0f0f
s_mov_b32 s{mU0+1}, 0x0f0f0f0f
s_mov_b32 s{mU1}, 0xf0f0f0f0
s_mov_b32 s{mU1+1}, 0xf0f0f0f0
s_mov_b32 s{sMASK}, 0xfffffc00
s_mov_b32 s{sDUM}, {hex(DUMMY)}
s_mov_b32 s{sEFM}, 0xffe0
s_mov_b32 s{sW0}, 0
s_mov_b32 s{sNR}, 0""")
        for i in range(40): e(f"v_mov_b32 v{ACC+i}, 0")
        for i in range(8): e(f"v_mov_b32 v{EFA+i}, 0")
        e(f"v_mov_b32 v{vMAP}, 0\nv_mov_b32 v{vPOS}, 0\ns_cmp_lt_u32 s{sKB}, {N - 39*256}\ns_cbranch_scc1 L_map40")
        for r, p in enumerate(posmap(MAP39)): e(f"v_writelane_b32 v{vMAP}, {p}, {r}")
        e("s_branch L_mapd\nL_map40:")
        for r, p in enumerate(posmap(MAP40)): e(f"v_writelane_b32 v{vMAP}, {p}, {r}")
        e("L_mapd:")
        e(f"""v_and_b32 v2, 3, v{vL}
v_lshrrev_b32 v3, 2, v{vL}
v_lshl_add_u32 v{vQ}, v2, 4, v3
v_lshrrev_b32 v2, 5, v{vL}
v_lshlrev_b32 v{vH16}, 4, v2""")
    def fused_head():
        A_YM = L_EF; A_EF = L_EF + CHP * 16; A_INV = L_LIST; A_START = L_LIST + 2560; A_HIST = 3072; A_CG = 6656
        nt = "nt" if K1NT else ""
        SA, SB, SC, SD = 64, 68, 72, 76
        m2, mE = 60, 62
        aD, aS = TP, TP + 3
        aR = TP + 8
        aK, aB = TP + 20, TP + 23
        aC, aST = TP + 28, X
        aE = X + 12
        vE4, vE8, vE16, vP16 = X + 5, X + 6, X + 7, X + 8
        e(f""".globl {KNAME}
.p2align 8
.type {KNAME},@function
{KNAME}:""")
        e("s_cmp_ge_u32 s2, 256\ns_cbranch_scc1 L_m_end")
        stamp(0)
        e(f"""s_load_dwordx16 s[36:51], s[0:1], 0
s_load_dwordx4 s[52:55], s[0:1], 64
s_load_dwordx2 s[56:57], s[0:1], 80
v_lshrrev_b32 v2, 6, v0
v_and_b32 v{vL}, 63, v0
v_readfirstlane_b32 s{sW}, v2
s_and_b32 s{sKB}, s2, 7
s_lshl_b32 s{sKB}, s{sKB}, 5
s_lshr_b32 s{sT}, s2, 3
s_or_b32 s{sKB}, s{sKB}, s{sT}
v_lshlrev_b32 v7, 3, v0
v_mov_b32 v2, 0
v_mov_b32 v3, 0
v_mov_b32 v4, 0
v_mov_b32 v5, 0
ds_write_b64 v7, v[2:3]
v_lshlrev_b32 v{vL16}, 4, v{vL}
s_mul_i32 s{sT}, s{sW}, 160
v_add_u32 v6, s{sT}, v{vL}
v_lshlrev_b32 v{vE4}, 2, v6
v_lshlrev_b32 v{vE8}, 3, v6
v_lshlrev_b32 v{vE16}, 4, v6
s_mul_i32 s{sT}, s{sW}, {320*16}
v_add_u32 v{vP16}, s{sT}, v{vL16}
s_cmp_lt_u32 s{sW}, 7
s_cselect_b32 s{m2}, -1, 3
s_mov_b32 s{m2+1}, 0
s_cselect_b64 s[{mE}:{mE+1}], -1, 15
s_mul_i32 s58, s{sKB}, {CH*4}
s_mul_i32 s59, s{sKB}, {CH*8}
s_lshl_b32 s{sS0}, s{sKB}, 10
s_add_u32 s{sS0}, s{sS0}, {WS_TBL}
s_waitcnt lgkmcnt(0)""")
        srd(WS, 56, WS_SIZE)
        srd(SA, 40, E * 4)
        def ld3(op, d, n, va, S, so, step):
            for k in range(3):
                if k == 2: e(f"s_mov_b64 exec, s[{m2}:{m2+1}]")
                e(f"{op} {vr(d[k], n)}, v{va}, s[{S}:{S+3}], s{so} offen offset:{step*k} {nt}")
            e("s_mov_b64 exec, -1")
        ld3("buffer_load_dword", [aD, aD+1, aD+2], 1, vE4, SA, 58, 256)
        srd(SB, 38, E * 4)
        ld3("buffer_load_dword", [aS, aS+1, aS+2], 1, vE4, SB, 58, 256)
        srd(SC, 42, E * 8)
        ld3("buffer_load_dwordx2", [aR, aR+4, aR+8], 2, vE8, SC, 59, 512)
        e(f"""s_lshl_b32 s59, s2, 13
s_add_u32 s59, s59, {WS_TBL}
s_cmp_lt_u32 s2, 32
s_cselect_b32 s59, s59, 0x40000000
v_lshl_add_u32 v7, v0, 4, s59
buffer_store_dwordx4 v[2:5], v7, s[{WS}:{WS+3}], 0 offen sc1""")
        srd(SD, 44, E * 32)
        e(f"s_mul_i32 s58, s{sKB}, {CH*32}\ns_add_u32 m0, s{sT}, {A_EF}\ns_barrier")
        for k in range(4): e(f"buffer_load_dwordx4 v{vP16}, s[{SD}:{SD+3}], s58 offen offset:{1024*k} {nt} lds")
        e(f"""s_add_u32 m0, s{sT}, {A_EF + 4096}
s_add_u32 s58, s58, 4096
s_mov_b64 exec, s[{mE}:{mE+1}]
buffer_load_dwordx4 v{vP16}, s[{SD}:{SD+3}], s58 offen {nt} lds
s_mov_b64 exec, -1
v_mov_b32 v6, 1""")
        srd(SA, 54, 256)
        stamp(1, 2)
        e("s_waitcnt vmcnt(12)")
        stamp(2, 2)
        for k in range(3):
            if k == 2: e(f"s_mov_b64 exec, s[{m2}:{m2+1}]")
            e(f"v_and_b32 v2, 255, v{aD+k}\nv_lshlrev_b32 v{aB+k}, 2, v2\nds_add_rtn_u32 v{aK+k}, v{aB+k}, v6 offset:{A_HIST}")
        e(f"""s_mov_b64 exec, -1
s_movk_i32 s{sT2}, {RMUL}
s_waitcnt vmcnt(9)""")
        for k in range(3):
            r = aR + 4 * k
            e(f"""v_lshrrev_b32 v3, 8, v{aD+k}
v_lshlrev_b32 v2, 2, v3
v_lshl_or_b32 v{r+2}, v{aS+k}, 10, v2
v_mul_u32_u24 v2, s{sT2}, v{aS+k}
v_lshrrev_b32 v2, {RSH}, v2
v_mad_u32_u24 v2, v3, {R}, v2
v_lshlrev_b32 v{r+3}, 2, v2""")
        e(f"""s_waitcnt lgkmcnt(0)
s_barrier
ds_read_b128 {vr(aC,4)}, v{vL16} offset:{A_HIST}
s_waitcnt lgkmcnt(0)
v_add_u32 v{aST+2}, v{aC}, v{aC+1}
v_add_u32 v{aST+3}, v{aST+2}, v{aC+2}
v_add_u32 v2, v{aST+3}, v{aC+3}
v_mov_b32 v3, v2""")
        scan(3)
        e(f"""v_sub_u32 v{aST}, v3, v2
v_add_u32 v{aST+1}, v{aST}, v{aC}
v_add_u32 v{aST+2}, v{aST}, v{aST+2}
v_add_u32 v{aST+3}, v{aST}, v{aST+3}
ds_write_b128 v{vL16}, {vr(aST,4)} offset:{A_START}""")
        for k in range(3):
            if k == 2: e(f"s_mov_b64 exec, s[{m2}:{m2+1}]")
            e(f"ds_read_b32 v{aB+k}, v{aB+k} offset:{A_START}")
        e(f"""s_mov_b64 exec, -1
v_lshlrev_b32 v4, 1, v{vE16}
s_brev_b32 s59, 1""")
        for k in range(4): e(f"v_lshl_or_b32 v{aE+k}, v{aC+k}, 16, v{aST+k}\nv_or_b32 v{aE+k}, s59, v{aE+k}")
        e("s_waitcnt vmcnt(6) lgkmcnt(0)")
        for k in range(3):
            if k == 2: e(f"s_mov_b64 exec, s[{m2}:{m2+1}]")
            e(f"""v_add_lshl_u32 v2, v{aB+k}, v{aK+k}, 1
v_add_u32 v3, {2048*k}, v4
ds_write_b16 v2, v3 offset:{A_INV}
v_lshlrev_b32 v2, 3, v2
ds_write_b128 v2, {vr(aR+4*k,4)} offset:{A_YM}""")
        e(f"""s_mov_b64 exec, -1
v_lshrrev_b32 v2, 4, v{vP16}
v_and_b32 v2, 0xffe, v2
v_and_b32 v3, 1, v{vL}
v_lshlrev_b32 v3, 4, v3
s_mul_i32 s58, s{sKB}, {CHP*16}
s_add_u32 s58, s58, {WS_YM}
s_waitcnt lgkmcnt(0)
s_barrier""")
        stamp(1); stamp(3, 2)
        aI = TP + 20
        for k in range(3): e(f"ds_read_b128 {vr(aR+4*k,4)}, v{vE16} offset:{A_YM + 1024*k}")
        for k in range(5): e(f"ds_read_u16 v{aI+k}, v2 offset:{A_INV + 64*k}")
        if STAMP: e("s_waitcnt lgkmcnt(0)")
        for k in range(3):
            if k == 2: e(f"s_mov_b64 exec, s[{m2}:{m2+1}]")
            e(f"s_waitcnt lgkmcnt({7-k})\nbuffer_store_dwordx4 {vr(aR+4*k,4)}, v{vE16}, s[{WS}:{WS+3}], s58 offen offset:{1024*k} sc1")
        e("s_mov_b64 exec, -1\ns_waitcnt lgkmcnt(0)")
        for k in range(5): e(f"v_or_b32 v{aI+k}, v{aI+k}, v3")
        e(f"""s_mul_i32 s58, s{sKB}, {CHP*32}
s_add_u32 s59, s58, 4096
s_waitcnt vmcnt(3)
s_barrier""")
        stamp(4, 2)
        e(f"""s_cmp_lt_u32 s2, 32
s_cbranch_scc0 L_noarr
s_cmp_eq_u32 s{sW}, 7
s_cbranch_scc0 L_noarr
s_lshl_b32 s{sT2}, s2, 3
v_mov_b32 v2, s{sT2}
s_mov_b64 exec, 1
buffer_store_dword v6, v2, s[{SA}:{SA+3}], 0 offen sc1
s_mov_b64 exec, -1
L_noarr:""")
        aF = T0
        for k in range(5):
            if k == 4: e(f"s_mov_b64 exec, s[{mE}:{mE+1}]")
            e(f"ds_read_b128 {vr(aF+4*k,4)}, v{aI+k} offset:{A_EF}")
        e("s_mov_b64 exec, -1")
        for k in range(5):
            if k == 4: e(f"s_mov_b64 exec, s[{mE}:{mE+1}]")
            e(f"s_waitcnt lgkmcnt({4-k})\nbuffer_store_dwordx4 {vr(aF+4*k,4)}, v{vP16}, s[{WS}:{WS+3}], s{58 + k//4} offen offset:{1024*(k%4)} sc1")
        e("s_mov_b64 exec, -1")
        stamp(5, 2)
        wR = TP
        wM = TP + 16
        wC = X + 9
        srd(SB, 46, 16 * C * 2); srd(SC, 50, C * C * 2); srd(SD, 48, 128)
        e(f"""v_lshrrev_b32 v2, 5, v{vL}
v_and_b32 v3, 31, v{vL}
v_lshlrev_b32 v4, 11, v2
v_lshl_add_u32 v4, v3, 2, v4""")
        for u in range(2):
            for m in range(8): e(f"buffer_load_dword v{wR+8*u+m}, v4, s[{SB}:{SB+3}], 0 offen offset:{256*m + 128*u}")
        e(f"""v_lshrrev_b32 v2, 5, v0
v_lshlrev_b32 v4, 11, v2
v_lshl_add_u32 v4, v3, 3, v4""")
        for m in range(8): e(f"buffer_load_dwordx2 {vr(wM+2*m,2)}, v4, s[{SC}:{SC+3}], 0 offen offset:{256*m}")
        e(f"v_lshlrev_b32 v4, 1, v{vL}\nbuffer_load_ushort v{wC}, v4, s[{SD}:{SD+3}], 0 offen")
        nW = 25
        srd(XS, 36, N * 1024)
        srd(OS, 52, N * 1024)
        if XPF:
            e(f"""s_lshr_b32 s58, s2, 3
s_mul_i32 s58, s58, {XPF*512*128}
v_lshlrev_b32 v4, 7, v0""")
            for k in range(XPF):
                e(f"buffer_load_dword v{X+10}, v4, s[{XS}:{XS+3}], s58 offen")
                if k < XPF - 1: e("s_add_u32 s58, s58, 65536")
            nW += XPF
        common_init()
        e(f"""v_lshrrev_b32 v4, 1, v0
s_lshl_b32 s58, s{sKB}, 2
s_add_u32 s58, s58, {WS_TBL}
v_lshl_add_u32 v5, v4, 10, s58
s_mov_b32 s{sRem}, {SPIN}
s_cmp_eq_u32 s{sW}, 7
s_cbranch_scc0 L_arrs
v_and_b32 v7, 31, v{vL}
v_lshlrev_b32 v7, 3, v7
L_arr:
buffer_load_dword v6, v7, s[{SA}:{SA+3}], 0 offen sc1
s_waitcnt vmcnt(0)
v_cmp_eq_u32 vcc, 1, v6
s_cmp_eq_u64 vcc, -1
s_cbranch_scc1 L_arrs
s_sub_u32 s{sRem}, s{sRem}, 1
s_cbranch_scc0 L_arr
s_endpgm
L_arrs:
s_waitcnt vmcnt({nW})""")
        stamp(6, 2)
        e("s_barrier")
        stamp(2)
        e(f"""s_cmp_eq_u32 s{sW}, 7
s_cbranch_scc0 L_notb
buffer_store_dwordx4 {vr(aE,4)}, v{vL16}, s[{WS}:{WS+3}], s{sS0} offen sc1
s_branch L_notb2
L_notb:
s_waitcnt vmcnt(0)
L_notb2:""")
        e(f"""v_and_b32 v2, 0x30, v{vL}
v_and_b32 v3, 3, v{vL}
v_lshl_add_u32 v2, v3, 2, v2
v_bfe_u32 v7, v{vL}, 2, 2
v_add_lshl_u32 v2, v2, v7, 1
ds_write_b16 v2, v{wC} offset:{A_CG}
v_lshlrev_b32 v3, 3, v3""")
        for k in range(4): e(f"ds_read_b64 {vr(CG+2*k,2)}, v3 offset:{A_CG + 32*k}")
        fM = T0
        e("s_mov_b32 s58, 0x05040100\ns_mov_b32 s59, 0x07060302")
        for q in range(4):
            for mp in range(4):
                e(f"v_perm_b32 v{fM+4*q+mp}, v{wM+2*(2*mp+1)+q//2}, v{wM+2*(2*mp)+q//2}, s{58 + q%2}")
        e(f"""v_bfe_u32 v2, v0, 3, 2
v_lshlrev_b32 v2, 13, v2
v_lshrrev_b32 v3, 5, v0
v_lshl_add_u32 v2, v3, 8, v2
v_and_b32 v3, 7, v0
v_lshl_add_u32 v2, v3, 5, v2
v_add_u32 v2, {L_WM}, v2""")
        for q in range(4): e(f"ds_write_b128 v2, {vr(fM+4*q,4)} offset:{4096*(q%2) + 16*(q//2)}")
        e(f"s_mov_b32 s58, {f32(-LOG2E)}\ns_mov_b32 s59, {f32(-LOG2E)}")
        t2 = T0 + 16
        for u in range(2):
            for mp in range(4):
                a0, a1 = wR + 8*u + 2*mp, wR + 8*u + 2*mp + 1
                e(f"""v_lshlrev_b32 v{t2}, 16, v{a0}
v_lshlrev_b32 v{t2+1}, 16, v{a1}
v_and_b32 v{t2+2}, 0xffff0000, v{a0}
v_and_b32 v{t2+3}, 0xffff0000, v{a1}
v_pk_mul_f32 {vr(t2,2)}, {vr(t2,2)}, s[58:59]
v_pk_mul_f32 {vr(t2+2,2)}, {vr(t2+2,2)}, s[58:59]
v_cvt_pk_bf16_f32 v{WB+4*(2*u)+mp}, v{t2}, v{t2+1}
v_cvt_pk_bf16_f32 v{WB+4*(2*u+1)+mp}, v{t2+2}, v{t2+3}""")
        e(f"""L_poll:
buffer_load_dword v6, v5, s[{WS}:{WS+3}], 0 offen sc1
s_waitcnt vmcnt(0)
v_cmpx_le_i32 vcc, 0, v6
s_cbranch_execz L_polld
s_sub_u32 s{sRem}, s{sRem}, 1
s_cbranch_scc0 L_poll
s_endpgm
L_polld:
s_mov_b64 exec, -1
v_and_b32 v3, 1, v0
v_cmp_eq_u32 vcc, 0, v3
s_movk_i32 s{sT}, {CHP}
v_and_b32 v6, 0x7fffffff, v6""")
        stamp(3); stamp(1, 3)
    def split_head():
        e(""".globl main_kernel
.p2align 8
.type main_kernel,@function
main_kernel:""")
        e("s_cmp_ge_u32 s2, 256\ns_cbranch_scc1 L_m_end")
        stamp(0)
        if CPF:
            e(f"""s_getpc_b64 s[50:51]
v_lshlrev_b32 v2, 7, v0
s_mov_b32 s52, s50
s_mov_b32 s53, s51
s_mov_b32 s54, L_m_end-main_kernel-64
s_mov_b32 s55, 0x00020000
buffer_load_dword v{TP}, v2, s[52:55], 0 offen""")
        e(f"""s_load_dwordx2 s[44:45], s[0:1], 80
s_load_dwordx2 s[46:47], s[0:1], 0
s_load_dwordx2 s[48:49], s[0:1], 64
v_lshrrev_b32 v2, 6, v0
v_and_b32 v{vL}, 63, v0
v_readfirstlane_b32 s{sW}, v2
s_and_b32 s{sKB}, s2, 7
s_lshl_b32 s{sKB}, s{sKB}, 5
s_lshr_b32 s{sT}, s2, 3
s_or_b32 s{sKB}, s{sKB}, s{sT}
v_lshrrev_b32 v4, 1, v0
v_lshlrev_b32 v5, 2, v4
s_lshl_b32 s{sT}, s{sKB}, 10
s_add_u32 s{sT}, s{sT}, {WS_TBL}
v_lshlrev_b32 v{vL16}, 4, v{vL}
s_waitcnt lgkmcnt(0)""")
        srd(WS, 44, WS_SIZE)
        e(f"buffer_load_dword v6, v5, s[{WS}:{WS+3}], s{sT} offen")
        e(f"""v_lshlrev_b32 v7, 3, v0
v_mov_b32 v2, 0
v_mov_b32 v3, 0
ds_write_b64 v7, v[2:3]
s_waitcnt lgkmcnt(0)
s_barrier""")
        e(f"s_mov_b32 s{sT}, {WS_WB}")
        nwb = 8 if HILO else 4
        for k in range(nwb):
            if k == 4: e(f"s_mov_b32 s{sT}, {WS_WB+4096}")
            e(f"buffer_load_dwordx4 {vr(WB+4*k,4)}, v{vL16}, s[{WS}:{WS+3}], s{sT} offen offset:{1024*(k%4)}")
        e(f"v_and_b32 v7, 3, v0\nv_lshlrev_b32 v7, 3, v7\ns_mov_b32 s{sT}, {WS_CG}")
        for k in range(4):
            e(f"buffer_load_dwordx2 {vr(CG+2*k,2)}, v7, s[{WS}:{WS+3}], s{sT} offen offset:{32*k}")
        nw_after = nwb + 4
        if not WMLATE:
            e(f"s_lshl_b32 s{sT}, s{sW}, 12\ns_add_u32 m0, s{sT}, {L_WM}\ns_add_u32 s{sT}, s{sT}, {WS_WMIX}")
            for k in range(4):
                e(f"buffer_load_dwordx4 v{vL16}, s[{WS}:{WS+3}], s{sT} offen offset:{1024*k} lds")
            nw_after += 4
        srd(XS, 46, N * 1024)
        srd(OS, 48, N * 1024)
        e(f"""s_mov_b32 s{mU0}, 0x0f0f0f0f
s_mov_b32 s{mU0+1}, 0x0f0f0f0f
s_mov_b32 s{mU1}, 0xf0f0f0f0
s_mov_b32 s{mU1+1}, 0xf0f0f0f0
s_mov_b32 s{sMASK}, 0xfffffc00
s_mov_b32 s{sDUM}, {hex(DUMMY)}
s_mov_b32 s{sEFM}, 0xffe0
s_mov_b32 s{sW0}, 0
s_mov_b32 s{sNR}, 0""")
        for i in range(40): e(f"v_mov_b32 v{ACC+i}, 0")
        for i in range(8): e(f"v_mov_b32 v{EFA+i}, 0")
        e(f"v_mov_b32 v{vMAP}, 0\nv_mov_b32 v{vPOS}, 0\ns_cmp_lt_u32 s{sKB}, {N - 39*256}\ns_cbranch_scc1 L_map40")
        for r, p in enumerate(posmap(MAP39)): e(f"v_writelane_b32 v{vMAP}, {p}, {r}")
        e("s_branch L_mapd\nL_map40:")
        for r, p in enumerate(posmap(MAP40)): e(f"v_writelane_b32 v{vMAP}, {p}, {r}")
        e("L_mapd:")
        e(f"""v_and_b32 v2, 3, v{vL}
v_lshrrev_b32 v3, 2, v{vL}
v_lshl_add_u32 v{vQ}, v2, 4, v3
v_lshrrev_b32 v2, 5, v{vL}
v_lshlrev_b32 v{vH16}, 4, v2
v_and_b32 v3, 1, v0
v_cmp_eq_u32 vcc, 0, v3
s_movk_i32 s{sT}, {CHP}
s_waitcnt vmcnt({nw_after})""")
        stamp(1)
    if FUSED: fused_head()
    else: split_head()
    e(f"""v_lshrrev_b32 v2, 16, v6
v_cndmask_b32 v{vPE}, 0, v2, vcc
v_and_b32 v6, 0xffff, v6
v_mad_u32_u24 v6, v4, s{sT}, v6""")
    scan(vPE)
    e(f"""v_sub_u32 v{vPS}, v{vPE}, v2
v_readlane_b32 s{sCW}, v{vPE}, 63
v_sub_u32 v{vDL}, v6, v{vPS}""")
    e("L_round:")
    e(f"""s_lshl_b32 s{sT}, s{sW}, 10
s_add_u32 s{sT}, s{sT}, {L_LIST}
v_and_b32 v2, 1, v0
v_max_u32 v3, s{sW0}, v{vPS}
v_add_u32 v3, v3, v2
s_add_u32 s{sT2}, s{sW0}, {CAPW}
v_min_u32 v4, s{sT2}, v{vPE}
v_add_u32 v5, v{vDL}, v3
s_lshl_b32 s{sT2}, s{sW0}, 2
s_sub_u32 s{sT2}, s{sT}, s{sT2}
v_lshl_add_u32 v6, v3, 2, s{sT2}
v_cmpx_lt_u32 vcc, v3, v4
s_cbranch_execz L_exp_done
L_exp:
ds_write_b32 v6, v5
v_add_u32 v3, 2, v3
v_add_u32 v5, 2, v5
v_add_u32 v6, 8, v6
v_cmpx_lt_u32 vcc, v3, v4
s_cbranch_execnz L_exp
L_exp_done:
s_mov_b64 exec, -1
v_lshl_add_u32 v3, v{vL}, 2, s{sT}
v_lshrrev_b32 v7, 1, v{vL}
v_lshl_add_u32 v4, v7, 2, s{sT}""")
    for k in (3, 2, 1, 0): e(f"ds_read_b32 v{tI+k}, v3 offset:{256*k}")
    for k in range(8): e(f"ds_read_b32 v{tI+4+k}, v4 offset:{128*k}")
    e(f"""s_sub_i32 s{sNT}, s{sCW}, s{sW0}
s_max_i32 s{sNT}, s{sNT}, 0
s_min_i32 s{sNT}, s{sNT}, {CAPW}
v_lshlrev_b32 v2, 4, v2
v_mov_b32 v5, 0x04000000""")
    for k in range(4):
        e(f"s_sub_i32 s{sT2}, s{sNT}, {64*k}\nv_cmp_gt_i32 s[{mV+2*k}:{mV+2*k+1}], s{sT2}, v{vL}")
    e(f"s_mov_b32 s{sT}, {WS_YM}")
    if STAMP: e("s_waitcnt lgkmcnt(0)")
    for i, k in enumerate((3, 2, 1, 0)):
        if k == 3: e(f"s_cmp_le_u32 s{sNT}, 192\ns_cbranch_scc1 L_sk3")
        e(f"""s_waitcnt lgkmcnt({11-i})
v_cndmask_b32 v{tI+k}, v5, v{tI+k}, s[{mV+2*k}:{mV+2*k+1}]
v_lshlrev_b32 v{tI+k}, 4, v{tI+k}
buffer_load_dwordx4 {vr(tY+4*k,4)}, v{tI+k}, s[{WS}:{WS+3}], s{sT} offen {PAYNT}""")
        if k == 3: e("L_sk3:")
    e(f"s_waitcnt lgkmcnt(0)")
    stamp(2, 3)
    if YBAR: e("s_barrier")
    def ef_dma(k):
        e(f"""s_sub_i32 s{sT2}, s{sNT}, {32*k}
v_cmp_gt_i32 vcc, s{sT2}, v7
s_lshl_b32 s{sT}, s{sW}, 13
s_add_u32 m0, s{sT}, {L_EF + 1024*k}
v_cndmask_b32 v{tI+4+k}, v5, v{tI+4+k}, vcc
v_lshl_or_b32 v{tI+4+k}, v{tI+4+k}, 5, v2
buffer_load_dwordx4 v{tI+4+k}, s[{WS}:{WS+3}], 0 offen {PAYNT} lds""")
    for k in range(EF1): ef_dma(k)
    if not FUSED: stamp(2)
    e(f"""s_add_u32 s{sT}, s{sCW}, {CAPW-1}
s_lshr_b32 s{sT}, s{sT}, 8
v_mov_b32 v3, s{sT}
v_mov_b32 v4, {L_NR}
ds_max_u32 v4, v3
s_mul_i32 s{sT}, s{sW}, 5
v_add_u32 v{vNODE}, s{sT}, v{vL}
v_subrev_u32 v3, 40, v{vNODE}
v_min_u32 v{vNODE}, v{vNODE}, v3
v_mul_u32_u24 v3, 205, v{vL}
v_lshrrev_b32 v3, 10, v3
v_lshlrev_b32 v{vR4}, 2, v3
v_mul_u32_u24 v3, 5, v3
v_sub_u32 v{vS}, v{vL}, v3
v_mov_b32 v6, 1""")
    for i, k in enumerate((3, 2, 1, 0)):
        e(f"""s_waitcnt vmcnt({EF1 + 3 - i})
s_mov_b64 exec, s[{mV+2*k}:{mV+2*k+1}]
v_and_b32 v3, 0xff, v{tY+4*k+2}
ds_add_rtn_u32 v{tR+k}, v{tY+4*k+3}, v6 offset:{L_HIST}
ds_add_u32 v3, v6 offset:{L_DEG}""")
    e(f"""s_mov_b64 exec, -1
v_lshlrev_b32 v3, 2, v{vNODE}
s_waitcnt lgkmcnt(0)
s_barrier""")
    if not FUSED: stamp(3)
    stamp(3, 3)
    e(f"ds_read_b32 v3, v3 offset:{L_DEG}\nds_read_b32 v4, v4")
    for k in range(EF1, 8):
        e(f"s_cmp_le_u32 s{sNT}, {32*k}\ns_cbranch_scc1 L_efd")
        ef_dma(k)
    e(f"""L_efd:
v_cmp_gt_u32 vcc, 40, v{vL}
s_waitcnt lgkmcnt(0)
v_readfirstlane_b32 s{sT}, v4
v_lshl_or_b32 v3, v3, 6, v{vNODE}
v_cndmask_b32 v3, 0, v3, vcc
s_max_u32 s{sNR}, s{sNR}, s{sT}
s_cmp_lg_u32 s{sW0}, 0
s_cbranch_scc1 L_havepos""")
    for j in range(5): e(f"v_readlane_b32 s{64+j}, v3, {j}")
    for j in range(5): e(f"v_cmp_lt_u32 s[{70+2*j}:{71+2*j}], s{64+j}, v3")
    for j in range(5): e(f"s_bcnt1_i32_b64 s{64+j}, s[{70+2*j}:{71+2*j}]")
    for j in range(5): e(f"v_readlane_b32 s{70+j}, v{vMAP}, s{64+j}")
    for j in range(5): e(f"v_writelane_b32 v{vPOS}, s{70+j}, {j}")
    e(f"""v_lshlrev_b32 v{vPOS}, 2, v{vPOS}
L_havepos:
s_mov_b64 exec, 31
ds_write_b32 v{vPOS}, v3 offset:{L_ENTRY}
s_mov_b64 exec, -1
s_lshl_b32 s{sT}, s{sW}, 2
v_lshl_add_u32 v3, v{vS}, 5, s{sT}
v_lshlrev_b32 v4, 2, v{vL}
v_and_b32 v6, 7, v{vL}
v_cmp_gt_u32 s[34:35], s{sW}, v6
v_cmp_gt_u32 vcc, 40, v{vL}
s_and_b64 s[34:35], s[34:35], vcc
v_cmp_gt_u32 vcc, {5*R}, v{vL}
s_waitcnt lgkmcnt(0)
s_barrier""")
    stamp(4, 3)
    c0, c1, c2 = T0 + 36, T0 + 37, T0 + 38
    e(f"""ds_read_b32 v3, v3 offset:{L_ENTRY}
ds_read_b32 v4, v4 offset:{L_ENTRY}
s_waitcnt lgkmcnt(1)
v_and_b32 v3, 63, v3
v_mad_u32_u24 v3, v3, {4*R}, v{vR4}
ds_read_b32 v{c0}, v3 offset:{L_HIST}
s_waitcnt lgkmcnt(1)
v_lshrrev_b32 v4, 6, v4
v_cndmask_b32 v{c2}, 0, v4, s[34:35]
s_waitcnt lgkmcnt(0)
v_cndmask_b32 v{c0}, 0, v{c0}, vcc
v_mov_b32 v{c1}, v{c0}""")
    scan2(c1, c2)
    e(f"""v_sub_u32 v{c0}, v{c1}, v{c0}
v_readlane_b32 s{sS0}, v{c2}, 63
v_readlane_b32 s{sN}, v{c1}, 63
s_min_u32 s{sNR}, s{sNR}, {32*CH//CAPW+1}
s_lshl_b32 s{sT}, s{sS0}, 4
s_add_u32 s{sT}, s{sT}, {L_ST}
v_lshl_add_u32 v{c0}, v{c0}, 4, s{sT}
v_lshlrev_b32 v4, 3, v{vS}
v_lshl_or_b32 v{c0}, v{c0}, 8, v4
s_mov_b64 exec, vcc
ds_write_b32 v3, v{c0} offset:{L_TBL}
s_mov_b64 exec, -1
s_min_u32 s{sN}, s{sN}, {8*CAPW}
v_lshl_add_u32 v{vEntA}, v{vQ}, 4, s{sT}
v_and_b32 v2, 3, v{vL}
v_bfe_u32 v3, v{vL}, 3, 2
v_lshl_add_u32 v2, v3, 2, v2
v_lshl_add_u32 v{vEfA}, v2, 4, s{sT}
s_lshl_b32 s{sT}, s{sW}, 13
v_lshl_add_u32 v5, v{vL}, 5, s{sT}
s_movk_i32 s{sT2}, 0xff
s_waitcnt lgkmcnt(0)
s_barrier""")
    stamp(5, 3)
    for k in range(4): e(f"s_mov_b64 exec, s[{mV+2*k}:{mV+2*k+1}]\nds_read_b32 v{tI+k}, v{tY+4*k+3} offset:{L_TBL}")
    e("s_waitcnt lgkmcnt(0)")
    for k in range(4):
        e(f"""s_mov_b64 exec, s[{mV+2*k}:{mV+2*k+1}]
v_bfi_b32 v{tY+4*k+2}, s{sT2}, v{tI+k}, v{tY+4*k+2}
v_lshrrev_b32 v{tI+k}, 8, v{tI+k}
v_add_u32 v{tY+4*k+3}, {2048*k}, v5
v_lshl_add_u32 v{tI+k}, v{tR+k}, 4, v{tI+k}
ds_write_b128 v{tI+k}, {vr(tY+4*k,4)}""")
    e(f"""s_mov_b64 exec, -1
v_cmp_gt_i32 vcc, s{sN}, v{vQ}
v_mov_b32 v4, s{sDUM}
s_waitcnt lgkmcnt(0)
s_barrier""")
    stamp(4); stamp(6, 3)
    e(f"""ds_read_b128 {vr(ENT,4)}, v{vEntA}
ds_read_b32 v{EFAD}, v{vEfA} offset:12
s_waitcnt lgkmcnt(0)
v_cndmask_b32 v{META}, v4, v{ENT+2}, vcc
v_and_or_b32 v{EFAD}, v{EFAD}, s{sEFM}, v{vH16}""")
    lane_of = lambda q: 4 * (q % 16) + (q % 64) // 16
    ring = lambda q: RING + q % 16
    RLA = DIST + (2 if SCHED == 1 else 0)
    assert RLA + (4 if SCHED == 2 else 2) <= 16
    for q in range(RLA): e(f"v_readlane_b32 s{ring(q)}, v{META}, {lane_of(q)}")
    def xload(q, so): return f"buffer_load_dwordx4 {vr(X+4*(q%D),4)}, v{vL16}, s[{XS}:{XS+3}], s{so} offen"
    for q in range(PRE):
        e(f"s_and_b32 s{sOFF+q%4}, s{ring(q)}, s{sMASK}\n{xload(q, sOFF+q%4)}")
    e(f"s_waitcnt vmcnt({PRE})\ns_barrier")
    stamp(5)
    if STAMP: e('s_memtime s[60:61]')
    def rd_efa(us):
        for u in us: e(f"s_mov_b64 exec, s[{(mU0,mU1)[u]}:{(mU0,mU1)[u]+1}]\nds_read_b128 {vr(EFA+4*u,4)}, v{EFAD} offset:{L_EF}")
        e("s_mov_b64 exec, -1")
    def rmfma(buf, j):
        if HILO: u, par, lo = j // 4, j % 2, (j // 2) % 2
        else: u, par, lo = j // 2, j % 2, 0
        d = T[buf] + 16 * par
        c = "0" if (u == 0 and lo == 0) else vr(d, 16)
        return f"v_mfma_f32_32x32x16_bf16 {vr(d,16)}, {vr(EFA+4*u,4)}, {vr(WB+16*lo+4*(2*u+par),4)}, {c}"
    NM = 8 if HILO else 4
    rd_efa((0, 1))
    e(f"s_waitcnt lgkmcnt(0)")
    e(f"ds_read_b32 v{EFAD}, v{vEfA} offset:{256+12}")
    for j in range(NM): e(rmfma(0, j))
    for q in range(PRE, DIST):
        e(f"s_and_b32 s{sOFF+q%4}, s{ring(q)}, s{sMASK}\n{xload(q, sOFF+q%4)}")
    e(f"s_waitcnt lgkmcnt(0)\nv_and_or_b32 v{EFAD}, v{EFAD}, s{sEFM}, v{vH16}")
    if HILO or SCHED == 2:
        e("s_nop 7"); rd_efa((0,)); e("s_waitcnt lgkmcnt(0)")
    if NMUL: e(f"s_mul_i32 s{sN}, s{sN}, {NMUL}\nv_mov_b32 v{vQ}, 0x7fffffff")
    if ONEW: e(f"s_cmp_ge_u32 s{sW}, 4\ns_cselect_b32 s{sN}, 0, s{sN}")
    e(f"s_mov_b32 s{sRem}, s{sN}")
    if PRIO == 1:
        e(f"s_cmp_ge_u32 s{sW}, 4\ns_cbranch_scc0 L_noprio\ns_setprio 1\nL_noprio:")
    e("L_sb:")
    for i in range(4): e(f"v_mfma_f32_4x4x4_16b_bf16 {vr(TP+4*i,4)}, {vr(ENT,2)}, {vr(CG+2*i,2)}, 0")
    e(f"v_add_u32 v{vEntA}, 1024, v{vEntA}\ns_sub_u32 s{sT}, s{sRem}, 64\nv_cmp_gt_i32 s[34:35], s{sT}, v{vQ}\ns_cmp_le_i32 s{sRem}, 0\ns_nop 0")
    for r in range(4):
        e(f"v_cvt_pk_bf16_f32 v{AE+2*r}, v{TP+r}, v{TP+4+r}\nv_cvt_pk_bf16_f32 v{AE+2*r+1}, v{TP+8+r}, v{TP+12+r}")
    e(f"ds_read_b128 {vr(ENT,4)}, v{vEntA}")
    for q in range(0, 64 if SCHED == 2 else 0, 4):
        assert not HILO
        b, p = q // 16, (q % 16) // 4
        cur = b % 2
        te, to = T[cur] + q % 16, T[cur] + 16 + q % 16
        e(f"; ---- quad q={q}")
        mf = lambda d, x, qq: f"v_mfma_f32_4x4x4_16b_bf16 {vr(d,4)}, {vr(AE+2*b,2)}, {vr(x,2)}, 0 cbsz:4 abid:{qq%16}"
        e("s_cbranch_scc1 L_exit")
        if PRIO == 2 and p == 0: e(f"s_setprio {3-b}")
        if PRIO == 3: e(f"s_setprio {3-p}")
        if PRIO == 4 and p % 2 == 0: e(f"s_setprio {3 - (q // 8) % 4}")
        if q + RLA == 64: e(f"v_cndmask_b32 v{META}, v4, v{ENT+2}, s[34:35]")
        if W2:
            e(f"s_waitcnt vmcnt({DIST-2})")
        else: e(f"s_waitcnt vmcnt({DIST-4})")
        for j in range(4):
            x = X + 4 * ((q + j) % D)
            if W2 and j == 2: e(f"s_waitcnt vmcnt({DIST-4})")
            e(f"""{mf(TP+8*j, x, q+j)}
v_exp_f32 v{TMP+j}, v{te+j}
{mf(TP+8*j+4, x+2, q+j)}
v_exp_f32 v{TMP+4+j}, v{to+j}""")
        for j in range(4): e(f"v_readlane_b32 s{ring(q+RLA+j)}, v{META}, {lane_of(q+RLA+j)}")
        if p == 2: e(f"v_and_or_b32 v{EFAD}, v2, s{sEFM}, v{vH16}")
        for j in range(4):
            e(f"s_and_b32 s{sOFF+j}, s{ring(q+DIST+j)}, s{sMASK}")
            e(f"v_pk_add_f32 {vr(TMP+2*j,2)}, {vr(TMP+2*j,2)}, 1.0 op_sel_hi:[1,0]")
            if not LDLATE: e(xload(q + DIST + j, sOFF + j))
        e(rmfma(1 - cur, p))
        for j in range(8):
            e(f"v_rcp_f32 v{TMP+j}, v{TMP+j}")
            if LDLATE and j >= 4: e(xload(q + DIST + j - 4, sOFF + j - 4))
        if q < 60: e(f"s_cmp_le_i32 s{sRem}, {q+4}")
        if p == 0: rd_efa((1,)); e(f"ds_read_b32 v2, v{vEfA} offset:{256*(b+2)+12}")
        if p == 2: rd_efa((0,))
        if p in (1, 3): e("s_waitcnt lgkmcnt(0)")
        for j in range(2): e(f"v_pk_mul_f32 {vr(TMP+2*j,2)}, {vr(TMP+2*j,2)}, {vr(te+2*j,2)}")
        for j in range(2): e(f"v_pk_mul_f32 {vr(TMP+4+2*j,2)}, {vr(TMP+4+2*j,2)}, {vr(to+2*j,2)}")
        for s in range(4):
            e(f"s_set_gpr_idx_on s{ring(q+s)}, gpr_idx(SRC2,DST)" if s == 0 else f"s_set_gpr_idx_idx s{ring(q+s)}")
            for j in range(4):
                e(f"v_pk_fma_f32 {vr(ACC+2*j,2)}, {vr(TMP+4*(j//2)+2*(s//2),2)}, {vr(TP+8*s+2*j,2)}, {vr(ACC+2*j,2)} op_sel:[{s%2},0,0] op_sel_hi:[{s%2},1,1]")
        e("s_set_gpr_idx_off")
    for q in range(0, 64 if SCHED == 1 else 0, 2):
        b, p = q // 16, (q % 16) // 2
        cur = b % 2
        te, to = T[cur] + q % 16, T[cur] + 16 + q % 16
        e(f"; ---- pair q={q}")
        xa, xb = X + 4 * (q % D), X + 4 * ((q + 1) % D)
        mf = lambda d, x, qq: f"v_mfma_f32_4x4x4_16b_bf16 {vr(d,4)}, {vr(AE+2*b,2)}, {vr(x,2)}, 0 cbsz:4 abid:{qq%16}"
        rl = lambda qq: f"v_readlane_b32 s{ring(qq)}, v{META}, {lane_of(qq)}"
        free = None; mwait = False; pre_v = []
        if not HILO:
            mm = rmfma(1 - cur, p - 2) if 2 <= p <= 5 else None
            if p == 1: free = "s_waitcnt lgkmcnt(0)"
            if p == 5: free = f"ds_read_b32 v{EFAD}, v{vEfA} offset:{256*(b+2)+12}"
            if p == 6: free = "s_waitcnt lgkmcnt(0)"
            if p == 7: pre_v.append(f"v_and_or_b32 v{EFAD}, v{EFAD}, s{sEFM}, v{vH16}")
            efa = (0, 1) if p == 0 else None
        else:
            mm = rmfma(1 - cur, p)
            efa = (1,) if p == 1 else (0,) if p == 5 else None
            if p == 2: free = f"ds_read_b32 v2, v{vEfA} offset:{256*(b+2)+12}"
            if p == 3 or p == 7: free = "s_waitcnt lgkmcnt(0)"
            if p == 5: pre_v.append(f"v_and_or_b32 v{EFAD}, v2, s{sEFM}, v{vH16}")
        if q + RLA == 64: pre_v.append(f"v_cndmask_b32 v{META}, v4, v{ENT+2}, s[34:35]")
        e(f"""v_exp_f32 v{TMP}, v{te}
s_cbranch_scc1 L_exit""")
        for x in pre_v: e(x)
        e(f"""v_exp_f32 v{TMP+1}, v{te+1}
s_waitcnt vmcnt({DIST-2})
{mf(TP, xa, q)}
v_exp_f32 v{TMP+2}, v{to}
s_and_b32 s{sOFF}, s{ring(q+DIST)}, s{sMASK}
{mf(TP+4, xa+2, q)}
v_exp_f32 v{TMP+3}, v{to+1}
s_and_b32 s{sOFF+1}, s{ring(q+DIST+1)}, s{sMASK}
{mf(TP+8, xb, q+1)}
{rl(q+RLA)}
{mf(TP+12, xb+2, q+1)}
{rl(q+RLA+1)}
v_pk_add_f32 {vr(TMP,2)}, {vr(TMP,2)}, 1.0 op_sel_hi:[1,0]
v_pk_add_f32 {vr(TMP+2,2)}, {vr(TMP+2,2)}, 1.0 op_sel_hi:[1,0]""")
        if mm: e(mm)
        e(f"""v_rcp_f32 v{TMP}, v{TMP}
{xload(q+DIST, sOFF)}
v_rcp_f32 v{TMP+1}, v{TMP+1}
{xload(q+DIST+1, sOFF+1)}
v_rcp_f32 v{TMP+2}, v{TMP+2}""")
        if q < 62: e(f"s_cmp_le_i32 s{sRem}, {q+2}")
        e(f"v_rcp_f32 v{TMP+3}, v{TMP+3}")
        if efa: rd_efa(efa)
        if free: e(free)
        e(f"""v_pk_mul_f32 {vr(TMP,2)}, {vr(TMP,2)}, {vr(te,2)}
v_pk_mul_f32 {vr(TMP+2,2)}, {vr(TMP+2,2)}, {vr(to,2)}""")
        for s in range(2):
            e(f"s_set_gpr_idx_on s{ring(q+s)}, gpr_idx(SRC2,DST)" if s == 0 else f"s_set_gpr_idx_idx s{ring(q+s)}")
            for j in range(4):
                e(f"v_pk_fma_f32 {vr(ACC+2*j,2)}, {vr(TMP+2*(j//2),2)}, {vr(TP+8*s+2*j,2)}, {vr(ACC+2*j,2)} op_sel:[{s},0,0] op_sel_hi:[{s},1,1]")
        e("s_set_gpr_idx_off")
    e(f"""v_add_u32 v{vEfA}, 1024, v{vEfA}
s_sub_u32 s{sRem}, s{sRem}, 64
s_branch L_sb
L_exit:""")
    if PRIO: e("s_setprio 0")
    stamp(6)
    if STAMP: e('s_memtime s[62:63]')
    e(f"""s_add_u32 s{sW0}, s{sW0}, {CAPW}
s_lshl_b32 s{sT}, s{sNR}, 8
s_cmp_lt_u32 s{sW0}, s{sT}
s_cbranch_scc0 L_epi
v_lshlrev_b32 v7, 3, v0
v_mov_b32 v2, 0
v_mov_b32 v3, 0
ds_write_b64 v7, v[2:3]
s_waitcnt vmcnt(0) lgkmcnt(0)
s_nop 15
s_barrier
s_branch L_round
L_epi:""")
    e(f"""s_mov_b32 s34, {f32(-LN2)}
s_mov_b32 s35, {f32(-LN2)}
s_lshl_b32 s{sT}, s{sW}, 2
v_mov_b32 v2, s{sT}
s_waitcnt lgkmcnt(0)""")
    for s in range(5): e(f"ds_read_b32 v{AE+s}, v2 offset:{L_ENTRY + 32*s}")
    for i in range(20): e(f"v_pk_mul_f32 {vr(ACC+2*i,2)}, {vr(ACC+2*i,2)}, s[34:35]")
    for s in range(5):
        for o in range(4): e(f"v_cvt_pk_bf16_f32 v{ACC+8*s+o}, v{ACC+8*s+o}, v{ACC+8*s+4+o}")
    FB = T0
    FA = T0 + 32
    FD = TP
    e(f"""s_and_b32 s{sT}, s{sW}, 3
s_lshl_b32 s{sT2}, s{sT}, 13
s_add_u32 s{sT2}, s{sT2}, {L_WM}
v_add_u32 v3, s{sT2}, v{vL16}
v_lshlrev_b32 v2, 2, v{vL}
s_movk_i32 s36, {4*TROW}
s_waitcnt lgkmcnt(0)""")
    for k in range(8): e(f"ds_read_b128 {vr(FB+4*k,4)}, v3 offset:{1024*k}")
    for s in range(5): e(f"v_and_b32 v{AE+s}, 63, v{AE+s}\nv_mad_u32_u24 v{AE+s}, v{AE+s}, s36, v2")
    e("s_barrier")
    for s in range(5):
        for o in range(4): e(f"ds_write_b32 v{AE+s}, v{ACC+8*s+o} offset:{L_EF + o*TROW}")
    e(f"""s_lshr_b32 s{sT2}, s{sW}, 2
v_and_b32 v4, 15, v{vL}
v_lshrrev_b32 v5, 4, v{vL}
s_movk_i32 s36, {TROW}
v_mul_u32_u24 v6, s36, v4
v_lshl_add_u32 v6, v5, 4, v6
s_mul_i32 s36, s{sT2}, {80*TROW}
v_add_u32 v6, s36, v6
v_lshlrev_b32 v7, 18, v5
v_lshl_add_u32 v7, v4, 4, v7
s_mul_i32 s36, s{sT2}, {20*256*1024}
s_lshl_b32 s37, s{sKB}, 10
s_add_u32 s36, s36, s37
s_lshl_b32 s37, s{sT}, 8
s_add_u32 s36, s36, s37
v_add_u32 v7, s36, v7
s_waitcnt lgkmcnt(0)
s_barrier""")
    def rdA(t):
        for ks in range(4): e(f"ds_read_b128 {vr(FA+16*(t%2)+4*ks,4)}, v6 offset:{L_EF + t*16*TROW + 64*ks}")
    def fin(t):
        d = FD + 8 * (t % 2); o = X + 4 * (t % 2)
        for j in range(4): e(f"v_cvt_pk_bf16_f32 v{o+j}, v{d+2*j}, v{d+2*j+1}")
        e(f"buffer_store_dwordx4 {vr(o,4)}, v7, s[{OS}:{OS+3}], 0 offen {OUTST}")
        if t < 4: e(f"v_add_u32 v7, {4*256*1024}, v7")
    e("s_waitcnt vmcnt(0)")
    rdA(0); rdA(1)
    for t in range(5):
        d = FD + 8 * (t % 2)
        for ks in range(4):
            e(f"s_waitcnt lgkmcnt({(7 if t < 4 else 3) - ks})")
            for par in range(2):
                e(f"v_mfma_f32_16x16x32_bf16 {vr(d+4*par,4)}, {vr(FA+16*(t%2)+4*ks,4)}, {vr(FB+16*par+4*ks,4)}, {'0' if ks == 0 else vr(d+4*par,4)}")
        if t + 2 < 5: rdA(t + 2)
        if t >= 1: fin(t - 1)
    e("s_nop 7")
    fin(4)
    if STAMP:
        e("s_waitcnt vmcnt(0)"); stamp(7)
        e(f"s_lshl_b32 s34, s2, 3\ns_add_u32 s34, s34, s{sW}\ns_add_u32 s34, s34, 4096")
        e('s_getreg_b32 s59, hwreg(HW_REG_HW_ID)'); stamp_out(8, WS, 34, 2, (60, 62, sN, 59))
    e("L_m_end:\ns_endpgm")

def desc(name, nv):
    e(f""".amdhsa_kernel {name}
.amdhsa_next_free_vgpr {nv}
.amdhsa_next_free_sgpr 100
.amdhsa_accum_offset {(nv+3)//4*4}
.amdhsa_group_segment_fixed_size 0
.amdhsa_kernarg_size 88
.amdhsa_user_sgpr_count 2
.amdhsa_user_sgpr_kernarg_segment_ptr 1
.amdhsa_system_sgpr_workgroup_id_x 1
.amdhsa_float_denorm_mode_32 3
.end_amdhsa_kernel""")

ref = open("standalone__tensor_product_equiv_tfn__graph.s.ref").read().splitlines()
for l in ref:
    if l.startswith("; Override"): break
    out.append(l)
out.append("; Generated by gen/gen.py " + " ".join(sys.argv[2:]))
if FUSED: out.append(f"; @launch grid=(256,1,1) block=(512,1,1) lds={M_LDS}")
else:
    out.append(f"; @launch kernel=bin_kernel grid=(256,1,1) block=(640,1,1) lds={K1_LDS}")
    out.append(f"; @launch kernel=main_kernel grid=(256,1,1) block=(512,1,1) lds={M_LDS}")
e('.amdgcn_target "amdgcn-amd-amdhsa--gfx950"\n.text')
if not FUSED: k1()
main()
e('.section .rodata,"a"\n.p2align 6')
if FUSED: desc(KNAME, NV)
else: desc("bin_kernel", 48); desc("main_kernel", NV)
if NOLOAD or NOVALU:
    i0 = out.index("L_sb:"); i1 = out.index("L_exit:")
    body = out[i0:i1]
    if NOLOAD: body = [l for l in body if not l.strip().startswith("buffer_load")]
    if NOVALU: body = [l for l in body if not l.strip().startswith(("v_exp", "v_rcp", "v_pk_", "v_mfma_f32_32", "s_set_gpr"))]
    out[i0:i1] = body
text = "\n".join(out) + "\n"
errs = hazard.check(text)
for x in errs: print("HAZARD", x)
open(sys.argv[1], "w").write(text)
print(f"wrote {sys.argv[1]}: NV={NV} M_LDS={M_LDS} K1_LDS={K1_LDS} hazards={len(errs)}")
```

```python
import sys, struct, math
sys.path.insert(0, "gen")
import hazard

OPT = dict(WPOS=0, REFSC='', SLOWT=0, NOFL=0, NOST=0, K1BIG=0, ILV=0, EXITA=0, PSLEEP=0, NOW=0, NOCLR=0, WAFT=1, YLATE=2, NCLR=32, ROT=1, WTOUCH=0, ABAR=1, TLBPF=0, FUSED=1, XPF=0, PAYSC=1, CPF=6, W2=0, LDLATE=1, NMUL=0, ONEW=0, WMLATE=0, YBAR=1, PRE=4, PRIO=4, NOLOAD=0, NOVALU=0, DIST=0, HILO=0, D=8, BAR=0, R=12, EF1=2, SCHED=2, K1NT=0, K1ST="sc1", PAYNT="", OUTST="sc1", STAMP=0)
for a in sys.argv[2:]:
    k, v = a.split("=")
    OPT[k] = int(v) if v.lstrip("-").isdigit() else v.replace("+", " ")
globals().update(OPT)
if not DIST: DIST = D
PRE = min(PRE, DIST)

N, E, C = 10000, 320000, 128
CH = 1250; CHP = 1280
WS_EF = 0; WS_YM = 256 * CHP * 32; WS_TBL = WS_YM + 256 * CHP * 16
WS_WMIX = WS_TBL + 256 * 256 * 4; WS_WB = WS_WMIX + 32768; WS_CG = WS_WB + 8192
WS_STAMP = 0x1000000
WS_SIZE = 0x1000000 + (0x100000 if STAMP else 0)
def f32(x): return "0x%08x" % struct.unpack("<I", struct.pack("<f", x))[0]
LOG2E = math.log2(math.e); LN2 = math.log(2.0)
RMUL, RSH = {4: (6711, 24), 8: (6711, 23), 12: (5033, 22)}[R]
assert (9999 * RMUL) >> RSH == R - 1

out = []
def e(s=""):
    for l in s.split("\n"):
        l = l.strip()
        if not l: continue
        out.append(l if l.endswith(":") or l.startswith((".", ";")) else "    " + l)
def vr(a, n): return f"v[{a}:{a+n-1}]" if n > 1 else f"v{a}"
def sr(a, n): return f"s[{a}:{a+n-1}]" if n > 1 else f"s{a}"
def srd(d, base, nbytes):
    e(f"s_mov_b32 s{d}, s{base}\ns_mov_b32 s{d+1}, s{base+1}\ns_mov_b32 s{d+2}, {nbytes}\ns_mov_b32 s{d+3}, 0x00020000")
def scan(v):
    for m in ("row_shr:1 row_mask:0xf", "row_shr:2 row_mask:0xf", "row_shr:4 row_mask:0xf", "row_shr:8 row_mask:0xf",
              "row_bcast:15 row_mask:0xa", "row_bcast:31 row_mask:0xc"):
        e(f"s_nop 1\nv_add_u32_dpp v{v}, v{v}, v{v} {m} bank_mask:0xf")
def stamp(i, set_=1):
    if STAMP == set_ or (STAMP and i in (0, 7) and set_ == 1):
        e(f"s_memrealtime s[{84+2*i}:{85+2*i}]")
        if set_ != 1: e("s_waitcnt lgkmcnt(0)")
def stamp_out(n, wsrd, slot_s, tmp, extra=()):
    if not STAMP: return
    e("s_waitcnt lgkmcnt(0)\ns_mov_b64 exec, 1")
    e(f"s_lshl_b32 s{slot_s}, s{slot_s}, 6\ns_add_u32 s{slot_s}, s{slot_s}, {WS_STAMP}\nv_mov_b32 v{tmp}, 0")
    for i in range(n):
        e(f"v_mov_b32 v{tmp+1}, s{84+2*i}\nbuffer_store_dword v{tmp+1}, v{tmp}, s[{wsrd}:{wsrd+3}], s{slot_s} offen offset:{4*i}")
    for i, r in enumerate(extra):
        e(f"v_mov_b32 v{tmp+1}, s{r}\nbuffer_store_dword v{tmp+1}, v{tmp}, s[{wsrd}:{wsrd+3}], s{slot_s} offen offset:{32+4*i}")

K1_EF = 0; K1_YM = CHP * 32; K1_INV = K1_YM + CHP * 16; K1_HIST = K1_INV + CHP * 2; K1_START = K1_HIST + 1024
K1_LDS = K1_HIST + 2560 + (80000 if K1BIG else 0)
def k1():
    nt = "nt" if K1NT else ""
    SRC, DST, YY, EF, WS, AUX = 4, 8, 12, 16, 20, 24
    sW, sCH, sO4, sO8, sO8b, sT = 28, 29, 30, 31, 32, 33
    mB, mE = 52, 54
    vT4, vT8, vT16, vL = 1, 2, 3, 4
    vDA, vDB, vSA, vSB = 5, 6, 7, 44
    vA, vB = 8, 12
    vRA, vRB, vONE, vP, vPO = 16, 17, 18, 19, 45
    vC, vST = 20, 24
    e(""".globl bin_kernel
.p2align 8
.type bin_kernel,@function
bin_kernel:""")
    e("s_cmp_ge_u32 s2, 256\ns_cbranch_scc1 L_k1_end")
    stamp(0)
    e("""s_load_dwordx8 s[36:43], s[0:1], 8
s_load_dwordx4 s[44:47], s[0:1], 40
s_load_dwordx2 s[48:49], s[0:1], 56
s_load_dwordx2 s[50:51], s[0:1], 80""")
    e(f"""v_lshrrev_b32 v{vL}, 6, v0
v_lshlrev_b32 v{vT4}, 2, v0
v_readfirstlane_b32 s{sW}, v{vL}
v_lshlrev_b32 v{vT8}, 3, v0
v_lshlrev_b32 v{vT16}, 4, v0
v_and_b32 v{vL}, 63, v0
v_mov_b32 v{vONE}, 0
ds_write_b32 v{vT4}, v{vONE} offset:{K1_HIST}
v_mov_b32 v{vONE}, 1
s_and_b32 s{sCH}, s2, 7
s_lshl_b32 s{sCH}, s{sCH}, 5
s_lshr_b32 s{sT}, s2, 3
s_or_b32 s{sCH}, s{sCH}, s{sT}
s_mul_i32 s{sO4}, s{sCH}, {CH*4}
s_mul_i32 s{sO8}, s{sCH}, {CH*8}
s_add_u32 s{sO8b}, s{sO8}, {640*8}
s_movk_i32 s{sT}, {CH-640}
v_cmp_gt_u32 s[{mB}:{mB+1}], s{sT}, v0
s_movk_i32 s{sT}, {2*CH-3*640}
v_cmp_gt_u32 s[{mE}:{mE+1}], s{sT}, v0
s_waitcnt lgkmcnt(0)""")
    srd(DST, 38, E * 4)
    e(f"""buffer_load_dword v{vDA}, v{vT4}, s[{DST}:{DST+3}], s{sO4} offen {nt}
buffer_load_dword v{vDB}, v{vT4}, s[{DST}:{DST+3}], s{sO4} offen offset:{640*4} {nt}""")
    srd(SRC, 36, E * 4)
    e(f"""buffer_load_dword v{vSA}, v{vT4}, s[{SRC}:{SRC+3}], s{sO4} offen {nt}
buffer_load_dword v{vSB}, v{vT4}, s[{SRC}:{SRC+3}], s{sO4} offen offset:{640*4} {nt}""")
    srd(YY, 40, E * 8)
    e(f"""buffer_load_dwordx2 {vr(vA,2)}, v{vT8}, s[{YY}:{YY+3}], s{sO8} offen {nt}
buffer_load_dwordx2 {vr(vB,2)}, v{vT8}, s[{YY}:{YY+3}], s{sO8b} offen {nt}""")
    srd(EF, 42, E * 32)
    srd(WS, 50, WS_SIZE)
    e(f"""s_lshl_b32 s{sT}, s2, 6
v_or_b32 v{vPO}, s{sT}, v{vL}
s_cmp_eq_u32 s{sW}, 0
s_cbranch_scc0 L_k1_r1""")
    srd(AUX, 48, C * C * 2)
    e(f"""v_and_b32 v20, 7, v{vPO}
v_bfe_u32 v21, v{vPO}, 7, 2
v_lshl_add_u32 v20, v21, 3, v20
v_bfe_u32 v21, v{vPO}, 9, 2
v_lshl_add_u32 v20, v21, 5, v20
v_bfe_u32 v21, v{vPO}, 11, 1
v_bfe_u32 v22, v{vPO}, 3, 4
v_lshl_add_u32 v21, v22, 1, v21
v_lshrrev_b32 v22, 12, v{vPO}
v_lshl_add_u32 v21, v22, 5, v21
v_lshlrev_b32 v21, 1, v21
v_lshl_add_u32 v20, v20, 8, v21
buffer_load_ushort v{vP}, v20, s[{AUX}:{AUX+3}], 0 offen
s_branch L_k1_rdone
L_k1_r1:
s_cmp_eq_u32 s{sW}, 1
s_cbranch_scc0 L_k1_r2
s_cmp_lt_u32 s2, 32
s_cbranch_scc0 L_k1_rdone""")
    srd(AUX, 44, 16 * C * 2)
    e(f"""v_and_b32 v20, 7, v{vPO}
v_bfe_u32 v21, v{vPO}, 8, 1
v_lshl_add_u32 v20, v21, 3, v20
v_bfe_u32 v21, v{vPO}, 9, 1
v_bfe_u32 v22, v{vPO}, 3, 5
v_lshl_add_u32 v21, v22, 1, v21
v_lshrrev_b32 v22, 10, v{vPO}
v_lshl_add_u32 v21, v22, 6, v21
v_lshlrev_b32 v21, 1, v21
v_lshl_add_u32 v20, v20, 8, v21
buffer_load_ushort v{vP}, v20, s[{AUX}:{AUX+3}], 0 offen
s_branch L_k1_rdone
L_k1_r2:
s_cmp_eq_u32 s{sW}, 2
s_cbranch_scc0 L_k1_rdone
s_cmp_eq_u32 s2, 0
s_cbranch_scc0 L_k1_rdone""")
    srd(AUX, 46, 128)
    e(f"""v_and_b32 v20, 0x30, v{vL}
v_and_b32 v21, 3, v{vL}
v_lshl_add_u32 v20, v21, 2, v20
v_bfe_u32 v21, v{vL}, 2, 2
v_add_lshl_u32 v20, v20, v21, 1
buffer_load_ushort v{vP}, v20, s[{AUX}:{AUX+3}], 0 offen
L_k1_rdone:""")
    e(f"s_mul_i32 s34, s{sCH}, {CH*32}\ns_lshl_b32 s35, s{sW}, 10\ns_barrier")
    for k in range(4):
        if k == 3: e(f"s_mov_b64 exec, s[{mE}:{mE+1}]")
        e(f"s_add_u32 m0, s35, {K1_EF + k*10240}")
        if k: e(f"s_add_u32 s34, s34, 10240")
        else: e("s_nop 0")
        e(f"buffer_load_dwordx4 v{vT16}, s[{EF}:{EF+3}], s34 offen {nt} lds")
    e("s_mov_b64 exec, -1")
    e(f"""s_waitcnt vmcnt(8)
v_and_b32 v20, 255, v{vDA}
v_and_b32 v21, 255, v{vDB}
v_lshlrev_b32 v28, 2, v20
v_lshlrev_b32 v29, 2, v21
ds_add_rtn_u32 v{vRA}, v28, v{vONE} offset:{K1_HIST}
s_mov_b64 exec, s[{mB}:{mB+1}]
ds_add_rtn_u32 v{vRB}, v29, v{vONE} offset:{K1_HIST}
s_mov_b64 exec, -1
s_movk_i32 s{sT}, {RMUL}
s_waitcnt vmcnt(6)""")
    stamp(1)
    for (d, s, r) in ((vDA, vSA, vA), (vDB, vSB, vB)):
        e(f"""v_lshrrev_b32 v21, 8, v{d}
v_lshlrev_b32 v20, 2, v21
v_lshl_or_b32 v{r+2}, v{s}, 10, v20
v_mul_u32_u24 v20, s{sT}, v{s}
v_lshrrev_b32 v20, {RSH}, v20
v_mad_u32_u24 v20, v21, {R}, v20
v_lshlrev_b32 v{r+3}, 2, v20""")
    e(f"""v_lshlrev_b32 v30, 4, v{vL}
s_waitcnt lgkmcnt(0)
s_barrier
ds_read_b128 {vr(vC,4)}, v30 offset:{K1_HIST}
s_waitcnt lgkmcnt(0)
v_add_u32 v{vST+2}, v{vC}, v{vC+1}
v_add_u32 v{vST+3}, v{vST+2}, v{vC+2}
v_add_u32 v31, v{vST+3}, v{vC+3}
v_mov_b32 v32, v31""")
    scan(32)
    e(f"""v_sub_u32 v{vST}, v32, v31
v_add_u32 v{vST+1}, v{vST}, v{vC}
v_add_u32 v{vST+2}, v{vST}, v{vST+2}
v_add_u32 v{vST+3}, v{vST}, v{vST+3}
ds_write_b128 v30, {vr(vST,4)} offset:{K1_START}
ds_read_b32 v33, v28 offset:{K1_START}
ds_read_b32 v34, v29 offset:{K1_START}
v_lshlrev_b32 v35, 5, v0
v_add_u32 v36, {640*32}, v35
s_waitcnt lgkmcnt(0)
v_add_lshl_u32 v33, v33, v{vRA}, 1
v_add_lshl_u32 v34, v34, v{vRB}, 1
ds_write_b16 v33, v35 offset:{K1_INV}
v_lshlrev_b32 v33, 3, v33
s_waitcnt vmcnt(4)
ds_write_b128 v33, {vr(vA,4)} offset:{K1_YM}
s_mov_b64 exec, s[{mB}:{mB+1}]
ds_write_b16 v34, v36 offset:{K1_INV}
v_lshlrev_b32 v34, 3, v34
ds_write_b128 v34, {vr(vB,4)} offset:{K1_YM}
s_mov_b64 exec, -1""")
    e(f"""s_cmp_eq_u32 s{sW}, 3
s_cbranch_scc0 L_k1_s0
s_lshl_b32 s{sT}, s{sCH}, 2
s_add_u32 s{sT}, s{sT}, {WS_TBL}
v_lshlrev_b32 v37, 12, v{vL}""")
    for k in range(4):
        e(f"v_lshl_or_b32 v{40+k}, v{vC+k}, 16, v{vST+k}\nbuffer_store_dword v{40+k}, v37, s[{WS}:{WS+3}], s{sT} offen offset:{1024*k}")
    e(f"""s_branch L_k1_sdone
L_k1_s0:
v_lshlrev_b32 v37, 1, v{vPO}
s_cmp_eq_u32 s{sW}, 0
s_cbranch_scc0 L_k1_s1
s_mov_b32 s{sT}, {WS_WMIX}
buffer_store_short v{vP}, v37, s[{WS}:{WS+3}], s{sT} offen
s_branch L_k1_sdone
L_k1_s1:
s_cmp_eq_u32 s{sW}, 1
s_cbranch_scc0 L_k1_s2
s_cmp_lt_u32 s2, 32
s_cbranch_scc0 L_k1_sdone
v_lshlrev_b32 v38, 16, v{vP}
v_mul_f32 v38, {f32(-LOG2E)}, v38
v_cvt_pk_bf16_f32 v39, v38, v38
v_lshlrev_b32 v40, 16, v39
v_sub_f32 v38, v38, v40
v_cvt_pk_bf16_f32 v40, v38, v38
s_mov_b32 s{sT}, {WS_WB}
buffer_store_short v39, v37, s[{WS}:{WS+3}], s{sT} offen
s_mov_b32 s{sT}, {WS_WB+4096}
buffer_store_short v40, v37, s[{WS}:{WS+3}], s{sT} offen
s_branch L_k1_sdone
L_k1_s2:
s_cmp_eq_u32 s{sW}, 2
s_cbranch_scc0 L_k1_sdone
s_cmp_eq_u32 s2, 0
s_cbranch_scc0 L_k1_sdone
s_mov_b32 s{sT}, {WS_CG}
buffer_store_short v{vP}, v37, s[{WS}:{WS+3}], s{sT} offen
L_k1_sdone:""")
    e(f"""v_and_b32 v33, 0x3fe, v0
v_and_b32 v34, 1, v0
v_lshlrev_b32 v34, 4, v34
s_mul_i32 s34, s{sCH}, {CHP*16}
s_add_u32 s34, s34, {WS_YM}
s_add_u32 s35, s34, 10240
s_waitcnt lgkmcnt(0)
s_barrier""")
    stamp(2)
    e(f"""ds_read_b128 v[8:11], v{vT16} offset:{K1_YM}
ds_read_b128 v[12:15], v{vT16} offset:{K1_YM+10240}""")
    for k in range(4):
        e(f"ds_read_u16 v{36+k}, v33 offset:{K1_INV + 640*k}")
    if STAMP: e("s_waitcnt lgkmcnt(0)")
    e(f"""s_waitcnt lgkmcnt(5)
buffer_store_dwordx4 v[8:11], v{vT16}, s[{WS}:{WS+3}], s34 offen {K1ST}
s_waitcnt lgkmcnt(4)
s_mov_b64 exec, s[{mB}:{mB+1}]
buffer_store_dwordx4 v[12:15], v{vT16}, s[{WS}:{WS+3}], s35 offen {K1ST}
s_mov_b64 exec, -1
s_waitcnt lgkmcnt(0)""")
    for k in range(4): e(f"v_or_b32 v{36+k}, v{36+k}, v34")
    e(f"s_mul_i32 s34, s{sCH}, {CHP*32}\ns_waitcnt vmcnt(2)\ns_barrier")
    stamp(3)
    for k in range(4):
        if k == 3: e(f"s_mov_b64 exec, s[{mE}:{mE+1}]")
        e(f"ds_read_b128 v[{16+4*k}:{19+4*k}], v{36+k} offset:{K1_EF}")
    e("s_mov_b64 exec, -1")
    if STAMP: e("s_waitcnt lgkmcnt(0)")
    for k in range(4):
        if k == 3: e(f"s_mov_b64 exec, s[{mE}:{mE+1}]")
        e(f"s_waitcnt lgkmcnt({3-k})\nbuffer_store_dwordx4 v[{16+4*k}:{19+4*k}], v{vT16}, s[{WS}:{WS+3}], s34 offen {K1ST}")
        if k < 3: e("s_add_u32 s34, s34, 10240")
    if STAMP:
        e("s_waitcnt vmcnt(0)"); stamp(4)
        e(f"s_mul_i32 s34, s2, 10\ns_add_u32 s34, s34, s{sW}")
        stamp_out(5, WS, 34, 40)
    e("L_k1_end:\ns_endpgm")

CAPW = 256
L_HIST = 0; L_DEG = 2048; L_NR = 2304; L_ENTRY = 4096; L_TBL = 4608
L_LIST = 8192; L_EF = L_LIST + 8 * CAPW * 4; L_ST = L_EF + 8 * CAPW * 32; L_WM = L_ST + 8 * CAPW * 16 + 2048
M_LDS = L_WM + 32768 + (4096 if FUSED else 0)
assert 40 * R * 4 <= 2048 and 5 * R <= 64
TROW = 272
ACC = 8; X = 48; T0 = X + 4 * D; T0 = (T0 + 15) // 16 * 16
T = [T0, T0 + 32]; TP = T0 + 64; TMP = TP + (32 if SCHED == 2 else 16); AE = TMP + (8 if SCHED == 2 else 4); EFA = AE + 8; WB = EFA + 8
CG = WB + (32 if HILO else 16); ENT = CG + 8; META = ENT + 4; EFAD = META + 1
vEntA = EFAD + 1; vEfA = vEntA + 1; vL16 = vEfA + 1; vH16 = vL16 + 1; vQ = vH16 + 1
vPS = vQ + 1; vPE = vPS + 1; vDL = vPE + 1; vPOS = vDL + 1; NV = vPOS + 1
assert NV <= 256, NV
RING = 64
KNAME = "standalone__tensor_product_equiv_tfn__graph_kernel"
SPIN = 200000
if FUSED:
    assert not HILO
    if PAYSC: PAYNT = "sc1"
DUMMY = (N * 1024) | 40
MAP39 = [0, 5, 6, 3, 0, 7, 2, 4, 1, 0, 2, 7, 1, 0, 6, 3, 5, 4, 1, 7, 4, 6, 3, 2, 5, 4, 5, 7, 2, 1, 3, 6, 4, 1, 3, 2, 6, 7, 5, 0]
MAP40 = [7, 0, 5, 2, 4, 3, 1, 6, 4, 1, 6, 3, 7, 2, 0, 5, 5, 6, 3, 0, 7, 1, 2, 4, 2, 5, 3, 1, 4, 6, 0, 7, 6, 1, 4, 3, 2, 0, 5, 7]
def posmap(m):
    c = [0] * 8; o = []
    for w in m: o.append(c[w] * 8 + w); c[w] += 1
    assert sorted(o) == list(range(40))
    return o
def scan2(v1, v2):
    ms = ("row_shr:1 row_mask:0xf", "row_shr:2 row_mask:0xf", "row_shr:4 row_mask:0xf", "row_shr:8 row_mask:0xf",
          "row_bcast:15 row_mask:0xa", "row_bcast:31 row_mask:0xc")
    e("s_nop 0")
    for m in ms:
        e(f"s_nop 0\nv_add_u32_dpp v{v1}, v{v1}, v{v1} {m} bank_mask:0xf\nv_add_u32_dpp v{v2}, v{v2}, v{v2} {m} bank_mask:0xf")
def main():
    XS, WS, OS = 4, 8, 12
    sW, sKB, sN, sCW, sW0, sNR, sT, sT2, sNT, sS0, sRem = 16, 17, 18, 19, 24, 25, 26, 27, 28, 29, 30
    mU0, mU1 = 20, 22
    mV = 36
    sMASK, sDUM, sEFM = 31, 32, 33
    sOFF = 80
    vL = 1
    tY = T0
    tI = T0 + 16
    tR = T0 + 28
    vMAP, vNODE, vR4, vS = T0 + 32, T0 + 33, T0 + 34, T0 + 35
    def common_init():
        e(f"""s_mov_b32 s{mU0}, 0x0f0f0f0f
s_mov_b32 s{mU0+1}, 0x0f0f0f0f
s_mov_b32 s{mU1}, 0xf0f0f0f0
s_mov_b32 s{mU1+1}, 0xf0f0f0f0
s_mov_b32 s{sMASK}, 0xfffffc00
s_mov_b32 s{sDUM}, {hex(DUMMY)}
s_mov_b32 s{sEFM}, 0xffe0
s_mov_b32 s{sW0}, 0
s_mov_b32 s{sNR}, 0""")
        for i in range(40): e(f"v_mov_b32 v{ACC+i}, 0")
        for i in range(8): e(f"v_mov_b32 v{EFA+i}, 0")
        e(f"v_mov_b32 v{vMAP}, 0\nv_mov_b32 v{vPOS}, 0\ns_cmp_lt_u32 s{sKB}, {N - 39*256}\ns_cbranch_scc1 L_map40")
        for r, p in enumerate(posmap(MAP39)): e(f"v_writelane_b32 v{vMAP}, {p}, {r}")
        e("s_branch L_mapd\nL_map40:")
        for r, p in enumerate(posmap(MAP40)): e(f"v_writelane_b32 v{vMAP}, {p}, {r}")
        e("L_mapd:")
        e(f"""v_and_b32 v2, 3, v{vL}
v_lshrrev_b32 v3, 2, v{vL}
v_lshl_add_u32 v{vQ}, v2, 4, v3
v_lshrrev_b32 v2, 5, v{vL}
v_lshlrev_b32 v{vH16}, 4, v2""")
    def build_cg():
        wC = X + 9; A_CG = 6656
        e(f"""v_and_b32 v2, 0x30, v{vL}
v_and_b32 v3, 3, v{vL}
v_lshl_add_u32 v2, v3, 2, v2
v_bfe_u32 v7, v{vL}, 2, 2
v_add_lshl_u32 v2, v2, v7, 1
ds_write_b16 v2, v{wC} offset:{A_CG}
v_lshlrev_b32 v3, 3, v3""")
        for k in range(4): e(f"ds_read_b64 {vr(CG+2*k,2)}, v3 offset:{A_CG + 32*k}")
    def build_wm():
        wM = TP + 16; fM = T0 + 32
        e(f"""v_lshrrev_b32 v7, 5, v0
v_and_b32 v3, 31, v{vL}
v_lshlrev_b32 v7, 11, v7
v_add_u32 v7, {L_WM}, v7
v_lshl_add_u32 v2, v3, 3, v7""")
        for m in range(8): e(f"ds_read_b64 {vr(wM+2*m,2)}, v2 offset:{256*m}")
        e(f"""s_mov_b32 s58, 0x05040100
s_mov_b32 s59, 0x07060302
v_bfe_u32 v3, v0, 3, 2
v_lshl_add_u32 v7, v3, 9, v7
v_and_b32 v3, 7, v0
v_lshl_add_u32 v7, v3, 5, v7
s_waitcnt lgkmcnt(0)""")
        for q in range(4):
            for mp in range(4):
                e(f"v_perm_b32 v{fM+4*q+mp}, v{wM+2*(2*mp+1)+q//2}, v{wM+2*(2*mp)+q//2}, s{58 + q%2}")
            e(f"ds_write_b128 v7, {vr(fM+4*q,4)} offset:{256*(q%2) + 16*(q//2)}")
    def build_wb():
        wR = TP; t2 = TP + 16
        e(f"""v_and_b32 v3, 31, v{vL}
v_lshlrev_b32 v2, 7, v{vH16}
v_lshl_add_u32 v2, v3, 2, v2
v_add_u32 v2, {L_WM + 32768}, v2
v_add_u32 v3, 128, v2""")
        for u in range(2):
            for m in range(0, 8, 2): e(f"ds_read2st64_b32 {vr(wR+8*u+m,2)}, v{2+u} offset0:{m} offset1:{m + 1}")
        e(f"s_mov_b32 s58, {f32(-LOG2E)}\ns_mov_b32 s59, {f32(-LOG2E)}")
        if STAMP: e("s_waitcnt lgkmcnt(0)")
        for u in range(2):
            for mp in range(4):
                a0, a1 = wR + 8*u + 2*mp, wR + 8*u + 2*mp + 1
                e(f"""s_waitcnt lgkmcnt({7 - 4*u - mp})
v_lshlrev_b32 v{t2}, 16, v{a0}
v_lshlrev_b32 v{t2+1}, 16, v{a1}
v_and_b32 v{t2+2}, 0xffff0000, v{a0}
v_and_b32 v{t2+3}, 0xffff0000, v{a1}
v_pk_mul_f32 {vr(t2,2)}, {vr(t2,2)}, s[58:59]
v_pk_mul_f32 {vr(t2+2,2)}, {vr(t2+2,2)}, s[58:59]
v_cvt_pk_bf16_f32 v{WB+4*(2*u)+mp}, v{t2}, v{t2+1}
v_cvt_pk_bf16_f32 v{WB+4*(2*u+1)+mp}, v{t2+2}, v{t2+3}""")
    def fused_head():
        A_YM = L_EF; A_EF = L_EF + CHP * 16; A_INV = L_LIST; A_START = L_LIST + 2560; A_HIST = 3072; A_CG = 6656
        nt = "nt" if K1NT else ""
        SA, SB, SC, SD = 64, 68, 72, 76
        m2, mE = 60, 62
        aD, aS = TP, TP + 3
        aR = TP + 8
        aK, aB = TP + 20, TP + 23
        aC, aST = TP + 28, X
        aE = X + 12
        vE4, vE8, vE16, vP16 = X + 5, X + 6, X + 7, X + 8
        e(f""".globl {KNAME}
.p2align 8
.type {KNAME},@function
{KNAME}:""")
        e("s_cmp_ge_u32 s2, 256\ns_cbranch_scc1 L_m_end")
        stamp(0)
        if SLOWT:
            e("s_and_b32 s58, s2, 15\ns_cmp_eq_u32 s58, %d\ns_cbranch_scc0 L_slt\ns_sleep 127\ns_sleep 127\ns_lshr_b32 s58, s2, 7\ns_cbranch_scc0 L_slt\ns_sleep 127\ns_sleep 127\nL_slt:" % (SLOWT - 1))
        e(f"""s_load_dwordx16 s[36:51], s[0:1], 0
s_load_dwordx4 s[52:55], s[0:1], 64
s_load_dwordx2 s[56:57], s[0:1], 80
v_lshrrev_b32 v2, 6, v0
v_and_b32 v{vL}, 63, v0
v_readfirstlane_b32 s{sW}, v2
s_and_b32 s{sKB}, s2, 7
s_lshl_b32 s{sKB}, s{sKB}, 5
s_lshr_b32 s{sT}, s2, 3
s_or_b32 s{sKB}, s{sKB}, s{sT}
v_lshlrev_b32 v7, 3, v0
v_mov_b32 v2, 0
v_mov_b32 v3, 0
v_mov_b32 v4, 0
v_mov_b32 v5, 0
ds_write_b64 v7, v[2:3]
v_lshlrev_b32 v{vL16}, 4, v{vL}
s_mul_i32 s{sT}, s{sW}, 160
v_add_u32 v6, s{sT}, v{vL}
v_lshlrev_b32 v{vE4}, 2, v6
v_lshlrev_b32 v{vE8}, 3, v6
v_lshlrev_b32 v{vE16}, 4, v6
s_mul_i32 s{sT}, s{sW}, {320*16}
v_add_u32 v{vP16}, s{sT}, v{vL16}
s_cmp_lt_u32 s{sW}, 7
s_cselect_b32 s{m2}, -1, 3
s_mov_b32 s{m2+1}, 0
s_cselect_b64 s[{mE}:{mE+1}], -1, 15
s_cselect_b32 s34, -1, 0xff
s_mul_i32 s58, s{sKB}, {CH*4}
s_mul_i32 s59, s{sKB}, {CH*8}
s_lshl_b32 s{sS0}, s{sKB}, 10
s_add_u32 s{sS0}, s{sS0}, {WS_TBL}
s_waitcnt lgkmcnt(0)""")
        srd(WS, 56, WS_SIZE)
        srd(SA, 40, E * 4)
        def ld3(op, d, n, va, S, so, step):
            for k in range(3):
                if k == 2: e(f"s_mov_b64 exec, s[{m2}:{m2+1}]")
                e(f"{op} {vr(d[k], n)}, v{va}, s[{S}:{S+3}], s{so} offen offset:{step*k} {nt}")
            e("s_mov_b64 exec, -1")
        ld3("buffer_load_dword", [aD, aD+1, aD+2], 1, vE4, SA, 58, 256)
        if CPF:
            e(f"""s_getpc_b64 s[82:83]
L_pc:
s_lshr_b32 s80, s2, 3
s_lshl_b32 s81, s80, 7
s_and_b32 s3, s{sW}, 1
s_lshl_b32 s3, s3, 6
s_add_u32 s81, s81, s3
s_load_dword s3, s[46:47], s81
s_lshl_b32 s80, s80, 3
s_add_u32 s80, s80, s{sW}
s_lshl_b32 s81, s80, 7
s_load_dword s3, s[50:51], s81
s_add_u32 s81, s81, 64
s_load_dword s3, s[50:51], s81
s_lshl_b32 s81, s80, {CPF}
s_min_u32 s81, s81, L_m_end-L_pc
s_load_dword s3, s[82:83], s81
s_load_dword s3, s[48:49], 0
s_load_dword s3, s[48:49], 64""")
        srd(SB, 38, E * 4)
        ld3("buffer_load_dword", [aS, aS+1, aS+2], 1, vE4, SB, 58, 256)
        srd(SC, 42, E * 8)
        ld3("buffer_load_dwordx2", [aR, aR+4, aR+8], 2, vE8, SC, 59, 512)
        def rwait(n, tag, extra=""): e(f"s_waitcnt vmcnt({n}) {extra}")
        srd(SD, 44, E * 32)
        if ILV & 1:
            e(f"s_mul_i32 s58, s{sKB}, {CH*32}\ns_lshl_b32 s{sT}, s{sW}, 10\nv_lshlrev_b32 v7, 4, v0\n" + ("s_barrier" if ABAR else "s_nop 0"))
            for k in range(5):
                e(f"s_add_u32 m0, s{sT}, {A_EF + 8192*k}")
                if k == 4: e(f"s_mov_b64 exec, s[{mE}:{mE+1}]")
                e("s_add_u32 s58, s58, 8192" if k else "s_nop 0")
                e(f"buffer_load_dwordx4 v7, s[{SD}:{SD+3}], s58 offen {nt} lds")
            e("s_mov_b64 exec, -1\nv_mov_b32 v6, 1")
        else:
            e(f"s_mul_i32 s58, s{sKB}, {CH*32}\ns_add_u32 m0, s{sT}, {A_EF}\n" + ("s_barrier" if ABAR else "s_nop 0"))
            for k in range(4): e(f"buffer_load_dwordx4 v{vP16}, s[{SD}:{SD+3}], s58 offen offset:{1024*k} {nt} lds")
            e(f"""s_add_u32 m0, s{sT}, {A_EF + 4096}
s_add_u32 s58, s58, 4096
s_mov_b64 exec, s[{mE}:{mE+1}]
buffer_load_dwordx4 v{vP16}, s[{SD}:{SD+3}], s58 offen {nt} lds
s_mov_b64 exec, -1
v_mov_b32 v6, 1""")
        if not ABAR: e("s_barrier")
        srd(SA, 54, 256)
        A_WR = L_WM + 32768; A_WM = L_ST
        def wdma_m():
            srd(SC, 50, C * C * 2)
            e(f"s_lshl_b32 s58, s{sW}, 12\ns_add_u32 m0, s58, {L_WM}\ns_nop 0")
            for k in range(4): e(f"buffer_load_dwordx4 v{vL16}, s[{SC}:{SC+3}], s58 offen offset:{1024*k} lds")
        def wdma():
            srd(SB, 46, 16 * C * 2); srd(SD, 48, 128)
            e(f"""v_lshlrev_b32 v7, 1, v{vL}
s_lshl_b32 s58, s{sW}, 9
s_add_u32 m0, s58, {A_WR}
s_mov_b32 exec_hi, 0
buffer_load_dwordx4 v{vL16}, s[{SB}:{SB+3}], s58 offen lds
s_mov_b32 exec_hi, -1
buffer_load_ushort v{X+9}, v7, s[{SD}:{SD+3}], 0 offen""")
        nE = 0
        if WTOUCH:
            srd(SB, 46, 16 * C * 2); srd(SC, 50, C * C * 2)
            e(f"""s_lshr_b32 s58, s2, 3
s_lshl_b32 s59, s58, 7
s_lshl_b32 s58, s58, 3
s_add_u32 s58, s58, s{sW}
s_lshl_b32 s58, s58, 7
s_mov_b64 exec, 1
buffer_load_dword v{X+10}, v{vL16}, s[{SC}:{SC+3}], s58 offen
buffer_load_dword v{X+10}, v{vL16}, s[{SB}:{SB+3}], s59 offen
s_mov_b64 exec, -1""")
            nE = 2
        stamp(1, 2)
        rwait(11 + nE, "a")
        stamp(2, 2)
        for k in range(3):
            if k == 2: e(f"s_mov_b64 exec, s[{m2}:{m2+1}]")
            e(f"v_and_b32 v2, 255, v{aD+k}\nv_lshlrev_b32 v{aB+k}, 2, v2\nds_add_rtn_u32 v{aK+k}, v{aB+k}, v6 offset:{A_HIST}")
        e(f"""s_mov_b64 exec, -1
s_movk_i32 s{sT2}, {RMUL}""")
        rwait(8 + nE, "b")
        for k in range(3):
            r = aR + 4 * k
            e(f"""v_lshrrev_b32 v3, 8, v{aD+k}
v_lshlrev_b32 v2, 2, v3
v_lshl_or_b32 v{r+2}, v{aS+k}, 10, v2
v_mul_u32_u24 v2, s{sT2}, v{aS+k}
v_lshrrev_b32 v2, {RSH}, v2
v_mad_u32_u24 v2, v3, {R}, v2
v_lshlrev_b32 v{r+3}, 2, v2""")
        e(f"""s_waitcnt lgkmcnt(0)
s_barrier
ds_read_b128 {vr(aC,4)}, v{vL16} offset:{A_HIST}
s_waitcnt lgkmcnt(0)
v_add_u32 v{aST+2}, v{aC}, v{aC+1}
v_add_u32 v{aST+3}, v{aST+2}, v{aC+2}
v_add_u32 v2, v{aST+3}, v{aC+3}
v_mov_b32 v3, v2""")
        scan(3)
        e(f"""v_sub_u32 v{aST}, v3, v2
v_add_u32 v{aST+1}, v{aST}, v{aC}
v_add_u32 v{aST+2}, v{aST}, v{aST+2}
v_add_u32 v{aST+3}, v{aST}, v{aST+3}
ds_write_b128 v{vL16}, {vr(aST,4)} offset:{A_START}""")
        for k in range(3):
            if k == 2: e(f"s_mov_b64 exec, s[{m2}:{m2+1}]")
            e(f"ds_read_b32 v{aB+k}, v{aB+k} offset:{A_START}")
        e(f"""s_mov_b64 exec, -1
v_lshlrev_b32 v4, 1, v{vE16}""")
        for k in range(4): e(f"v_lshl_or_b32 v{aE+k}, v{aC+k}, 16, v{aST+k}")
        rwait(5 + nE, "c", "lgkmcnt(0)")
        for k in range(3):
            if k == 2: e(f"s_mov_b64 exec, s[{m2}:{m2+1}]")
            e(f"""v_add_lshl_u32 v2, v{aB+k}, v{aK+k}, 1
v_add_u32 v3, {2048*k}, v4
ds_write_b16 v2, v3 offset:{A_INV}
v_lshlrev_b32 v2, 3, v2
ds_write_b128 v2, {vr(aR+4*k,4)} offset:{A_YM}""")
        e(f"""s_mov_b64 exec, -1
{f"v_lshlrev_b32 v{vP16}, 4, v0" if ILV & 2 else ""}
v_lshrrev_b32 v2, 4, v{vP16}
v_and_b32 v2, 0xffe, v2
v_and_b32 v3, 1, v{vL}
v_lshlrev_b32 v3, 4, v3
s_mul_i32 s58, s{sKB}, {CHP*16}
s_add_u32 s58, s58, {WS_YM}
s_waitcnt lgkmcnt(0)
s_barrier""")
        stamp(1); stamp(3, 2); stamp(3, 4)
        aI = TP + 20
        vREF, aO = X + 11, X + 16
        e(f"""v_lshrrev_b32 v4, 1, v0
s_lshl_b32 s59, s{sKB}, 2
s_add_u32 s59, s59, {WS_TBL}
v_lshl_add_u32 v5, v4, 10, s59
buffer_load_dword v{vREF}, v5, s[{WS}:{WS+3}], 0 offen {REFSC}
s_cmp_eq_u32 s{sW}, 7
s_cselect_b32 s59, s{sS0}, 0x40000000
v_add_u32 v7, s59, v{vL16}
buffer_load_dwordx4 {vr(aO,4)}, v7, s[{WS}:{WS+3}], 0 offen {REFSC}""")
        for k in range(3): e(f"ds_read_b128 {vr(aR+4*k,4)}, v{vE16} offset:{A_YM + 1024*k}")
        for k in range(5): e(f"ds_read_u16 v{aI+k}, v2 offset:{A_INV + (512 if ILV & 2 else 64)*k}")
        if STAMP: e("s_waitcnt lgkmcnt(0)")
        def ymst(so):
            for k in range(3):
                if k == 2: e(f"s_mov_b32 exec_lo, s34\ns_mov_b32 exec_hi, 0")
                e(f"s_waitcnt lgkmcnt({7-k})\nbuffer_store_dwordx4 {vr(aR+4*k,4)}, v{vE16}, s[{WS}:{WS+3}], s{so} offen offset:{1024*k} sc1")
        if not YLATE: ymst(58)
        else: e(f"s_mov_b32 s{sT2}, s58")
        e("s_mov_b64 exec, -1\ns_waitcnt lgkmcnt(0)")
        stamp(1, 4)
        for k in range(5): e(f"v_or_b32 v{aI+k}, v{aI+k}, v3")
        assert YLATE
        if WPOS == 0:
            srd(XS, 36, N * 1024); srd(OS, 52, N * 1024); common_init(); wdma()
        else:
            wdma(); srd(XS, 36, N * 1024); srd(OS, 52, N * 1024); common_init()
        e(f"""s_mul_i32 s58, s{sKB}, {CHP*32}
s_add_u32 s59, s58, 4096
s_waitcnt vmcnt({4+nE})""")
        if YLATE == 1: ymst(sT2); e("s_mov_b64 exec, -1")
        stamp(2, 4)
        e("s_barrier")
        stamp(4, 2); stamp(4, 4)
        if NOST: e("s_branch L_stout")
        aF = T0
        for k in range(5):
            if k == 4: e(f"s_mov_b64 exec, s[{mE}:{mE+1}]")
            e(f"ds_read_b128 {vr(aF+4*k,4)}, v{aI+k} offset:{A_EF}")
        e("s_mov_b64 exec, -1")
        if YLATE == 2: ymst(sT2); e("s_mov_b64 exec, -1")
        for k in range(5):
            if k == 4: e(f"s_mov_b32 exec_lo, s34\ns_mov_b32 exec_hi, s{mE+1}")
            if ILV & 2:
                e(f"s_waitcnt lgkmcnt({4-k})\nbuffer_store_dwordx4 {vr(aF+4*k,4)}, v{vP16}, s[{WS}:{WS+3}], s58 offen sc1\ns_add_u32 s58, s58, 8192")
            else: e(f"s_waitcnt lgkmcnt({4-k})\nbuffer_store_dwordx4 {vr(aF+4*k,4)}, v{vP16}, s[{WS}:{WS+3}], s{58 + k//4} offen offset:{1024*(k%4)} sc1")
        e("s_mov_b64 exec, -1")
        stamp(5, 2)
        wR = TP
        wM = TP + 16
        wC = X + 9
        e(f"s_mov_b32 s{sRem}, {SPIN}\ns_waitcnt vmcnt(8)")
        build_cg()
        e("s_brev_b32 s59, 1")
        for k in range(4): e(f"v_not_b32 v{aO+k}, v{aO+k}\nv_and_or_b32 v{aE+k}, v{aO+k}, s59, v{aE+k}")
        e("s_waitcnt vmcnt(0)")
        stamp(6, 2); stamp(6, 4)
        if EXITA: e("s_branch L_stout")
        e("s_barrier")
        stamp(2)
        e(f"""s_cmp_eq_u32 s{sW}, 7
s_cbranch_scc0 L_notb
buffer_store_dwordx4 {vr(aE,4)}, v{vL16}, s[{WS}:{WS+3}], s{sS0} offen sc1
L_notb:""")
        wdma_m(); build_wb()
        e(f"""L_poll:
buffer_load_dword v6, v5, s[{WS}:{WS+3}], 0 offen sc1
s_waitcnt vmcnt(0)
v_xor_b32 v2, v6, v{vREF}
v_cmpx_le_i32 vcc, 0, v2
s_cbranch_execz L_polld
s_sub_u32 s{sRem}, s{sRem}, 1
s_cbranch_scc1 L_m_end
s_and_b32 s58, s{sRem}, 7
s_cbranch_scc1 L_poll
v_mov_b32 v3, 0
buffer_load_dword v2, v3, s[{SA}:{SA+3}], 0 offen sc1
s_waitcnt vmcnt(0)
v_readfirstlane_b32 s58, v2
s_cmp_eq_u32 s58, 0
s_cbranch_scc1 L_poll
buffer_load_dword v6, v5, s[{WS}:{WS+3}], 0 offen sc1
s_waitcnt vmcnt(0)
L_polld:
s_mov_b64 exec, -1
v_and_b32 v3, 1, v0
v_cmp_eq_u32 vcc, 0, v3
s_movk_i32 s{sT}, {CHP}
v_and_b32 v6, 0x7fffffff, v6""")
        stamp(3); stamp(1, 3)
    def split_head():
        e(""".globl main_kernel
.p2align 8
.type main_kernel,@function
main_kernel:""")
        e("s_cmp_ge_u32 s2, 256\ns_cbranch_scc1 L_m_end")
        stamp(0)
        if 0:
            e(f"""s_getpc_b64 s[50:51]
v_lshlrev_b32 v2, 7, v0
s_mov_b32 s52, s50
s_mov_b32 s53, s51
s_mov_b32 s54, L_m_end-main_kernel-64
s_mov_b32 s55, 0x00020000
buffer_load_dword v{TP}, v2, s[52:55], 0 offen""")
        e(f"""s_load_dwordx2 s[44:45], s[0:1], 80
s_load_dwordx2 s[46:47], s[0:1], 0
s_load_dwordx2 s[48:49], s[0:1], 64
v_lshrrev_b32 v2, 6, v0
v_and_b32 v{vL}, 63, v0
v_readfirstlane_b32 s{sW}, v2
s_and_b32 s{sKB}, s2, 7
s_lshl_b32 s{sKB}, s{sKB}, 5
s_lshr_b32 s{sT}, s2, 3
s_or_b32 s{sKB}, s{sKB}, s{sT}
v_lshrrev_b32 v4, 1, v0
v_lshlrev_b32 v5, 2, v4
s_lshl_b32 s{sT}, s{sKB}, 10
s_add_u32 s{sT}, s{sT}, {WS_TBL}
v_lshlrev_b32 v{vL16}, 4, v{vL}
s_waitcnt lgkmcnt(0)""")
        srd(WS, 44, WS_SIZE)
        e(f"buffer_load_dword v6, v5, s[{WS}:{WS+3}], s{sT} offen")
        e(f"""v_lshlrev_b32 v7, 3, v0
v_mov_b32 v2, 0
v_mov_b32 v3, 0
ds_write_b64 v7, v[2:3]
s_waitcnt lgkmcnt(0)
s_barrier""")
        e(f"s_mov_b32 s{sT}, {WS_WB}")
        nwb = 8 if HILO else 4
        for k in range(nwb):
            if k == 4: e(f"s_mov_b32 s{sT}, {WS_WB+4096}")
            e(f"buffer_load_dwordx4 {vr(WB+4*k,4)}, v{vL16}, s[{WS}:{WS+3}], s{sT} offen offset:{1024*(k%4)}")
        e(f"v_and_b32 v7, 3, v0\nv_lshlrev_b32 v7, 3, v7\ns_mov_b32 s{sT}, {WS_CG}")
        for k in range(4):
            e(f"buffer_load_dwordx2 {vr(CG+2*k,2)}, v7, s[{WS}:{WS+3}], s{sT} offen offset:{32*k}")
        nw_after = nwb + 4
        if not WMLATE:
            e(f"s_lshl_b32 s{sT}, s{sW}, 12\ns_add_u32 m0, s{sT}, {L_WM}\ns_add_u32 s{sT}, s{sT}, {WS_WMIX}")
            for k in range(4):
                e(f"buffer_load_dwordx4 v{vL16}, s[{WS}:{WS+3}], s{sT} offen offset:{1024*k} lds")
            nw_after += 4
        srd(XS, 46, N * 1024)
        srd(OS, 48, N * 1024)
        e(f"""s_mov_b32 s{mU0}, 0x0f0f0f0f
s_mov_b32 s{mU0+1}, 0x0f0f0f0f
s_mov_b32 s{mU1}, 0xf0f0f0f0
s_mov_b32 s{mU1+1}, 0xf0f0f0f0
s_mov_b32 s{sMASK}, 0xfffffc00
s_mov_b32 s{sDUM}, {hex(DUMMY)}
s_mov_b32 s{sEFM}, 0xffe0
s_mov_b32 s{sW0}, 0
s_mov_b32 s{sNR}, 0""")
        for i in range(40): e(f"v_mov_b32 v{ACC+i}, 0")
        for i in range(8): e(f"v_mov_b32 v{EFA+i}, 0")
        e(f"v_mov_b32 v{vMAP}, 0\nv_mov_b32 v{vPOS}, 0\ns_cmp_lt_u32 s{sKB}, {N - 39*256}\ns_cbranch_scc1 L_map40")
        for r, p in enumerate(posmap(MAP39)): e(f"v_writelane_b32 v{vMAP}, {p}, {r}")
        e("s_branch L_mapd\nL_map40:")
        for r, p in enumerate(posmap(MAP40)): e(f"v_writelane_b32 v{vMAP}, {p}, {r}")
        e("L_mapd:")
        e(f"""v_and_b32 v2, 3, v{vL}
v_lshrrev_b32 v3, 2, v{vL}
v_lshl_add_u32 v{vQ}, v2, 4, v3
v_lshrrev_b32 v2, 5, v{vL}
v_lshlrev_b32 v{vH16}, 4, v2
v_and_b32 v3, 1, v0
v_cmp_eq_u32 vcc, 0, v3
s_movk_i32 s{sT}, {CHP}
s_waitcnt vmcnt({nw_after})""")
        stamp(1)
    if FUSED: fused_head()
    else: split_head()
    e(f"""v_lshrrev_b32 v2, 16, v6
v_cndmask_b32 v{vPE}, 0, v2, vcc
v_and_b32 v6, 0xffff, v6
v_mad_u32_u24 v6, v4, s{sT}, v6""")
    scan(vPE)
    e(f"""v_sub_u32 v{vPS}, v{vPE}, v2
v_readlane_b32 s{sCW}, v{vPE}, 63
v_sub_u32 v{vDL}, v6, v{vPS}""")
    e("L_round:")
    e(f"""s_lshl_b32 s{sT}, s{sW}, 10
s_add_u32 s{sT}, s{sT}, {L_LIST}
v_and_b32 v2, 1, v0
v_max_u32 v3, s{sW0}, v{vPS}
v_add_u32 v3, v3, v2
s_add_u32 s{sT2}, s{sW0}, {CAPW}
v_min_u32 v4, s{sT2}, v{vPE}
v_add_u32 v5, v{vDL}, v3
s_lshl_b32 s{sT2}, s{sW0}, 2
s_sub_u32 s{sT2}, s{sT}, s{sT2}
v_lshl_add_u32 v6, v3, 2, s{sT2}
v_cmpx_lt_u32 vcc, v3, v4
s_cbranch_execz L_exp_done
L_exp:
ds_write_b32 v6, v5
v_add_u32 v3, 2, v3
v_add_u32 v5, 2, v5
v_add_u32 v6, 8, v6
v_cmpx_lt_u32 vcc, v3, v4
s_cbranch_execnz L_exp
L_exp_done:
s_mov_b64 exec, -1
v_lshl_add_u32 v3, v{vL}, 2, s{sT}
v_lshrrev_b32 v7, 1, v{vL}
v_lshl_add_u32 v4, v7, 2, s{sT}""")
    for k in (3, 2, 1, 0): e(f"ds_read_b32 v{tI+k}, v3 offset:{256*k}")
    for k in range(8): e(f"ds_read_b32 v{tI+4+k}, v4 offset:{128*k}")
    e(f"""s_sub_i32 s{sNT}, s{sCW}, s{sW0}
s_max_i32 s{sNT}, s{sNT}, 0
s_min_i32 s{sNT}, s{sNT}, {CAPW}
v_lshlrev_b32 v2, 4, v2
v_mov_b32 v5, 0x04000000""")
    for k in range(4):
        e(f"s_sub_i32 s{sT2}, s{sNT}, {64*k}\nv_cmp_gt_i32 s[{mV+2*k}:{mV+2*k+1}], s{sT2}, v{vL}")
    e(f"s_mov_b32 s{sT}, {WS_YM}")
    if STAMP: e("s_waitcnt lgkmcnt(0)")
    for i, k in enumerate((3, 2, 1, 0)):
        if k == 3: e(f"s_cmp_le_u32 s{sNT}, 192\ns_cbranch_scc1 L_sk3")
        e(f"""s_waitcnt lgkmcnt({11-i})
v_cndmask_b32 v{tI+k}, v5, v{tI+k}, s[{mV+2*k}:{mV+2*k+1}]
v_lshlrev_b32 v{tI+k}, 4, v{tI+k}
buffer_load_dwordx4 {vr(tY+4*k,4)}, v{tI+k}, s[{WS}:{WS+3}], s{sT} offen {PAYNT}""")
        if k == 3: e("L_sk3:")
    e(f"s_waitcnt lgkmcnt(0)")
    stamp(2, 3)
    if YBAR: e("s_barrier")
    def ef_dma(k):
        e(f"""s_sub_i32 s{sT2}, s{sNT}, {32*k}
v_cmp_gt_i32 vcc, s{sT2}, v7
s_lshl_b32 s{sT}, s{sW}, 13
s_add_u32 m0, s{sT}, {L_EF + 1024*k}
v_cndmask_b32 v{tI+4+k}, v5, v{tI+4+k}, vcc
v_lshl_or_b32 v{tI+4+k}, v{tI+4+k}, 5, v2
buffer_load_dwordx4 v{tI+4+k}, s[{WS}:{WS+3}], 0 offen {PAYNT} lds""")
    for k in range(EF1): ef_dma(k)
    if not FUSED: stamp(2)
    e(f"""s_add_u32 s{sT}, s{sCW}, {CAPW-1}
s_lshr_b32 s{sT}, s{sT}, 8
v_mov_b32 v3, s{sT}
v_mov_b32 v4, {L_NR}
ds_max_u32 v4, v3
s_mul_i32 s{sT}, s{sW}, 5
v_add_u32 v{vNODE}, s{sT}, v{vL}
v_subrev_u32 v3, 40, v{vNODE}
v_min_u32 v{vNODE}, v{vNODE}, v3
v_mul_u32_u24 v3, 205, v{vL}
v_lshrrev_b32 v3, 10, v3
v_mul_u32_u24 v6, 5, v3
v_sub_u32 v{vS}, v{vL}, v6""")
    if ROT:
        e(f"""s_lshr_b32 s{sT}, s{sKB}, 5
s_mul_i32 s{sT}, s{sT}, {R}
s_lshr_b32 s{sT}, s{sT}, 3
v_add_u32 v3, s{sT}, v3
v_subrev_u32 v6, {R}, v3
v_min_u32 v3, v3, v6""")
    e(f"""v_lshlrev_b32 v{vR4}, 2, v3
v_mov_b32 v6, 1""")
    for i, k in enumerate((3, 2, 1, 0)):
        e(f"""s_waitcnt vmcnt({EF1 + 3 - i})
s_mov_b64 exec, s[{mV+2*k}:{mV+2*k+1}]
v_and_b32 v3, 0xff, v{tY+4*k+2}
ds_add_rtn_u32 v{tR+k}, v{tY+4*k+3}, v6 offset:{L_HIST}
ds_add_u32 v3, v6 offset:{L_DEG}""")
    e(f"""s_mov_b64 exec, -1
v_lshlrev_b32 v3, 2, v{vNODE}
s_waitcnt lgkmcnt(0)
s_barrier""")
    if not FUSED: stamp(3)
    stamp(3, 3)
    def allrows(tag):
        srd(44, 54, 256)
        e(f"""v_mov_b32 v{TP}, 0
v_mov_b32 v{TP+1}, 1
s_mov_b64 exec, 1
buffer_store_dword v{TP+1}, v{TP}, s[44:47], 0 offen sc1
s_mov_b64 exec, -1""")
    if FUSED:
        e(f"s_lshl_b32 s{sT}, s2, 3\ns_add_u32 s{sT}, s{sT}, s{sW}\ns_add_u32 s{sT}, s{sT}, s{sW0}\ns_cmp_eq_u32 s{sT}, 7\ns_cbranch_scc0 L_noall")
        allrows("a")
        e("L_noall:")
    e(f"ds_read_b32 v3, v3 offset:{L_DEG}\nds_read_b32 v4, v4")
    for k in range(EF1, 8):
        e(f"s_cmp_le_u32 s{sNT}, {32*k}\ns_cbranch_scc1 L_efd")
        ef_dma(k)
    e(f"""L_efd:
v_cmp_gt_u32 vcc, 40, v{vL}
s_waitcnt lgkmcnt(0)
v_readfirstlane_b32 s{sT}, v4
v_lshl_or_b32 v3, v3, 6, v{vNODE}
v_cndmask_b32 v3, 0, v3, vcc
s_max_u32 s{sNR}, s{sNR}, s{sT}
s_cmp_lg_u32 s{sW0}, 0
s_cbranch_scc1 L_havepos""")
    for j in range(5): e(f"v_readlane_b32 s{64+j}, v3, {j}")
    for j in range(5): e(f"v_cmp_lt_u32 s[{70+2*j}:{71+2*j}], s{64+j}, v3")
    for j in range(5): e(f"s_bcnt1_i32_b64 s{64+j}, s[{70+2*j}:{71+2*j}]")
    for j in range(5): e(f"v_readlane_b32 s{70+j}, v{vMAP}, s{64+j}")
    for j in range(5): e(f"v_writelane_b32 v{vPOS}, s{70+j}, {j}")
    e(f"""v_lshlrev_b32 v{vPOS}, 2, v{vPOS}
L_havepos:
s_mov_b64 exec, 31
ds_write_b32 v{vPOS}, v3 offset:{L_ENTRY}
s_mov_b64 exec, -1
s_lshl_b32 s{sT}, s{sW}, 2
v_lshl_add_u32 v3, v{vS}, 5, s{sT}
v_lshlrev_b32 v4, 2, v{vL}
v_and_b32 v6, 7, v{vL}
v_cmp_gt_u32 s[34:35], s{sW}, v6
v_cmp_gt_u32 vcc, 40, v{vL}
s_and_b64 s[34:35], s[34:35], vcc
v_cmp_gt_u32 vcc, {5*R}, v{vL}
s_waitcnt lgkmcnt(0)
s_barrier""")
    stamp(4, 3)
    c0, c1, c2 = T0 + 36, T0 + 37, T0 + 38
    e(f"""ds_read_b32 v3, v3 offset:{L_ENTRY}
ds_read_b32 v4, v4 offset:{L_ENTRY}
s_waitcnt lgkmcnt(1)
v_and_b32 v3, 63, v3
v_mad_u32_u24 v3, v3, {4*R}, v{vR4}
ds_read_b32 v{c0}, v3 offset:{L_HIST}
s_waitcnt lgkmcnt(1)
v_lshrrev_b32 v4, 6, v4
v_cndmask_b32 v{c2}, 0, v4, s[34:35]
s_waitcnt lgkmcnt(0)
v_cndmask_b32 v{c0}, 0, v{c0}, vcc
v_mov_b32 v{c1}, v{c0}""")
    scan2(c1, c2)
    e(f"""v_sub_u32 v{c0}, v{c1}, v{c0}
v_readlane_b32 s{sS0}, v{c2}, 63
v_readlane_b32 s{sN}, v{c1}, 63
s_min_u32 s{sNR}, s{sNR}, {32*CH//CAPW+1}
s_lshl_b32 s{sT}, s{sS0}, 4
s_add_u32 s{sT}, s{sT}, {L_ST}
v_lshl_add_u32 v{c0}, v{c0}, 4, s{sT}
v_lshlrev_b32 v4, 3, v{vS}
v_lshl_or_b32 v{c0}, v{c0}, 8, v4
s_mov_b64 exec, vcc
ds_write_b32 v3, v{c0} offset:{L_TBL}
s_mov_b64 exec, -1
s_min_u32 s{sN}, s{sN}, {8*CAPW}
v_lshl_add_u32 v{vEntA}, v{vQ}, 4, s{sT}
v_and_b32 v2, 3, v{vL}
v_bfe_u32 v3, v{vL}, 3, 2
v_lshl_add_u32 v2, v3, 2, v2
v_lshl_add_u32 v{vEfA}, v2, 4, s{sT}
s_lshl_b32 s{sT}, s{sW}, 13
v_lshl_add_u32 v5, v{vL}, 5, s{sT}
s_movk_i32 s{sT2}, 0xff
s_waitcnt lgkmcnt(0)
s_barrier""")
    stamp(5, 3)
    for k in range(4): e(f"s_mov_b64 exec, s[{mV+2*k}:{mV+2*k+1}]\nds_read_b32 v{tI+k}, v{tY+4*k+3} offset:{L_TBL}")
    e("s_waitcnt lgkmcnt(0)")
    for k in range(4):
        e(f"""s_mov_b64 exec, s[{mV+2*k}:{mV+2*k+1}]
v_bfi_b32 v{tY+4*k+2}, s{sT2}, v{tI+k}, v{tY+4*k+2}
v_lshrrev_b32 v{tI+k}, 8, v{tI+k}
v_add_u32 v{tY+4*k+3}, {2048*k}, v5
v_lshl_add_u32 v{tI+k}, v{tR+k}, 4, v{tI+k}
ds_write_b128 v{tI+k}, {vr(tY+4*k,4)}""")
    e(f"""s_mov_b64 exec, -1
v_cmp_gt_i32 vcc, s{sN}, v{vQ}
v_mov_b32 v4, s{sDUM}
s_waitcnt lgkmcnt(0)
s_barrier""")
    stamp(4); stamp(6, 3)
    e(f"""ds_read_b128 {vr(ENT,4)}, v{vEntA}
ds_read_b32 v{EFAD}, v{vEfA} offset:12
s_waitcnt lgkmcnt(0)
v_cndmask_b32 v{META}, v4, v{ENT+2}, vcc
v_and_or_b32 v{EFAD}, v{EFAD}, s{sEFM}, v{vH16}""")
    lane_of = lambda q: 4 * (q % 16) + (q % 64) // 16
    ring = lambda q: RING + q % 16
    RLA = DIST + (2 if SCHED == 1 else 0)
    assert RLA + (4 if SCHED == 2 else 2) <= 16
    for q in range(RLA): e(f"v_readlane_b32 s{ring(q)}, v{META}, {lane_of(q)}")
    def xload(q, so): return f"buffer_load_dwordx4 {vr(X+4*(q%D),4)}, v{vL16}, s[{XS}:{XS+3}], s{so} offen"
    for q in range(PRE):
        e(f"s_and_b32 s{sOFF+q%4}, s{ring(q)}, s{sMASK}\n{xload(q, sOFF+q%4)}")
    e(f"s_waitcnt vmcnt({PRE})\ns_barrier")
    stamp(5)
    if STAMP: e('s_memtime s[60:61]')
    def rd_efa(us):
        for u in us: e(f"s_mov_b64 exec, s[{(mU0,mU1)[u]}:{(mU0,mU1)[u]+1}]\nds_read_b128 {vr(EFA+4*u,4)}, v{EFAD} offset:{L_EF}")
        e("s_mov_b64 exec, -1")
    def rmfma(buf, j):
        if HILO: u, par, lo = j // 4, j % 2, (j // 2) % 2
        else: u, par, lo = j // 2, j % 2, 0
        d = T[buf] + 16 * par
        c = "0" if (u == 0 and lo == 0) else vr(d, 16)
        return f"v_mfma_f32_32x32x16_bf16 {vr(d,16)}, {vr(EFA+4*u,4)}, {vr(WB+16*lo+4*(2*u+par),4)}, {c}"
    NM = 8 if HILO else 4
    rd_efa((0, 1))
    e(f"s_waitcnt lgkmcnt(0)")
    e(f"ds_read_b32 v{EFAD}, v{vEfA} offset:{256+12}")
    for j in range(NM): e(rmfma(0, j))
    for q in range(PRE, DIST):
        e(f"s_and_b32 s{sOFF+q%4}, s{ring(q)}, s{sMASK}\n{xload(q, sOFF+q%4)}")
    e(f"s_waitcnt lgkmcnt(0)\nv_and_or_b32 v{EFAD}, v{EFAD}, s{sEFM}, v{vH16}")
    if HILO or SCHED == 2:
        e("s_nop 7"); rd_efa((0,)); e("s_waitcnt lgkmcnt(0)")
    if FUSED:
        e(f"s_cmp_lg_u32 s{sW0}, 0\ns_cbranch_scc1 L_wdone"); build_wm(); e("L_wdone:")
    if NMUL: e(f"s_mul_i32 s{sN}, s{sN}, {NMUL}\nv_mov_b32 v{vQ}, 0x7fffffff")
    if ONEW: e(f"s_cmp_ge_u32 s{sW}, 4\ns_cselect_b32 s{sN}, 0, s{sN}")
    e(f"s_mov_b32 s{sRem}, s{sN}")
    if PRIO == 1:
        e(f"s_cmp_ge_u32 s{sW}, 4\ns_cbranch_scc0 L_noprio\ns_setprio 1\nL_noprio:")
    e("L_sb:")
    for i in range(4): e(f"v_mfma_f32_4x4x4_16b_bf16 {vr(TP+4*i,4)}, {vr(ENT,2)}, {vr(CG+2*i,2)}, 0")
    e(f"v_add_u32 v{vEntA}, 1024, v{vEntA}\ns_sub_u32 s{sT}, s{sRem}, 64\nv_cmp_gt_i32 s[34:35], s{sT}, v{vQ}\ns_cmp_le_i32 s{sRem}, 0\ns_nop 0")
    for r in range(4):
        e(f"v_cvt_pk_bf16_f32 v{AE+2*r}, v{TP+r}, v{TP+4+r}\nv_cvt_pk_bf16_f32 v{AE+2*r+1}, v{TP+8+r}, v{TP+12+r}")
    e(f"ds_read_b128 {vr(ENT,4)}, v{vEntA}")
    for q in range(0, 64 if SCHED == 2 else 0, 4):
        assert not HILO
        b, p = q // 16, (q % 16) // 4
        cur = b % 2
        te, to = T[cur] + q % 16, T[cur] + 16 + q % 16
        e(f"; ---- quad q={q}")
        mf = lambda d, x, qq: f"v_mfma_f32_4x4x4_16b_bf16 {vr(d,4)}, {vr(AE+2*b,2)}, {vr(x,2)}, 0 cbsz:4 abid:{qq%16}"
        e("s_cbranch_scc1 L_exit")
        if PRIO == 2 and p == 0: e(f"s_setprio {3-b}")
        if PRIO == 3: e(f"s_setprio {3-p}")
        if PRIO == 4 and p % 2 == 0: e(f"s_setprio {3 - (q // 8) % 4}")
        if q + RLA == 64: e(f"v_cndmask_b32 v{META}, v4, v{ENT+2}, s[34:35]")
        if W2:
            e(f"s_waitcnt vmcnt({DIST-2})")
        else: e(f"s_waitcnt vmcnt({DIST-4})")
        for j in range(4):
            x = X + 4 * ((q + j) % D)
            if W2 and j == 2: e(f"s_waitcnt vmcnt({DIST-4})")
            e(f"""{mf(TP+8*j, x, q+j)}
v_exp_f32 v{TMP+j}, v{te+j}
{mf(TP+8*j+4, x+2, q+j)}
v_exp_f32 v{TMP+4+j}, v{to+j}""")
        for j in range(4): e(f"v_readlane_b32 s{ring(q+RLA+j)}, v{META}, {lane_of(q+RLA+j)}")
        if p == 2: e(f"v_and_or_b32 v{EFAD}, v2, s{sEFM}, v{vH16}")
        for j in range(4):
            e(f"s_and_b32 s{sOFF+j}, s{ring(q+DIST+j)}, s{sMASK}")
            e(f"v_pk_add_f32 {vr(TMP+2*j,2)}, {vr(TMP+2*j,2)}, 1.0 op_sel_hi:[1,0]")
            if not LDLATE: e(xload(q + DIST + j, sOFF + j))
        e(rmfma(1 - cur, p))
        for j in range(8):
            e(f"v_rcp_f32 v{TMP+j}, v{TMP+j}")
            if LDLATE and j >= 4: e(xload(q + DIST + j - 4, sOFF + j - 4))
        if q < 60: e(f"s_cmp_le_i32 s{sRem}, {q+4}")
        if p == 0: rd_efa((1,)); e(f"ds_read_b32 v2, v{vEfA} offset:{256*(b+2)+12}")
        if p == 2: rd_efa((0,))
        if p in (1, 3): e("s_waitcnt lgkmcnt(0)")
        for j in range(2): e(f"v_pk_mul_f32 {vr(TMP+2*j,2)}, {vr(TMP+2*j,2)}, {vr(te+2*j,2)}")
        for j in range(2): e(f"v_pk_mul_f32 {vr(TMP+4+2*j,2)}, {vr(TMP+4+2*j,2)}, {vr(to+2*j,2)}")
        for s in range(4):
            e(f"s_set_gpr_idx_on s{ring(q+s)}, gpr_idx(SRC2,DST)" if s == 0 else f"s_set_gpr_idx_idx s{ring(q+s)}")
            for j in range(4):
                e(f"v_pk_fma_f32 {vr(ACC+2*j,2)}, {vr(TMP+4*(j//2)+2*(s//2),2)}, {vr(TP+8*s+2*j,2)}, {vr(ACC+2*j,2)} op_sel:[{s%2},0,0] op_sel_hi:[{s%2},1,1]")
        e("s_set_gpr_idx_off")
    for q in range(0, 64 if SCHED == 1 else 0, 2):
        b, p = q // 16, (q % 16) // 2
        cur = b % 2
        te, to = T[cur] + q % 16, T[cur] + 16 + q % 16
        e(f"; ---- pair q={q}")
        xa, xb = X + 4 * (q % D), X + 4 * ((q + 1) % D)
        mf = lambda d, x, qq: f"v_mfma_f32_4x4x4_16b_bf16 {vr(d,4)}, {vr(AE+2*b,2)}, {vr(x,2)}, 0 cbsz:4 abid:{qq%16}"
        rl = lambda qq: f"v_readlane_b32 s{ring(qq)}, v{META}, {lane_of(qq)}"
        free = None; mwait = False; pre_v = []
        if not HILO:
            mm = rmfma(1 - cur, p - 2) if 2 <= p <= 5 else None
            if p == 1: free = "s_waitcnt lgkmcnt(0)"
            if p == 5: free = f"ds_read_b32 v{EFAD}, v{vEfA} offset:{256*(b+2)+12}"
            if p == 6: free = "s_waitcnt lgkmcnt(0)"
            if p == 7: pre_v.append(f"v_and_or_b32 v{EFAD}, v{EFAD}, s{sEFM}, v{vH16}")
            efa = (0, 1) if p == 0 else None
        else:
            mm = rmfma(1 - cur, p)
            efa = (1,) if p == 1 else (0,) if p == 5 else None
            if p == 2: free = f"ds_read_b32 v2, v{vEfA} offset:{256*(b+2)+12}"
            if p == 3 or p == 7: free = "s_waitcnt lgkmcnt(0)"
            if p == 5: pre_v.append(f"v_and_or_b32 v{EFAD}, v2, s{sEFM}, v{vH16}")
        if q + RLA == 64: pre_v.append(f"v_cndmask_b32 v{META}, v4, v{ENT+2}, s[34:35]")
        e(f"""v_exp_f32 v{TMP}, v{te}
s_cbranch_scc1 L_exit""")
        for x in pre_v: e(x)
        e(f"""v_exp_f32 v{TMP+1}, v{te+1}
s_waitcnt vmcnt({DIST-2})
{mf(TP, xa, q)}
v_exp_f32 v{TMP+2}, v{to}
s_and_b32 s{sOFF}, s{ring(q+DIST)}, s{sMASK}
{mf(TP+4, xa+2, q)}
v_exp_f32 v{TMP+3}, v{to+1}
s_and_b32 s{sOFF+1}, s{ring(q+DIST+1)}, s{sMASK}
{mf(TP+8, xb, q+1)}
{rl(q+RLA)}
{mf(TP+12, xb+2, q+1)}
{rl(q+RLA+1)}
v_pk_add_f32 {vr(TMP,2)}, {vr(TMP,2)}, 1.0 op_sel_hi:[1,0]
v_pk_add_f32 {vr(TMP+2,2)}, {vr(TMP+2,2)}, 1.0 op_sel_hi:[1,0]""")
        if mm: e(mm)
        e(f"""v_rcp_f32 v{TMP}, v{TMP}
{xload(q+DIST, sOFF)}
v_rcp_f32 v{TMP+1}, v{TMP+1}
{xload(q+DIST+1, sOFF+1)}
v_rcp_f32 v{TMP+2}, v{TMP+2}""")
        if q < 62: e(f"s_cmp_le_i32 s{sRem}, {q+2}")
        e(f"v_rcp_f32 v{TMP+3}, v{TMP+3}")
        if efa: rd_efa(efa)
        if free: e(free)
        e(f"""v_pk_mul_f32 {vr(TMP,2)}, {vr(TMP,2)}, {vr(te,2)}
v_pk_mul_f32 {vr(TMP+2,2)}, {vr(TMP+2,2)}, {vr(to,2)}""")
        for s in range(2):
            e(f"s_set_gpr_idx_on s{ring(q+s)}, gpr_idx(SRC2,DST)" if s == 0 else f"s_set_gpr_idx_idx s{ring(q+s)}")
            for j in range(4):
                e(f"v_pk_fma_f32 {vr(ACC+2*j,2)}, {vr(TMP+2*(j//2),2)}, {vr(TP+8*s+2*j,2)}, {vr(ACC+2*j,2)} op_sel:[{s},0,0] op_sel_hi:[{s},1,1]")
        e("s_set_gpr_idx_off")
    e(f"""v_add_u32 v{vEfA}, 1024, v{vEfA}
s_sub_u32 s{sRem}, s{sRem}, 64
s_branch L_sb
L_exit:""")
    if PRIO: e("s_setprio 0")
    stamp(6)
    if STAMP: e('s_memtime s[62:63]')
    e(f"""s_add_u32 s{sW0}, s{sW0}, {CAPW}
s_lshl_b32 s{sT}, s{sNR}, 8
s_cmp_lt_u32 s{sW0}, s{sT}
s_cbranch_scc0 L_epi
v_lshlrev_b32 v7, 3, v0
v_mov_b32 v2, 0
v_mov_b32 v3, 0
ds_write_b64 v7, v[2:3]
s_waitcnt vmcnt(0) lgkmcnt(0)
s_nop 15
s_barrier
s_branch L_round
L_epi:""")
    e(f"""s_mov_b32 s34, {f32(-LN2)}
s_mov_b32 s35, {f32(-LN2)}
s_lshl_b32 s{sT}, s{sW}, 2
v_mov_b32 v2, s{sT}
s_waitcnt lgkmcnt(0)""")
    for s in range(5): e(f"ds_read_b32 v{AE+s}, v2 offset:{L_ENTRY + 32*s}")
    for i in range(20): e(f"v_pk_mul_f32 {vr(ACC+2*i,2)}, {vr(ACC+2*i,2)}, s[34:35]")
    for s in range(5):
        for o in range(4): e(f"v_cvt_pk_bf16_f32 v{ACC+8*s+o}, v{ACC+8*s+o}, v{ACC+8*s+4+o}")
    FB = T0
    FA = T0 + 32
    FD = TP
    e(f"""s_and_b32 s{sT}, s{sW}, 3
s_lshl_b32 s{sT2}, s{sT}, {9 if FUSED else 13}
s_add_u32 s{sT2}, s{sT2}, {L_WM}
v_lshrrev_b32 v3, 4, v{vL}
v_mul_u32_u24 v3, {2048 - 256 if FUSED else 0}, v3
v_add3_u32 v3, v3, s{sT2}, v{vL16}
v_lshlrev_b32 v2, 2, v{vL}
s_movk_i32 s36, {4*TROW}
s_waitcnt lgkmcnt(0)""")
    e("s_waitcnt vmcnt(0)")
    if FUSED:
        srd(44, 54, 256)
        e(f"""s_cmp_eq_u32 s{sW}, 7
s_cselect_b32 s37, 0, 0x1000
v_mov_b32 v4, s37
buffer_load_dword v{TMP}, v4, s[44:47], 0 offen sc1""")
    for s in range(5): e(f"v_and_b32 v{AE+s}, 63, v{AE+s}\nv_mad_u32_u24 v{AE+s}, v{AE+s}, s36, v2")
    e("s_barrier")
    for s in range(5):
        for o in range(4): e(f"ds_write_b32 v{AE+s}, v{ACC+8*s+o} offset:{L_EF + o*TROW}")
    for k in range(8): e(f"ds_read_b128 {vr(FB+4*k,4)}, v3 offset:{(8192*(k%4) + 256*(k//4)) if FUSED else 1024*k}")
    e(f"""s_lshr_b32 s{sT2}, s{sW}, 2
v_and_b32 v4, 15, v{vL}
v_lshrrev_b32 v5, 4, v{vL}
s_movk_i32 s36, {TROW}
v_mul_u32_u24 v6, s36, v4
v_lshl_add_u32 v6, v5, 4, v6
s_mul_i32 s36, s{sT2}, {80*TROW}
v_add_u32 v6, s36, v6
v_lshlrev_b32 v7, 18, v5
v_lshl_add_u32 v7, v4, 4, v7
s_mul_i32 s36, s{sT2}, {20*256*1024}
s_lshl_b32 s37, s{sKB}, 10
s_add_u32 s36, s36, s37
s_lshl_b32 s37, s{sT}, 8
s_add_u32 s36, s36, s37
v_add_u32 v7, s36, v7
s_waitcnt lgkmcnt(0)
s_barrier""")
    def rdA(t):
        for ks in range(4): e(f"ds_read_b128 {vr(FA+16*(t%2)+4*ks,4)}, v6 offset:{L_EF + t*16*TROW + 64*ks}")
    def fin(t):
        d = FD + 8 * (t % 2); o = X + 4 * (t % 2)
        for j in range(4): e(f"v_cvt_pk_bf16_f32 v{o+j}, v{d+2*j}, v{d+2*j+1}")
        e(f"buffer_store_dwordx4 {vr(o,4)}, v7, s[{OS}:{OS+3}], 0 offen {OUTST}")
        if t < 4: e(f"v_add_u32 v7, {4*256*1024}, v7")
    rdA(0); rdA(1)
    for t in range(5):
        d = FD + 8 * (t % 2)
        for ks in range(4):
            e(f"s_waitcnt lgkmcnt({(7 if t < 4 else 3) - ks})")
            for par in range(2):
                e(f"v_mfma_f32_16x16x32_bf16 {vr(d+4*par,4)}, {vr(FA+16*(t%2)+4*ks,4)}, {vr(FB+16*par+4*ks,4)}, {'0' if ks == 0 else vr(d+4*par,4)}")
        if t + 2 < 5: rdA(t + 2)
        if t >= 1: fin(t - 1)
    e("s_nop 7")
    fin(4)
    if FUSED:
        e(f"""s_cmp_eq_u32 s{sW}, 7
s_cbranch_scc0 L_fin
s_waitcnt vmcnt(5)
v_readfirstlane_b32 s36, v{TMP}
s_cmp_eq_u32 s36, 0
s_cbranch_scc0 L_fin""")
        allrows("b")
        e("L_fin:")
    if STAMP:
        e("L_stout:\ns_waitcnt vmcnt(0)"); stamp(7)
        e(f"s_lshl_b32 s34, s2, 3\ns_add_u32 s34, s34, s{sW}\ns_add_u32 s34, s34, 4096")
        e('s_getreg_b32 s59, hwreg(HW_REG_HW_ID)'); stamp_out(8, WS, 34, 2, (60, 62, sN, 59))
    e("L_m_end:\ns_endpgm")

def desc(name, nv):
    e(f""".amdhsa_kernel {name}
.amdhsa_next_free_vgpr {nv}
.amdhsa_next_free_sgpr 100
.amdhsa_accum_offset {(nv+3)//4*4}
.amdhsa_group_segment_fixed_size 0
.amdhsa_kernarg_size 88
.amdhsa_user_sgpr_count 2
.amdhsa_user_sgpr_kernarg_segment_ptr 1
.amdhsa_system_sgpr_workgroup_id_x 1
.amdhsa_float_denorm_mode_32 3
.end_amdhsa_kernel""")

ref = open("standalone__tensor_product_equiv_tfn__graph.s.ref").read().splitlines()
for l in ref:
    if l.startswith("; Override"): break
    out.append(l)
out.append("; Generated by gen/gen.py " + " ".join(sys.argv[2:]))
if FUSED: out.append(f"; @launch grid=(256,1,1) block=(512,1,1) lds={M_LDS}")
else:
    out.append(f"; @launch kernel=bin_kernel grid=(256,1,1) block=(640,1,1) lds={K1_LDS}")
    out.append(f"; @launch kernel=main_kernel grid=(256,1,1) block=(512,1,1) lds={M_LDS}")
e('.amdgcn_target "amdgcn-amd-amdhsa--gfx950"\n.text')
if not FUSED: k1()
main()
e('.section .rodata,"a"\n.p2align 6')
if FUSED: desc(KNAME, NV)
else: desc("bin_kernel", 48); desc("main_kernel", NV)
if NOLOAD or NOVALU:
    i0 = out.index("L_sb:"); i1 = out.index("L_exit:")
    body = out[i0:i1]
    if NOLOAD: body = [l for l in body if not l.strip().startswith("buffer_load")]
    if NOVALU: body = [l for l in body if not l.strip().startswith(("v_exp", "v_rcp", "v_pk_", "v_mfma_f32_32", "s_set_gpr"))]
    out[i0:i1] = body
text = "\n".join(out) + "\n"
errs = hazard.check(text)
for x in errs: print("HAZARD", x)
open(sys.argv[1], "w").write(text)
print(f"wrote {sys.argv[1]}: NV={NV} M_LDS={M_LDS} K1_LDS={K1_LDS} hazards={len(errs)}")
```

```python
import sys, struct, math
sys.path.insert(0, "gen")
import hazard

OPT = dict(STAMP=0, SQ=16, SLOWT=0, NOLOAD=0, NOV="", R=12, EF1=2, PRE=2, YBAR=1, ROT=1, CPF=1, EARLY=0, UNR=5,
           OUTST="sc1", PRIO=4, XP=0, TBAR=1, RPOS=4, RTCH=0, GPOS=1, EW=-1, CPOS=2, SCAP=0, AL=-1, E64=0, BPOS=1, IPOS=3)
for a in sys.argv[2:]:
    k, v = a.split("=")
    assert k in OPT, k
    OPT[k] = int(v) if v.lstrip("-").isdigit() else v.replace("+", " ")
globals().update(OPT)

KNAME = "standalone__tensor_product_equiv_tfn__graph_kernel"
N, E, C = 10000, 320000, 128
CH = 1250; CHP = 1280
WS_EF = 0; WS_YM = 256 * CHP * 32; WS_TBL = WS_YM + 256 * CHP * 12
WS_STAMP = 0x1000000
WS_SIZE = 0x1000000 + (0x100000 if STAMP else 0)
assert WS_TBL + 256 * 1024 <= WS_STAMP
def f32(x): return "0x%08x" % struct.unpack("<I", struct.pack("<f", x))[0]
LOG2E = math.log2(math.e); LN2 = math.log(2.0)
RMUL, RSH = {4: (6711, 24), 8: (6711, 23), 12: (5033, 22)}[R]
assert (9999 * RMUL) >> RSH == R - 1
SPIN = 400000
OOB = 0x00ffffff

CAPW = 224; TROW = 272
L_HIST = 0; L_MAXC = 2048; A_HIST = 3072; L_ENTRY = 4096; L_TBL = 4608; L_CG = 6656
L_LIST = 8192; L_WR = 16384
L_TILE = 0
L_EF = 160 * TROW; L_ST = L_EF + 8 * CAPW * 32; L_WM = L_ST + 8 * CAPW * 16; L_CNT = L_WM + 32768
M_LDS = L_CNT + 16
A_YM = L_EF; A_EF = A_YM + CHP * 12; A_INV = L_LIST; A_START = L_LIST + 2560
assert M_LDS <= 163840 and A_EF < 65536 and A_EF + CHP * 32 <= L_WM and 40 * R * 4 <= 2048 and 5 * R <= 64 and R % 4 == 0

D = 8; DIST = 8
ACC = 8; X = 48; T0 = 80; T = [T0, T0 + 32]; TP = T0 + 64; TMP = TP + 32; AE = TMP + 8; EFA = AE + 8; WB = EFA + 8
CG = WB + 16; ENT = CG + 8; META = ENT + 4; EFAD = META + 1
vEntA = EFAD + 1; vEfA = vEntA + 1; vL16 = vEfA + 1; vH16 = vL16 + 1; vQ = vH16 + 1
vPS = vQ + 1; vPE = vPS + 1; vDL = vPE + 1; vPOS = vDL + 1; vJUNK = vPOS + 1; vBA = vJUNK + 1; vAA = vBA + 1; vOA = vAA + 1; vCNT = vOA + 1; vCA = vCNT + 1; NV = vCA + 1
vL = 1
assert NV <= 256
XS, WS, OS = 4, 8, 12
sW, sKB, sN, sCW, sW0, sMAXC, sT, sT2, sNT, sS0, sRem = 16, 17, 18, 19, 24, 25, 26, 27, 28, 29, 30
mU0, mU1 = 20, 22
sMASK, sDUM, sEFM = 31, 32, 33
mV = 36
DG = 44
sROW = 48
sFIN = 53
sK = 56
RING = 64; sOFF = 80
DUMMY = (N * 1024) | 40
MAP39 = [0, 5, 6, 3, 0, 7, 2, 4, 1, 0, 2, 7, 1, 0, 6, 3, 5, 4, 1, 7, 4, 6, 3, 2, 5, 4, 5, 7, 2, 1, 3, 6, 4, 1, 3, 2, 6, 7, 5, 0]
MAP40 = [7, 0, 5, 2, 4, 3, 1, 6, 4, 1, 6, 3, 7, 2, 0, 5, 5, 6, 3, 0, 7, 1, 2, 4, 2, 5, 3, 1, 4, 6, 0, 7, 6, 1, 4, 3, 2, 0, 5, 7]
def posmap(m):
    c = [0] * 8; o = []
    for w in m: o.append(c[w] * 8 + w); c[w] += 1
    assert sorted(o) == list(range(40))
    return o

out = []
def e(s=""):
    for l in s.split("\n"):
        l = l.strip()
        if not l: continue
        out.append(l if l.endswith(":") or l.startswith((".", ";")) else "    " + l)
def vr(a, n): return f"v[{a}:{a+n-1}]" if n > 1 else f"v{a}"
def S(a): return f"s[{a}:{a+3}]"
def P(a): return f"s[{a}:{a+1}]"
def srd(d, base, nbytes):
    e(f"s_mov_b32 s{d}, s{base}\ns_mov_b32 s{d+1}, s{base+1}\ns_mov_b32 s{d+2}, {nbytes}\ns_mov_b32 s{d+3}, 0x00020000")
DPPS = ("row_shr:1 row_mask:0xf", "row_shr:2 row_mask:0xf", "row_shr:4 row_mask:0xf", "row_shr:8 row_mask:0xf",
        "row_bcast:15 row_mask:0xa", "row_bcast:31 row_mask:0xc")
def scan(v, fill=()):
    fill = list(fill)
    for m in DPPS:
        k = 0
        while k < 2 and fill: e(fill.pop(0)); k += 1
        if k < 2: e(f"s_nop {1-k}")
        e(f"v_add_u32_dpp v{v}, v{v}, v{v} {m} bank_mask:0xf")
    for x in fill: e(x)
def scan2(v1, v2, fill=()):
    fill = list(fill)
    e(fill.pop(0) if fill else "s_nop 0")
    for m in DPPS:
        e(fill.pop(0) if fill else "s_nop 0")
        e(f"v_add_u32_dpp v{v1}, v{v1}, v{v1} {m} bank_mask:0xf\nv_add_u32_dpp v{v2}, v{v2}, v{v2} {m} bank_mask:0xf")
    for x in fill: e(x)
def stamp(*specs):
    for i, st in specs:
        if STAMP and (st == STAMP or st == 0):
            e(f"s_memrealtime s[{84+2*i}:{85+2*i}]\ns_waitcnt lgkmcnt(0)")

tY = T0
tI = T0 + 16
tR = T0 + 28
vMAP, vNODE, vR4, vS = T0 + 32, T0 + 33, T0 + 34, T0 + 35
vREF, vTA, vP2 = X + 11, X + 10, X + 4

def lane_helpers():
    e(f"""s_mul_i32 s{sT}, s{sW}, 5
v_add_u32 v{vNODE}, s{sT}, v{vL}
v_subrev_u32 v3, 40, v{vNODE}
v_min_u32 v{vNODE}, v{vNODE}, v3
v_mul_u32_u24 v3, 205, v{vL}
v_lshrrev_b32 v3, 10, v3
v_mul_u32_u24 v2, 5, v3
v_sub_u32 v{vS}, v{vL}, v2""")
    if ROT:
        e(f"""s_lshr_b32 s{sT}, s{sKB}, 5
s_mul_i32 s{sT}, s{sT}, {R}
s_lshr_b32 s{sT}, s{sT}, 3
v_add_u32 v3, s{sT}, v3
v_subrev_u32 v2, {R}, v3
v_min_u32 v3, v3, v2""")
    e(f"v_lshlrev_b32 v{vR4}, 2, v3")

def common_init():
    e(f"""s_mov_b32 s{mU0}, 0x0f0f0f0f
s_mov_b32 s{mU0+1}, 0x0f0f0f0f
s_mov_b32 s{mU1}, 0xf0f0f0f0
s_mov_b32 s{mU1+1}, 0xf0f0f0f0
s_mov_b32 s{sMASK}, 0xfffffc00
s_mov_b32 s{sDUM}, {hex(DUMMY)}
s_mov_b32 s{sEFM}, 0xffe0
s_mov_b32 s{sW0}, 0
s_mov_b32 s{sMAXC}, 0""")
    for i in range(40): e(f"v_mov_b32 v{ACC+i}, 0")
    for i in range(8): e(f"v_mov_b32 v{EFA+i}, 0")
    e(f"v_mov_b32 v{vMAP}, 0\nv_mov_b32 v{vPOS}, 0\ns_cmp_lt_u32 s{sKB}, {N - 39*256}\ns_cbranch_scc1 L_map40")
    for r, p in enumerate(posmap(MAP39)): e(f"v_writelane_b32 v{vMAP}, {p}, {r}")
    e("s_branch L_mapd\nL_map40:")
    for r, p in enumerate(posmap(MAP40)): e(f"v_writelane_b32 v{vMAP}, {p}, {r}")
    e("L_mapd:")
    e(f"""v_and_b32 v2, 3, v{vL}
v_lshrrev_b32 v3, 2, v{vL}
v_lshl_add_u32 v{vQ}, v2, 4, v3
v_lshrrev_b32 v2, 5, v{vL}
v_lshlrev_b32 v{vH16}, 4, v2""")

def epi_addr():
    e(f"""s_and_b32 s{sT}, s{sW}, 3
s_lshl_b32 s58, s{sT}, 9
s_add_u32 s58, s58, {L_WM}
v_lshrrev_b32 v3, 4, v{vL}
v_mul_u32_u24 v2, {2048 - 256}, v3
v_add3_u32 v{vBA}, v2, s58, v{vL16}
s_lshr_b32 s58, s{sW}, 2
v_and_b32 v2, 15, v{vL}
v_mul_u32_u24 v{vAA}, {TROW}, v2
v_lshl_add_u32 v{vAA}, v3, 4, v{vAA}
s_mul_i32 s59, s58, {80*TROW}
v_add_u32 v{vAA}, s59, v{vAA}
v_lshlrev_b32 v{vOA}, 18, v3
v_lshl_add_u32 v{vOA}, v2, 4, v{vOA}
s_mul_i32 s58, s58, {20*256*1024}
s_lshl_b32 s59, s{sKB}, 10
s_add_u32 s58, s58, s59
s_lshl_b32 s59, s{sT}, 8
s_add_u32 s58, s58, s59
v_add_u32 v{vOA}, s58, v{vOA}
v_mov_b32 v{vCA}, {L_CNT}""")

def build_cg():
    e(f"""v_and_b32 v2, 0x30, v{vL}
v_and_b32 v3, 3, v{vL}
v_lshl_add_u32 v2, v3, 2, v2
v_bfe_u32 v7, v{vL}, 2, 2
v_add_lshl_u32 v2, v2, v7, 1
ds_write_b16 v2, v{X+9} offset:{L_CG}
v_lshlrev_b32 v3, 3, v3""")
    for k in range(4): e(f"ds_read_b64 {vr(CG+2*k,2)}, v3 offset:{L_CG + 32*k}")

def build_wm():
    wM = TP + 16; fM = T0 + 32
    e(f"""v_lshrrev_b32 v7, 5, v0
v_and_b32 v3, 31, v{vL}
v_lshlrev_b32 v7, 11, v7
v_add_u32 v7, {L_WM}, v7
v_lshl_add_u32 v2, v3, 3, v7""")
    for m in range(8): e(f"ds_read_b64 {vr(wM+2*m,2)}, v2 offset:{256*m}")
    e(f"""s_mov_b32 s58, 0x05040100
s_mov_b32 s59, 0x07060302
v_bfe_u32 v3, v0, 3, 2
v_lshl_add_u32 v7, v3, 9, v7
v_and_b32 v3, 7, v0
v_lshl_add_u32 v7, v3, 5, v7
v_mov_b32 v5, {L_CNT}
v_mov_b32 v6, 1
s_waitcnt lgkmcnt(0)""")
    for q in range(4):
        for mp in range(4):
            e(f"v_perm_b32 v{fM+4*q+mp}, v{wM+2*(2*mp+1)+q//2}, v{wM+2*(2*mp)+q//2}, s{58 + q%2}")
        e(f"ds_write_b128 v7, {vr(fM+4*q,4)} offset:{256*(q%2) + 16*(q//2)}")
    e("s_mov_b64 exec, 1\nds_add_u32 v5, v6\ns_mov_b64 exec, -1")

def build_wb():
    wR = TP; t2 = TP + 16
    e(f"""v_and_b32 v3, 31, v{vL}
v_lshlrev_b32 v2, 7, v{vH16}
v_lshl_add_u32 v2, v3, 2, v2
v_add_u32 v3, 128, v2""")
    for u in range(2):
        for m in range(0, 8, 2): e(f"ds_read2st64_b32 {vr(wR+8*u+m,2)}, v{2+u} offset0:{L_WR//256 + m} offset1:{L_WR//256 + m + 1}")
    e(f"s_mov_b32 s{sK}, {f32(-LOG2E)}\ns_mov_b32 s{sK+1}, {f32(-LOG2E)}")
    for u in range(2):
        for mp in range(4):
            a0, a1 = wR + 8*u + 2*mp, wR + 8*u + 2*mp + 1
            e(f"""s_waitcnt lgkmcnt({7 - 4*u - mp})
v_lshlrev_b32 v{t2}, 16, v{a0}
v_lshlrev_b32 v{t2+1}, 16, v{a1}
v_and_b32 v{t2+2}, 0xffff0000, v{a0}
v_and_b32 v{t2+3}, 0xffff0000, v{a1}
v_pk_mul_f32 {vr(t2,2)}, {vr(t2,2)}, {P(sK)}
v_pk_mul_f32 {vr(t2+2,2)}, {vr(t2+2,2)}, {P(sK)}
v_cvt_pk_bf16_f32 v{WB+4*(2*u)+mp}, v{t2}, v{t2+1}
v_cvt_pk_bf16_f32 v{WB+4*(2*u+1)+mp}, v{t2+2}, v{t2+3}""")

def allrows():
    e(f"""v_mov_b32 v{TP}, 0
v_mov_b32 v{TP+1}, 1
s_mov_b64 exec, 1
buffer_store_dword v{TP+1}, v{TP}, {S(DG)}, 0 offen sc1
s_mov_b64 exec, -1""")

def poll(tag, vd, shift, first_issued):
    ld = f"buffer_load_dword v{vd}, v{vTA}, {S(WS)}, 0 offen sc1"
    if first_issued: e(f"s_branch L_pw{tag}")
    e(f"""L_p{tag}:
{ld}
L_pw{tag}:
s_waitcnt vmcnt(0)
v_xor_b32 v{TP}, v{vd}, v{vREF}""")
    if shift: e(f"v_lshlrev_b32 v{TP}, {shift}, v{TP}")
    e(f"""v_cmpx_le_i32 vcc, 0, v{TP}
s_cbranch_execz L_pd{tag}
s_sub_u32 s{sRem}, s{sRem}, 1
s_cbranch_scc1 L_end
s_and_b32 s58, s{sRem}, 7
s_cbranch_scc1 L_p{tag}
v_mov_b32 v{TP}, 0
buffer_load_dword v{TP+1}, v{TP}, {S(DG)}, 0 offen sc1
s_waitcnt vmcnt(0)
v_readfirstlane_b32 s{sFIN}, v{TP+1}
s_cmp_eq_u32 s{sFIN}, 0
s_cbranch_scc1 L_p{tag}
{ld}
s_waitcnt vmcnt(0)
L_pd{tag}:
s_mov_b64 exec, -1""")

def phase_a():
    SA, SB, SC, SD = 64, 68, 72, 76
    m2, mE = 60, 62; mT = 34; mY = 35
    aD, aS = TP, TP + 3
    aR = TP + 8
    aK, aB = TP + 20, TP + 23
    aC, aST = TP + 28, X
    aE, aO, aE1 = X + 12, X + 16, X + 20
    vE4, vE8, vY16, vP16 = X + 5, X + 6, X + 7, X + 8
    vRW = X + 24
    e(f""".globl {KNAME}
.p2align 8
.type {KNAME},@function
{KNAME}:
s_cmp_ge_u32 s2, 256
s_cbranch_scc1 L_end""")
    if STAMP: e("s_memrealtime s[84:85]")
    if SLOWT:
        e(f"s_and_b32 s58, s2, 15\ns_cmp_eq_u32 s58, {SLOWT-1}\ns_cbranch_scc0 L_slt\ns_sleep 127\ns_sleep 127\ns_lshr_b32 s58, s2, 7\ns_cbranch_scc0 L_slt\ns_sleep 127\ns_sleep 127\nL_slt:")
    e(f"""s_load_dwordx16 s[36:51], s[0:1], 0
s_load_dwordx4 s[52:55], s[0:1], 64
s_load_dwordx2 s[56:57], s[0:1], 80
v_lshrrev_b32 v2, 6, v0
v_and_b32 v{vL}, 63, v0
v_readfirstlane_b32 s{sW}, v2
s_and_b32 s{sKB}, s2, 7
s_lshl_b32 s{sKB}, s{sKB}, 5
s_lshr_b32 s{sT}, s2, 3
s_or_b32 s{sKB}, s{sKB}, s{sT}
v_lshlrev_b32 v7, 3, v0
v_mov_b32 v2, 0
v_mov_b32 v3, 0
v_mov_b32 v4, {L_CNT}
ds_write_b64 v7, v[2:3]
ds_write_b32 v4, v2
v_lshlrev_b32 v{vL16}, 4, v{vL}
s_mul_i32 s{sT}, s{sW}, 160
v_add_u32 v6, s{sT}, v{vL}
v_lshlrev_b32 v{vE4}, 2, v6
v_lshlrev_b32 v{vE8}, 3, v6
s_mul_i32 s{sT}, s{sW}, {120*16}
v_add_u32 v{vY16}, s{sT}, v{vL16}
s_mul_i32 s{sT}, s{sW}, {320*16}
v_add_u32 v{vP16}, s{sT}, v{vL16}
s_cmp_lt_u32 s{sW}, 7
s_cselect_b32 s{m2}, -1, 3
s_mov_b32 s{m2+1}, 0
s_cselect_b64 {P(mE)}, -1, 15
s_cselect_b32 s{mT}, -1, 0xff
s_cselect_b32 s{mY}, 0xffffff, s{mT}
s_mul_i32 s58, s{sKB}, {CH*4}
s_mul_i32 s59, s{sKB}, {CH*8}
s_lshl_b32 s{sS0}, s{sKB}, 6
s_add_u32 s{sS0}, s{sS0}, {WS_TBL}
s_waitcnt lgkmcnt(0)""")
    def ld3(op, d, n, va, Sd, so, step):
        for k in range(3):
            if k == 2: e(f"s_mov_b64 exec, {P(m2)}")
            e(f"{op} {vr(d[k], n)}, v{va}, {S(Sd)}, s{so} offen offset:{step*k}")
        e("s_mov_b64 exec, -1")
    def cpf():
        e(f"""s_getpc_b64 s[82:83]
L_pc:
s_lshr_b32 s80, s2, 3
s_lshl_b32 s80, s80, 3
s_add_u32 s80, s80, s{sW}
s_lshl_b32 s81, s80, 6
s_min_u32 s81, s81, L_end-L_pc
s_load_dword s3, s[82:83], s81""")
        if RTCH: e(f"""s_and_b32 s81, s2, 7
s_lshl_b32 s81, s81, 8
s_add_u32 s81, s81, s80
s_lshl_b32 s81, s81, 7
s_add_u32 s81, s81, {WS_TBL}
s_load_dword s3, s[56:57], s81
s_add_u32 s81, s81, 64
s_load_dword s3, s[56:57], s81""")
        e(f"""s_lshl_b32 s81, s80, 7
s_load_dword s3, s[50:51], s81
s_add_u32 s81, s81, 64
s_load_dword s3, s[50:51], s81""")
        if RPOS >= 3: e("""s_lshl_b32 s81, s80, 4
s_load_dword s3, s[46:47], s81
s_and_b32 s81, s80, 64
s_load_dword s3, s[48:49], s81""")
    srd(SA, 40, E * 4)
    ld3("buffer_load_dword", [aD, aD+1, aD+2], 1, vE4, SA, 58, 256)
    if CPF and CPOS == 2: cpf()
    srd(SB, 38, E * 4)
    ld3("buffer_load_dword", [aS, aS+1, aS+2], 1, vE4, SB, 58, 256)
    srd(SC, 42, E * 8)
    ld3("buffer_load_dwordx2", [aR, aR+4, aR+8], 2, vE8, SC, 59, 512)
    if CPF and CPOS == 0: cpf()
    srd(WS, 56, WS_SIZE)
    TA = [f"v_lshrrev_b32 v5, 1, v0", f"s_lshr_b32 s59, s{sKB}, 4", f"s_mul_i32 s59, s59, {16384 - 64}", f"s_lshl2_add_u32 s59, s{sKB}, s59",
          f"s_add_u32 s59, s59, {WS_TBL}", f"v_lshl_add_u32 v{vTA}, v5, 6, s59"]
    def side_a():
        if GPOS == 2:
            for x in TA: e(x)
            e(f"buffer_load_dword v{vREF}, v{vTA}, {S(WS)}, 0 offen")
        e(f"""v_lshrrev_b32 v7, 2, v{vL}
v_mul_u32_u24 v7, {16384 - 64}, v7
v_add_u32 v{vRW}, v7, v{vL16}
s_cmp_eq_u32 s{sW}, 7
s_cselect_b32 s59, s{sS0}, 0x40000000
v_add_u32 v7, s59, v{vRW}
buffer_load_dwordx4 {vr(aO,4)}, v7, {S(WS)}, 0 offen""")
    def side_b():
        srd(SB, 46, 16 * C * 2); srd(SA, 48, 128)
        e(f"""v_lshlrev_b32 v7, 1, v{vL}
s_lshl_b32 s58, s{sW}, 9
s_add_u32 m0, s58, {L_WR}
s_mov_b32 exec_hi, 0
buffer_load_dwordx4 v{vL16}, {S(SB)}, s58 offen lds
s_mov_b32 exec_hi, -1
buffer_load_ushort v{X+9}, v7, {S(SA)}, 0 offen""")
    def side_loads(): side_a(); side_b()
    nS = 0 if RPOS == 3 else 1 if RPOS >= 4 else 3 + (GPOS == 2)
    if RPOS == 0: side_loads()
    if RPOS == 5: side_a()
    srd(SD, 44, E * 32)
    e("s_barrier")
    if RPOS == 1: side_loads()
    e(f"s_add_u32 m0, s{sT}, {A_EF}\ns_mul_i32 s58, s{sKB}, {CH*32}")
    for k in range(4): e(f"buffer_load_dwordx4 v{vP16}, {S(SD)}, s58 offen offset:{1024*k} lds")
    e(f"""s_add_u32 m0, s{sT}, {A_EF + 4096}
s_add_u32 s58, s58, 4096
s_mov_b64 exec, {P(mE)}
buffer_load_dwordx4 v{vP16}, {S(SD)}, s58 offen lds
s_mov_b64 exec, -1
v_mov_b32 v6, 1""")
    if RPOS == 2: side_loads()
    if RPOS == 4: side_a()
    if CPF and CPOS == 1: cpf()
    stamp((1, 2))
    e(f"s_waitcnt vmcnt({11+nS})")
    stamp((2, 2))
    for k in range(3):
        if k == 2: e(f"s_mov_b64 exec, {P(m2)}")
        e(f"v_and_b32 v2, 255, v{aD+k}\nv_lshlrev_b32 v{aB+k}, 2, v2\nds_add_rtn_u32 v{aK+k}, v{aB+k}, v6 offset:{A_HIST}")
    e(f"s_mov_b64 exec, -1\ns_movk_i32 s{sT2}, {RMUL}\ns_waitcnt vmcnt({8+nS})")
    for k in range(3):
        e(f"""v_lshrrev_b32 v3, 8, v{aD+k}
v_mul_u32_u24 v2, s{sT2}, v{aS+k}
v_lshrrev_b32 v2, {RSH}, v2
v_mad_u32_u24 v2, v3, {R}, v2
v_lshl_or_b32 v{aR+4*k+2}, v{aS+k}, 10, v2""")
    e(f"""s_waitcnt lgkmcnt(0)
s_barrier
ds_read_b128 {vr(aC,4)}, v{vL16} offset:{A_HIST}
s_waitcnt lgkmcnt(0)
v_add_u32 v{aST+2}, v{aC}, v{aC+1}
v_add_u32 v{aST+3}, v{aST+2}, v{aC+2}
v_add_u32 v2, v{aST+3}, v{aC+3}
v_mov_b32 v3, v2""")
    scan(3, [f"v_lshlrev_b32 v4, 2, v{vE8}"] + (TA if GPOS != 2 else []))
    e(f"""v_sub_u32 v{aST}, v3, v2
v_add_u32 v{aST+1}, v{aST}, v{aC}
v_add_u32 v{aST+2}, v{aST}, v{aST+2}
v_add_u32 v{aST+3}, v{aST}, v{aST+3}
ds_write_b128 v{vL16}, {vr(aST,4)} offset:{A_START}""")
    for k in range(3):
        if k == 2: e(f"s_mov_b64 exec, {P(m2)}")
        e(f"ds_read_b32 v{aB+k}, v{aB+k} offset:{A_START}")
    e("s_mov_b64 exec, -1")
    if GPOS == 0: e(f"buffer_load_dword v{vREF}, v{vTA}, {S(WS)}, 0 offen")
    for k in range(4): e(f"v_lshl_or_b32 v{aE+k}, v{aC+k}, 16, v{aST+k}")
    e(f"s_mov_b32 s{sT2}, {A_YM}\ns_waitcnt vmcnt({5 + nS + (GPOS == 0)}) lgkmcnt(0)")
    for k in range(3):
        if k == 2: e(f"s_mov_b64 exec, {P(m2)}")
        e(f"""v_add_lshl_u32 v2, v{aB+k}, v{aK+k}, 1
v_add_u32 v3, {2048*k}, v4
ds_write_b16 v2, v3 offset:{A_INV}
v_mad_u32_u24 v2, v2, 6, s{sT2}
ds_write2_b32 v2, v{aR+4*k}, v{aR+4*k+1} offset0:0 offset1:1
ds_write_b32 v2, v{aR+4*k+2} offset:8""")
    e(f"""s_mov_b64 exec, -1
v_lshrrev_b32 v2, 4, v{vP16}
v_and_b32 v2, 0xffe, v2
v_and_b32 v5, 1, v{vL}
v_lshlrev_b32 v5, 4, v5
s_waitcnt lgkmcnt(0)
s_barrier""")
    stamp((1, 1), (3, 2))
    aI = TP + 20
    if GPOS == 1: e(f"buffer_load_dword v{vREF}, v{vTA}, {S(WS)}, 0 offen")
    if RPOS == 3: side_a()
    if RPOS >= 3 and BPOS == 1: side_b()
    for k in range(2): e(f"ds_read_b128 {vr(aR+4*k,4)}, v{vY16} offset:{A_YM + 1024*k}")
    for k in range(5): e(f"ds_read_u16 v{aI+k}, v2 offset:{A_INV + 64*k}")
    srd(XS, 36, N * 1024); srd(OS, 52, N * 1024)
    common_init()
    if IPOS & 1: lane_helpers()
    if IPOS & 2: epi_addr()
    if RPOS >= 3 and BPOS == 0: side_b()
    srd(SC, 50, C * C * 2); srd(DG, 54, 256)
    e("s_waitcnt lgkmcnt(0)")
    for k in range(5): e(f"v_or_b32 v{aI+k}, v{aI+k}, v5")
    e(f"""s_mul_i32 s{sT2}, s{sKB}, {CHP*12}
s_add_u32 s{sT2}, s{sT2}, {WS_YM}
s_mul_i32 s58, s{sKB}, {CHP*32}
s_add_u32 s59, s58, 4096
s_waitcnt vmcnt({EW if EW >= 0 else 3 if RPOS == 5 else 4 if RPOS >= 2 else int(GPOS != 2)})
s_barrier""")
    stamp((4, 2))
    aF = T0
    for k in range(5):
        if k == 4: e(f"s_mov_b64 exec, {P(mE)}")
        e(f"ds_read_b128 {vr(aF+4*k,4)}, v{aI+k} offset:{A_EF}")
    e(f"""s_mov_b64 exec, -1
buffer_store_dwordx4 {vr(aR,4)}, v{vY16}, {S(WS)}, s{sT2} offen sc1
s_mov_b32 exec_hi, s{mY}
{"s_waitcnt vmcnt(0)" if SCAP == 1 else ""}
buffer_store_dwordx4 {vr(aR+4,4)}, v{vY16}, {S(WS)}, s{sT2} offen offset:1024 sc1
s_mov_b32 exec_hi, -1""")
    for k in range(5):
        if k == 4: e(f"s_mov_b32 exec_lo, s{mT}\ns_mov_b32 exec_hi, s{mE+1}")
        if SCAP and k + 2 >= SCAP: e(f"s_waitcnt vmcnt({SCAP-1})")
        e(f"s_waitcnt lgkmcnt({4-k})\nbuffer_store_dwordx4 {vr(aF+4*k,4)}, v{vP16}, {S(WS)}, s{58 + k//4} offen offset:{1024*(k%4)} sc1")
    e("s_mov_b64 exec, -1")
    stamp((5, 2))
    e(f"s_mov_b32 s{sRem}, {SPIN}\ns_mov_b32 s{sFIN}, 0\ns_mov_b32 s59, 0xc0000000\ns_waitcnt vmcnt(7)")
    for k in range(4):
        e(f"v_not_b32 v{aO+k}, v{aO+k}\nv_and_or_b32 v{aE+k}, v{aO+k}, s59, v{aE+k}")
        if EARLY: e(f"v_xor_b32 v{aE1+k}, 0x40000000, v{aE+k}")
    if EARLY:
        e(f"s_cmp_eq_u32 s{sW}, 7\ns_cbranch_scc0 L_nrow1\nbuffer_store_dwordx4 {vr(aE1,4)}, v{vRW}, {S(WS)}, s{sS0} offen sc1\nL_nrow1:")
    build_cg()
    if not IPOS & 1: lane_helpers()
    if not IPOS & 2: epi_addr()
    e(f"s_lshl_b32 s58, s{sW}, 12\ns_add_u32 m0, s58, {L_WM}\ns_cmp_eq_u32 s{sW}, 7\ns_waitcnt vmcnt(0) lgkmcnt(0)")
    stamp((6, 2))
    e(f"""s_barrier
s_cbranch_scc0 L_nrow2
buffer_store_dwordx4 {vr(aE,4)}, v{vRW}, {S(WS)}, s{sS0} offen sc1
L_nrow2:""")
    if TBAR: e("s_barrier")
    stamp((2, 1))
    if EARLY: e(f"buffer_load_dword v6, v{vTA}, {S(WS)}, 0 offen sc1")
    for k in range(4): e(f"buffer_load_dwordx4 v{vL16}, {S(SC)}, s58 offen offset:{1024*k} lds")
    build_wb()
    poll("a", 6, 0 if EARLY else 1, EARLY)
    stamp((1, 3), (2, 8))
    if not EARLY: stamp((3, 1))
    if EARLY:
        e(f"buffer_load_dword v{vP2}, v{vTA}, {S(WS)}, 0 offen sc1")
    e(f"""v_and_b32 v3, 1, v0
v_cmp_eq_u32 vcc, 0, v3
v_bfe_u32 v2, v6, 16, 11
v_lshrrev_b32 v4, 1, v0
v_cndmask_b32 v{vPE}, 0, v2, vcc""")
    scan(vPE, [f"v_and_b32 v6, 0xffff, v6", f"s_movk_i32 s{sT}, {CHP}", f"v_mad_u32_u24 v6, v4, s{sT}, v6"])
    e(f"""v_sub_u32 v{vPS}, v{vPE}, v2
v_readlane_b32 s{sCW}, v{vPE}, 63
v_sub_u32 v{vDL}, v6, v{vPS}""")

NEF = CAPW // 32
def phase_b():
    e("L_round:")
    e(f"""s_lshl_b32 s{sT}, s{sW}, 10
s_add_u32 s{sT}, s{sT}, {L_LIST}
v_and_b32 v2, 1, v0
v_max_u32 v3, s{sW0}, v{vPS}
v_add_u32 v3, v3, v2
s_add_u32 s{sT2}, s{sW0}, {CAPW}
v_min_u32 v4, s{sT2}, v{vPE}
v_add_u32 v5, v{vDL}, v3
s_lshl_b32 s{sT2}, s{sW0}, 2
s_sub_u32 s{sT2}, s{sT}, s{sT2}
v_lshl_add_u32 v6, v3, 2, s{sT2}
v_sub_u32 v4, v4, v3
L_exp:""")
    for k in range(UNR):
        e(f"v_cmpx_lt_i32 vcc, {2*k}, v4\nds_write_b32 v6, v5 offset:{8*k}\nv_add_u32 v5, 2, v5")
    e(f"""v_cmpx_lt_i32 vcc, {2*UNR}, v4
s_cbranch_execz L_exp_done
v_add_u32 v6, {8*UNR}, v6
v_subrev_u32 v4, {2*UNR}, v4
s_branch L_exp
L_exp_done:
s_mov_b64 exec, -1
v_lshl_add_u32 v3, v{vL}, 2, s{sT}
v_lshrrev_b32 v7, 1, v{vL}
v_lshl_add_u32 v4, v7, 2, s{sT}""")
    for k in (3, 2, 1, 0): e(f"ds_read_b32 v{tI+k}, v3 offset:{256*k}")
    for k in range(NEF): e(f"ds_read_b32 v{tI+4+k}, v4 offset:{128*k}")
    e(f"""s_sub_i32 s{sNT}, s{sCW}, s{sW0}
s_max_i32 s{sNT}, s{sNT}, 0
s_min_i32 s{sNT}, s{sNT}, {CAPW}
v_lshlrev_b32 v2, 4, v2
v_mov_b32 v5, {hex(OOB)}
v_mov_b32 v3, s{sCW}
v_mov_b32 v4, {L_MAXC}""")
    for k in range(4):
        e(f"s_sub_i32 s{sT2}, s{sNT}, {64*k}\nv_cmp_gt_i32 {P(mV+2*k)}, s{sT2}, v{vL}")
    e(f"s_waitcnt lgkmcnt({NEF})")
    for k in range(4):
        e(f"v_cndmask_b32 v{tI+k}, v5, v{tI+k}, {P(mV+2*k)}\nv_mul_u32_u24 v{tI+k}, 12, v{tI+k}")
    e(f"s_mul_i32 s80, s{sW}, {CAPW*32}\ns_mov_b32 s{sT}, {WS_YM}")
    if EARLY:
        e(f"s_or_b32 s58, s{sW0}, s{sFIN}\ns_cbranch_scc1 L_nop2")
        poll("b", vP2, 1, True)
        e("L_nop2:")
        stamp((3, 1))
    stamp((2, 3))
    for k in (3, 2, 1, 0):
        if k == 3: e(f"s_cmp_le_u32 s{sNT}, 192\ns_cbranch_scc1 L_sk3")
        e(f"buffer_load_dwordx3 {vr(tY+4*k,3)}, v{tI+k}, {S(WS)}, s{sT} offen sc1")
        if k == 3: e("L_sk3:")
    e("s_waitcnt lgkmcnt(0)\nds_max_u32 v4, v3")
    for k in range(NEF):
        e(f"""s_sub_i32 s{sT2}, s{sNT}, {32*k}
v_cmp_gt_i32 {P(64+2*k)}, s{sT2}, v7""")
    for k in range(NEF):
        e(f"v_cndmask_b32 v{tI+4+k}, v5, v{tI+4+k}, {P(64+2*k)}\nv_lshl_or_b32 v{tI+4+k}, v{tI+4+k}, 5, v2")
    if YBAR: e("s_barrier")
    def ef_dma(k):
        e(f"s_add_u32 m0, s80, {L_EF + 1024*k}\ns_cmp_le_u32 s{sNT}, {32*(k+1)}\nbuffer_load_dwordx4 v{tI+4+k}, {S(WS)}, 0 offen sc1 lds")
    for k in range(EF1): ef_dma(k)
    e(f"v_mov_b32 v6, 1\nv_mul_u32_u24 v3, {4*R}, v{vNODE}")
    for i, k in enumerate((3, 2, 1, 0)):
        e(f"""s_waitcnt vmcnt({EF1 + 3 - i})
s_mov_b64 exec, {P(mV+2*k)}
v_and_b32 v2, 0x3ff, v{tY+4*k+2}
v_lshlrev_b32 v{tY+4*k+3}, 2, v2
ds_add_rtn_u32 v{tR+k}, v{tY+4*k+3}, v6 offset:{L_HIST}""")
    e("s_mov_b64 exec, -1\ns_waitcnt lgkmcnt(0)\ns_barrier")
    stamp((3, 3))
    dg = TP + 4
    for j in range(R // 4): e(f"ds_read_b128 {vr(dg+4*j,4)}, v3 offset:{L_HIST + 16*j}")
    e("ds_read_b32 v4, v4")
    e(f"s_lshl_b32 s{sT}, s2, 3\ns_add_u32 s{sT}, s{sT}, s{sW}\ns_add_u32 s{sT}, s{sT}, s{sW0}\ns_cmp_eq_u32 s{sT}, 7\ns_cbranch_scc0 L_noall")
    allrows()
    e(f"L_noall:\ns_cmp_le_u32 s{sNT}, {32*EF1}")
    for k in range(EF1, NEF):
        e("s_cbranch_scc1 L_efd")
        ef_dma(k)
    e("L_efd:")
    if XP:
        e(f"""s_lshr_b32 s{sT}, s{sKB}, 5
s_mul_i32 s{sT}, s{sT}, {R if ROT else 0}
s_lshr_b32 s{sT}, s{sT}, 3
s_mul_i32 s{sT}, s{sT}, {(N // R) * 1024}
s_and_b32 s{sT2}, s{sKB}, 31
s_lshl_b32 s{sT2}, s{sT2}, 10
s_add_u32 s{sT}, s{sT}, s{sT2}
s_lshl_b32 s{sT2}, s{sW}, 7
s_add_u32 s{sT}, s{sT}, s{sT2}
v_lshl_add_u32 v{TP+2}, v{vL}, 15, s{sT}
s_mov_b32 exec_lo, {hex((1 << min(XP, 32)) - 1)}
s_mov_b32 exec_hi, {hex((1 << max(XP - 32, 0)) - 1)}
buffer_load_dword v{vJUNK}, v{TP+2}, {S(XS)}, 0 offen
s_mov_b64 exec, -1""")
    e(f"v_cmp_gt_u32 vcc, 40, v{vL}\ns_waitcnt lgkmcnt(0)\nv_readfirstlane_b32 s{sT}, v4")
    e(f"v_add_u32 v3, v{dg}, v{dg+1}")
    for j in range(2, R, 2): e(f"v_add3_u32 v3, v3, v{dg+j}, v{dg+j+1}")
    e(f"""v_lshl_or_b32 v3, v3, 6, v{vNODE}
v_cndmask_b32 v3, 0, v3, vcc
s_max_u32 s{sMAXC}, s{sMAXC}, s{sT}
s_cmp_lg_u32 s{sW0}, 0
s_cbranch_scc1 L_havepos""")
    for j in range(5): e(f"v_readlane_b32 s{64+j}, v3, {j}")
    for j in range(5): e(f"v_cmp_lt_u32 {P(70+2*j)}, s{64+j}, v3")
    for j in range(5): e(f"s_bcnt1_i32_b64 s{64+j}, {P(70+2*j)}")
    for j in range(5): e(f"v_readlane_b32 s{70+j}, v{vMAP}, s{64+j}")
    for j in range(5): e(f"v_writelane_b32 v{vPOS}, s{70+j}, {j}")
    e(f"""v_lshlrev_b32 v{vPOS}, 2, v{vPOS}
L_havepos:
s_mov_b64 exec, 31
ds_write_b32 v{vPOS}, v3 offset:{L_ENTRY}
s_mov_b64 exec, -1
s_lshl_b32 s{sT}, s{sW}, 2
v_lshl_add_u32 v3, v{vS}, 5, s{sT}
v_lshlrev_b32 v4, 2, v{vL}
v_and_b32 v6, 7, v{vL}
v_cmp_gt_u32 s[34:35], s{sW}, v6
s_and_b64 s[34:35], s[34:35], vcc
v_cmp_gt_u32 vcc, {5*R}, v{vL}
s_waitcnt lgkmcnt(0)
s_barrier""")
    stamp((4, 3), (1, 7))
    if STAMP == 7: e("s_waitcnt vmcnt(0)")
    stamp((2, 7))
    c0, c1, c2, c3 = T0 + 36, T0 + 37, T0 + 38, T0 + 39
    e(f"""ds_read_b32 v{c3}, v3 offset:{L_ENTRY}
ds_read_b32 v4, v4 offset:{L_ENTRY}
s_waitcnt lgkmcnt(1)
v_and_b32 v{c3}, 63, v{c3}
v_mad_u32_u24 v3, v{c3}, {4*R}, v{vR4}
ds_read_b32 v{c0}, v3 offset:{L_HIST}
s_waitcnt lgkmcnt(1)
v_lshrrev_b32 v4, 6, v4
v_cndmask_b32 v{c2}, 0, v4, s[34:35]
v_mul_u32_u24 v{c3}, {4*TROW}, v{c3}
s_waitcnt lgkmcnt(0)
v_cndmask_b32 v{c0}, 0, v{c0}, vcc
v_mov_b32 v{c1}, v{c0}""")
    scan2(c1, c2, [f"v_readlane_b32 s{sROW+j}, v{c3}, {j}" for j in range(5)] + [f"v_lshlrev_b32 v4, 3, v{vS}", f"s_min_u32 s{sMAXC}, s{sMAXC}, {32*CH}"])
    e(f"""v_sub_u32 v{c0}, v{c1}, v{c0}
v_readlane_b32 s{sS0}, v{c2}, 63
v_readlane_b32 s{sN}, v{c1}, 63
s_lshl_b32 s{sT}, s{sS0}, 4
s_add_u32 s{sT}, s{sT}, {L_ST}
v_lshl_add_u32 v{c0}, v{c0}, 4, s{sT}
v_lshl_or_b32 v{c0}, v{c0}, 10, v4
s_mov_b64 exec, vcc
ds_write_b32 v3, v{c0} offset:{L_TBL}
s_mov_b64 exec, -1
s_min_u32 s{sN}, s{sN}, {8*CAPW}
v_lshl_add_u32 v{vEntA}, v{vQ}, 4, s{sT}
v_and_b32 v2, 3, v{vL}
v_bfe_u32 v3, v{vL}, 3, 2
v_lshl_add_u32 v2, v3, 2, v2
v_lshl_add_u32 v{vEfA}, v2, 4, s{sT}
v_lshl_add_u32 v5, v{vL}, 5, s80
s_movk_i32 s{sT2}, 0x3ff
s_waitcnt lgkmcnt(0)
s_barrier""")
    stamp((5, 3))
    for k in range(4): e(f"s_mov_b64 exec, {P(mV+2*k)}\nds_read_b32 v{tI+k}, v{tY+4*k+3} offset:{L_TBL}")
    e("s_mov_b64 exec, -1")
    for k in range(4): e(f"v_add_u32 v{tY+4*k+3}, {2048*k}, v5")
    e("s_waitcnt lgkmcnt(0)")
    for k in range(4):
        e(f"""s_mov_b64 exec, {P(mV+2*k)}
v_bfi_b32 v{tY+4*k+2}, s{sT2}, v{tI+k}, v{tY+4*k+2}
v_lshrrev_b32 v{tI+k}, 10, v{tI+k}
v_lshl_add_u32 v{tI+k}, v{tR+k}, 4, v{tI+k}
ds_write_b128 v{tI+k}, {vr(tY+4*k,4)}""")
    e(f"""s_mov_b64 exec, -1
v_cmp_gt_i32 vcc, s{sN}, v{vQ}
v_mov_b32 v4, s{sDUM}
s_waitcnt lgkmcnt(0)
s_barrier""")
    stamp((4, 1), (6, 3))

lane_of = lambda q: 4 * (q % 16) + (q % 64) // 16
ring = lambda q: RING + q % 16
def xload(q, so): return f"buffer_load_dwordx4 {vr(X+4*(q%D),4)}, v{vL16}, {S(XS)}, s{so} offen"
def rd_efa(us):
    for u in us: e(f"s_mov_b64 exec, {P((mU0,mU1)[u])}\nds_read_b128 {vr(EFA+4*u,4)}, v{EFAD} offset:{L_EF}")
    e("s_mov_b64 exec, -1")
def rmfma(buf, j):
    u, par = j // 2, j % 2
    d = T[buf] + 16 * par
    return f"v_mfma_f32_32x32x16_bf16 {vr(d,16)}, {vr(EFA+4*u,4)}, {vr(WB+4*(2*u+par),4)}, {'0' if u == 0 else vr(d,16)}"
def loop():
    e(f"""ds_read_b128 {vr(ENT,4)}, v{vEntA}
ds_read_b32 v{EFAD}, v{vEfA} offset:12
ds_read_b32 v2, v{vEfA} offset:{256+12}
s_waitcnt lgkmcnt(0)
v_cndmask_b32 v{META}, v4, v{ENT+2}, vcc
v_and_or_b32 v{EFAD}, v{EFAD}, s{sEFM}, v{vH16}""")
    for q in range(DIST): e(f"v_readlane_b32 s{ring(q)}, v{META}, {lane_of(q)}")
    for q in range(PRE): e(f"s_and_b32 s{sOFF+q%4}, s{ring(q)}, s{sMASK}\n{xload(q, sOFF+q%4)}")
    e(f"s_waitcnt vmcnt({PRE + (1 if XP else 0)})\ns_barrier")
    stamp((5, 1), (5, 5), (5, 8))
    if STAMP: e("s_memtime s[60:61]")
    rd_efa((0, 1))
    e(f"v_and_or_b32 v{EFAD}, v2, s{sEFM}, v{vH16}")
    for q in range(PRE, 4): e(f"s_and_b32 s{sOFF+q%4}, s{ring(q)}, s{sMASK}\n{xload(q, sOFF+q%4)}")
    e("s_waitcnt lgkmcnt(0)")
    for j in range(4): e(rmfma(0, j))
    for q in range(max(PRE, 4), DIST): e(f"s_and_b32 s{sOFF+q%4}, s{ring(q)}, s{sMASK}\n{xload(q, sOFF+q%4)}")
    rd_efa((0,))
    e(f"s_cmp_lg_u32 s{sW0}, 0\ns_cbranch_scc1 L_wdone")
    build_wm()
    e(f"L_wdone:\ns_cmp_eq_u32 s{sW}, 7\ns_cselect_b32 s3, 64, 0x80000000\ns_mov_b32 s{sFIN}, 1\ns_mov_b32 s{sRem}, s{sN}\ns_waitcnt lgkmcnt(0)")
    if AL >= 0:
        e("s_branch L_sb\n.p2align 6")
        for _ in range(AL): e("s_nop 0")
    e("L_sb:")
    if STAMP == 5: e("s_mov_b32 s86, s88\ns_mov_b32 s88, s90\ns_memrealtime s[90:91]")
    e(f"s_cmp_gt_i32 s{sRem}, s3\ns_cbranch_scc1 L_nofl\ns_load_dword s{sFIN}, s[54:55], 0\nL_nofl:")
    for i in range(4): e(f"v_mfma_f32_4x4x4_16b_bf16 {vr(TP+4*i,4)}, {vr(ENT,2)}, {vr(CG+2*i,2)}, 0")
    e(f"v_add_u32 v{vEntA}, 1024, v{vEntA}\ns_sub_u32 s{sT}, s{sRem}, 64\nv_cmp_gt_i32 s[34:35], s{sT}, v{vQ}\ns_cmp_le_i32 s{sRem}, 0\ns_nop 0")
    for r in range(4):
        e(f"v_cvt_pk_bf16_f32 v{AE+2*r}, v{TP+r}, v{TP+4+r}\nv_cvt_pk_bf16_f32 v{AE+2*r+1}, v{TP+8+r}, v{TP+12+r}")
    e(f"ds_read_b128 {vr(ENT,4)}, v{vEntA}\nds_read_b32 v{vCNT}, v{vCA}")
    for q in range(0, 64, 4):
        b, p = q // 16, (q % 16) // 4
        cur = b % 2
        te, to = T[cur] + q % 16, T[cur] + 16 + q % 16
        e(f"; ---- edges {q}..{q+3}")
        mf = lambda d, x, qq: f"v_mfma_f32_4x4x4_16b_bf16 {vr(d,4)}, {vr(AE+2*b,2)}, {vr(x,2)}, 0 cbsz:4 abid:{qq%16}"
        e("s_cbranch_scc1 L_exit")
        if STAMP == 5 and q == SQ: e(f"s_cmp_eq_u32 s{sRem}, s{sN}\ns_cbranch_scc0 L_nst\ns_memrealtime s[92:93]\nL_nst:")
        if PRIO == 2 and p == 0: e(f"s_setprio {3-b}")
        if PRIO == 4 and p % 2 == 0: e(f"s_setprio {3 - (q // 8) % 4}")
        if q + DIST == 64: e(f"v_cndmask_b32 v{META}, v4, v{ENT+2}, s[34:35]")
        e(f"s_waitcnt vmcnt({DIST-4})")
        for j in range(4):
            x = X + 4 * ((q + j) % D)
            e(f"""{mf(TP+8*j, x, q+j)}
v_exp_f32 v{TMP+j}, v{te+j}
{mf(TP+8*j+4, x+2, q+j)}
v_exp_f32 v{TMP+4+j}, v{to+j}""")
        for j in range(4): e(f"v_readlane_b32 s{ring(q+DIST+j)}, v{META}, {lane_of(q+DIST+j)}")
        if p == 2: e(f"v_and_or_b32 v{EFAD}, v2, s{sEFM}, v{vH16}")
        for j in range(4):
            e(f"s_and_b32 s{sOFF+j}, s{ring(q+DIST+j)}, s{sMASK}")
            e(f"v_pk_fma_f32 {vr(TMP+2*j,2)}, {vr(TMP+2*j,2)}, {P(sK)}, {P(sK)}")
        e(rmfma(1 - cur, p))
        for j in range(8):
            e(f"v_rcp_f32 v{TMP+j}, v{TMP+j}")
            if j >= 4: e(xload(q + DIST + j - 4, sOFF + j - 4))
        if q < 60: e(f"s_cmp_le_i32 s{sRem}, {q+4}")
        if p == 0: rd_efa((1,)); e(f"ds_read_b32 v2, v{vEfA} offset:{256*(b+2)+12}")
        if p == 2: rd_efa((0,))
        if p in (1, 3): e("s_waitcnt lgkmcnt(0)")
        for j in range(2): e(f"v_pk_mul_f32 {vr(TMP+2*j,2)}, {vr(TMP+2*j,2)}, {vr(te+2*j,2)}")
        for j in range(2): e(f"v_pk_mul_f32 {vr(TMP+4+2*j,2)}, {vr(TMP+4+2*j,2)}, {vr(to+2*j,2)}")
        for s in range(4):
            e(f"s_set_gpr_idx_on s{ring(q+s)}, gpr_idx(SRC2,DST)" if s == 0 else f"s_set_gpr_idx_idx s{ring(q+s)}")
            for j in range(4):
                e(f"v_pk_fma_f32 {vr(ACC+2*j,2)}, {vr(TMP+4*(j//2)+2*(s//2),2)}, {vr(TP+8*s+2*j,2)}, {vr(ACC+2*j,2)} op_sel:[{s%2},0,0] op_sel_hi:[{s%2},1,1]")
        e("s_set_gpr_idx_off")
    e(f"""v_add_u32 v{vEfA}, 1024, v{vEfA}
s_sub_u32 s{sRem}, s{sRem}, 64
s_branch L_sb
L_exit:""")
    if PRIO: e("s_setprio 0")
    stamp((6, 1), (6, 5), (1, 6), (6, 8))
    if STAMP: e("s_memtime s[62:63]")
    e(f"""s_add_u32 s{sW0}, s{sW0}, {CAPW}
s_cmp_lt_u32 s{sW0}, s{sMAXC}
s_cbranch_scc0 L_epi
v_lshlrev_b32 v7, 3, v0
v_mov_b32 v2, 0
v_mov_b32 v3, 0
ds_write_b64 v7, v[2:3]
s_waitcnt vmcnt(0) lgkmcnt(0)
s_nop 15""")
    lane_helpers()
    e("s_barrier\ns_branch L_round\nL_epi:")

def epilogue():
    FB = EFA; FD = ACC; FO = TP + 16
    FA = lambda t: T0 + 16 * t
    assert CG + 8 == EFA + 32 and TP == T0 + 64
    def rdB():
        for ks in range(4):
            for par in range(2): e(f"ds_read_b128 {vr(FB+16*par+4*ks,4)}, v{vBA} offset:{8192*ks + 256*par}")
    e(f"""s_waitcnt lgkmcnt(0)
v_readfirstlane_b32 s38, v{vCNT}
v_lshlrev_b32 v2, 2, v{vL}""")
    for s in range(5):
        e(f"v_add_u32 v3, s{sROW+s}, v2")
        for o in range(4): e(f"v_cvt_pk_bf16_f32 v{ACC+8*s+o}, v{ACC+8*s+o}, v{ACC+8*s+4+o}")
        for o in range(0, 4, 2): e(f"ds_write2_b32 v3, v{ACC+8*s+o}, v{ACC+8*s+o+1} offset0:{o*TROW//4} offset1:{(o+1)*TROW//4}")
    e("s_cmp_eq_u32 s38, 8\ns_cbranch_scc0 L_nob")
    rdB()
    e("s_waitcnt lgkmcnt(8)")
    stamp((2, 6))
    e("s_barrier\ns_branch L_haveb\nL_nob:\ns_waitcnt lgkmcnt(0)\ns_barrier")
    rdB()
    e("L_haveb:")
    stamp((3, 6))
    def rdA(t):
        for ks in range(4): e(f"ds_read_b128 {vr(FA(t)+4*ks,4)}, v{vAA} offset:{L_TILE + t*16*TROW + 64*ks}")
    def fin(t):
        d = FD + 8 * t; o = FO + 4 * (t % 4)
        for j in range(4): e(f"v_cvt_pk_bf16_f32 v{o+j}, v{d+2*j}, v{d+2*j+1}")
        e(f"buffer_store_dwordx4 {vr(o,4)}, v{vOA}, {S(OS)}, 0 offen {OUTST}")
        if t < 4: e(f"v_add_u32 v{vOA}, {4*256*1024}, v{vOA}")
    rdA(0); rdA(1); rdA(2)
    issued = 12
    for t in range(5):
        d = FD + 8 * t
        for ks in range(4):
            e(f"s_waitcnt lgkmcnt({issued - 4*t - ks - 1})")
            for par in range(2):
                e(f"v_mfma_f32_16x16x32_bf16 {vr(d+4*par,4)}, {vr(FA(t)+4*ks,4)}, {vr(FB+16*par+4*ks,4)}, {'0' if ks == 0 else vr(d+4*par,4)}")
            if ks == 0 and t + 3 < 5: rdA(t + 3); issued += 4
            if ks == 2 and t >= 1: fin(t - 1)
    e("s_nop 7")
    fin(4)
    stamp((4, 6))
    e(f"s_cmp_eq_u32 s{sFIN}, 0\ns_cbranch_scc0 L_fin")
    allrows()
    e("L_fin:")
    if STAMP:
        e("s_waitcnt vmcnt(0)"); stamp((7, 0))
        e(f"""s_lshl_b32 s34, s2, 3
s_add_u32 s34, s34, s{sW}
s_add_u32 s34, s34, 4096
s_getreg_b32 s59, hwreg(HW_REG_HW_ID)
s_mov_b64 exec, 1
s_lshl_b32 s34, s34, 6
s_add_u32 s34, s34, {WS_STAMP}
v_mov_b32 v2, 0""")
        for i, r in enumerate([84 + 2*i for i in range(8)] + [60, 62, sN, 59]):
            e(f"v_mov_b32 v3, s{r}\nbuffer_store_dword v3, v2, {S(WS)}, s34 offen offset:{4*i}")
    e("L_end:\ns_endpgm")

ref = open("standalone__tensor_product_equiv_tfn__graph.s.ref").read().splitlines()
for l in ref:
    if l.startswith("; Override"): break
    out.append(l)
out.append("; Generated by gen/gen2.py " + " ".join(sys.argv[2:]))
out.append(f"; @launch grid=(256,1,1) block=(512,1,1) lds={M_LDS}")
e('.amdgcn_target "amdgcn-amd-amdhsa--gfx950"\n.text')
phase_a(); phase_b(); loop(); epilogue()
e(f""".section .rodata,"a"
.p2align 6
.amdhsa_kernel {KNAME}
.amdhsa_next_free_vgpr {NV}
.amdhsa_next_free_sgpr 100
.amdhsa_accum_offset {(NV+3)//4*4}
.amdhsa_group_segment_fixed_size 0
.amdhsa_kernarg_size 88
.amdhsa_user_sgpr_count 2
.amdhsa_user_sgpr_kernarg_segment_ptr 1
.amdhsa_system_sgpr_workgroup_id_x 1
.amdhsa_float_denorm_mode_32 3
.end_amdhsa_kernel""")
if NOLOAD or NOV:
    i0 = out.index("L_sb:"); i1 = out.index("L_exit:")
    rm = tuple((["buffer_load"] if NOLOAD else []) + (NOV.split(",") if NOV else []))
    out[i0:i1] = [l for l in out[i0:i1] if not l.strip().startswith(rm)]
if E64:
    i0 = out.index("L_sb:"); i1 = out.index("L_exit:")
    for i in range(i0, i1):
        l = out[i].strip()
        if (E64 & 1) and l.startswith("v_exp_f32"): out[i] = out[i].replace("v_exp_f32", "v_exp_f32_e64")
        if (E64 & 2) and l.startswith("v_rcp_f32"): out[i] = out[i].replace("v_rcp_f32", "v_rcp_f32_e64")
text = "\n".join(out) + "\n"
errs = hazard.check(text)
for x in errs: print("HAZARD", x)
open(sys.argv[1], "w").write(text)
print(f"wrote {sys.argv[1]}: NV={NV} LDS={M_LDS} hazards={len(errs)}")
```

```python
import sys, struct, math
sys.path.insert(0, "gen")
import hazard

OPT = dict(STAMP=0, SQ=16, SLOWT=0, NOLOAD=0, NOV="", R=12, EF1=2, PRE=4, YBAR=1, ROT=2, CPF=1, EARLY=0, UNR=6,
           OUTST="sc1", PRIO=4, XP=0, TBAR=1, RPOS=4, RTCH=0, GPOS=1, EW=-1, CPOS=2, SCAP=0, AL=-1, E64=0, BPOS=1, IPOS=3, SPR=1, NF=0, W1=300, PST='sc1', INT='', DLY=0, EWL=2, XPOS=0, WMP=0, TR=288, NOST=0, RSC='sc1', SLIM=0)
for a in sys.argv[2:]:
    k, v = a.split("=")
    assert k in OPT, k
    OPT[k] = int(v) if v.lstrip("-").isdigit() else v.replace("+", " ")
globals().update(OPT)

KNAME = "standalone__tensor_product_equiv_tfn__graph_kernel"
N, E, C = 10000, 320000, 128
CH = 1250; CHP = 1280
WS_EF = 0; WS_YM = 256 * CHP * 32; WS_TBL = WS_YM + 256 * CHP * 12
WS_STAMP = 0x1000000
WS_SIZE = 0x1000000 + (0x100000 if STAMP else 0)
assert WS_TBL + 256 * 1024 <= WS_STAMP
def f32(x): return "0x%08x" % struct.unpack("<I", struct.pack("<f", x))[0]
LOG2E = math.log2(math.e); LN2 = math.log(2.0)
RMUL, RSH = {4: (6711, 24), 8: (6711, 23), 12: (5033, 22)}[R]
assert (9999 * RMUL) >> RSH == R - 1
SPIN = 400000
OOB = 0x00ffffff

CAPW = 216; TROW = TR
L_HIST = 0; L_MAXC = 2048; A_HIST = 3072; L_ENTRY = 4096; L_TBL = 4608; L_CG = 6656
L_LIST = 8192; L_WR = 16384
L_TILE = 0
L_EF = 160 * TROW; L_ST = L_EF + 8 * CAPW * 32; L_WM = L_ST + 8 * CAPW * 16; L_CNT = L_WM + 32768
M_LDS = L_CNT + 16
L_YI = L_ST; L_SW = L_ST + 8 * CAPW * 8
ES = 2 if SLIM else 4
A_YM = L_EF; A_EF = A_YM + CHP * 12; A_INV = L_LIST; A_START = L_LIST + 2560
assert M_LDS <= 163840 and A_EF < 65536 and A_EF + CHP * 32 <= L_WM and 40 * R * 4 <= 2048 and 5 * R <= 64 and R % 4 == 0

D = 8; DIST = 8
ACC = 8; X = 48; T0 = 80; T = [T0, T0 + 32]; TP = T0 + 64; TMP = TP + 32; AE = TMP + 8; EFA = AE + 8; WB = EFA + 8
CG = WB + 16; ENT = CG + 8; META = ENT + 4; EFAD = META + 1
vEntA = EFAD + 1; vEfA = vEntA + 1; vL16 = vEfA + 1; vH16 = vL16 + 1; vQ = vH16 + 1
vPS = vQ + 1; vPE = vPS + 1; vDL = vPE + 1; vPOS = vDL + 1; vJUNK = vPOS + 1; vBA = vJUNK + 1; vAA = vBA + 1; vOA = vAA + 1; vCNT = vOA + 1; vCA = vCNT + 1; NV = vCA + 1
vL = 1
assert NV <= 256
XS, WS, OS = 4, 8, 12
sW, sKB, sN, sCW, sW0, sMAXC, sT, sT2, sNT, sS0, sRem = 16, 17, 18, 19, 24, 25, 26, 27, 28, 29, 30
mU0, mU1 = 20, 22
sMASK, sDUM, sEFM = 31, 32, 33
mV = 36
DG = 44
sROW = 48
sFIN = 53
sYI = 59
sK = 56
RING = 64; sOFF = 80
DUMMY = (N * 1024) | 40
MAP39 = [0, 5, 6, 3, 0, 7, 2, 4, 1, 0, 2, 7, 1, 0, 6, 3, 5, 4, 1, 7, 4, 6, 3, 2, 5, 4, 5, 7, 2, 1, 3, 6, 4, 1, 3, 2, 6, 7, 5, 0]
MAP40 = [7, 0, 5, 2, 4, 3, 1, 6, 4, 1, 6, 3, 7, 2, 0, 5, 5, 6, 3, 0, 7, 1, 2, 4, 2, 5, 3, 1, 4, 6, 0, 7, 6, 1, 4, 3, 2, 0, 5, 7]
def posmap(m):
    c = [0] * 8; o = []
    for w in m: o.append(c[w] * 8 + w); c[w] += 1
    assert sorted(o) == list(range(40))
    return o

out = []
def e(s=""):
    for l in s.split("\n"):
        l = l.strip()
        if not l: continue
        out.append(l if l.endswith(":") or l.startswith((".", ";")) else "    " + l)
def vr(a, n): return f"v[{a}:{a+n-1}]" if n > 1 else f"v{a}"
def S(a): return f"s[{a}:{a+3}]"
def P(a): return f"s[{a}:{a+1}]"
def srd(d, base, nbytes):
    e(f"s_mov_b32 s{d}, s{base}\ns_mov_b32 s{d+1}, s{base+1}\ns_mov_b32 s{d+2}, {nbytes}\ns_mov_b32 s{d+3}, 0x00020000")
DPPS = ("row_shr:1 row_mask:0xf", "row_shr:2 row_mask:0xf", "row_shr:4 row_mask:0xf", "row_shr:8 row_mask:0xf",
        "row_bcast:15 row_mask:0xa", "row_bcast:31 row_mask:0xc")
def scan(v, fill=()):
    fill = list(fill)
    for m in DPPS:
        k = 0
        while k < 2 and fill: e(fill.pop(0)); k += 1
        if k < 2: e(f"s_nop {1-k}")
        e(f"v_add_u32_dpp v{v}, v{v}, v{v} {m} bank_mask:0xf")
    for x in fill: e(x)
def scan2(v1, v2, fill=()):
    fill = list(fill)
    e(fill.pop(0) if fill else "s_nop 0")
    for m in DPPS:
        e(fill.pop(0) if fill else "s_nop 0")
        e(f"v_add_u32_dpp v{v1}, v{v1}, v{v1} {m} bank_mask:0xf\nv_add_u32_dpp v{v2}, v{v2}, v{v2} {m} bank_mask:0xf")
    for x in fill: e(x)
def stamp(*specs):
    for i, st in specs:
        if STAMP and (st == STAMP or st == 0):
            e(f"s_memrealtime s[{84+2*i}:{85+2*i}]")
            if (i, st) not in ((1, 2), (2, 2), (3, 2), (5, 2)): e("s_waitcnt lgkmcnt(0)")

tY = T0
tI = T0 + 16
tR = T0 + 28
vMAP, vNODE, vR4, vS, vXA = T0 + 32, T0 + 33, T0 + 34, T0 + 35, T0 + 40
vLY, vLE, vHP, vCH, vN48, vEN, vFA = T0 + 41, T0 + 42, T0 + 43, T0 + 44, T0 + 45, T0 + 46, T0 + 47
sLB, sEB = 81, 80
vREF, vTA, vP2 = X + 11, X + 10, X + 4

def lane_helpers():
    e(f"""s_mul_i32 s{sT}, s{sW}, 5
v_add_u32 v{vNODE}, s{sT}, v{vL}
v_subrev_u32 v3, 40, v{vNODE}
v_min_u32 v{vNODE}, v{vNODE}, v3
v_mul_u32_u24 v3, 205, v{vL}
v_lshrrev_b32 v3, 10, v3
v_mul_u32_u24 v2, 5, v3
v_sub_u32 v{vS}, v{vL}, v2""")
    if ROT == 1:
        e(f"""s_lshr_b32 s{sT}, s{sKB}, 5
s_mul_i32 s{sT}, s{sT}, {R}
s_lshr_b32 s{sT}, s{sT}, 3
v_add_u32 v3, s{sT}, v3
v_subrev_u32 v2, {R}, v3
v_min_u32 v3, v3, v2""")
    e(f"""v_lshlrev_b32 v{vR4}, 2, v3
s_lshl_b32 s{sLB}, s{sW}, 10
s_add_u32 s{sLB}, s{sLB}, {L_LIST}
s_mul_i32 s{sEB}, s{sW}, {CAPW*32}
v_lshl_add_u32 v{vLY}, v{vL}, 2, s{sLB}
v_lshrrev_b32 v3, 1, v{vL}
v_lshl_add_u32 v{vLE}, v3, 2, s{sLB}
v_and_b32 v2, 1, v{vL}
v_lshlrev_b32 v{vHP}, 4, v2
v_lshrrev_b32 v3, 1, v0
v_mul_u32_u24 v3, {CHP}, v3
v_add_u32 v{vCH}, v3, v2
v_mul_u32_u24 v{vN48}, {4*R}, v{vNODE}
s_lshl_b32 s{sT}, s{sW}, 2
v_lshl_add_u32 v{vEN}, v{vS}, 5, s{sT}
v_lshl_add_u32 v{vFA}, v{vL}, 5, s{sEB}""")
    if XP:
        assert ROT == 2
        e(f"""s_lshr_b32 s{sT}, s{sKB}, 5
s_mul_i32 s{sT}, s{sT}, {1250 - 32}
s_add_u32 s{sT}, s{sT}, s{sKB}
s_lshl3_add_u32 s{sT}, s{sT}, s{sW}
s_lshl_b32 s{sT}, s{sT}, 7
v_lshl_add_u32 v{vXA}, v{vL}, 15, s{sT}""")

def list_fill():
    for i in range(4): e(f"v_mov_b32 v{tY+i}, {hex(OOB)}")
    e(f"v_add_u32 v2, s{sLB}, v{vL16}\nds_write_b128 v2, {vr(tY,4)}")

def common_init():
    e(f"""s_mov_b32 s{mU0}, 0x0f0f0f0f
s_mov_b32 s{mU0+1}, 0x0f0f0f0f
s_mov_b32 s{mU1}, 0xf0f0f0f0
s_mov_b32 s{mU1+1}, 0xf0f0f0f0
s_mov_b32 s{sMASK}, 0xfffffc00
s_mov_b32 s{sDUM}, {hex(DUMMY)}
s_mov_b32 s{sEFM}, 0xffe0
s_mov_b32 s{sW0}, 0
s_mov_b32 s{sMAXC}, 0""")
    for i in range(40): e(f"v_mov_b32 v{ACC+i}, 0")
    for i in range(8): e(f"v_mov_b32 v{EFA+i}, 0")
    e(f"v_mov_b32 v{vMAP}, 0\nv_mov_b32 v{vPOS}, 0\ns_cmp_lt_u32 s{2 if SPR else sKB}, {N - 39*256}\ns_cbranch_scc1 L_map40")
    for r, p in enumerate(posmap(MAP39)): e(f"v_writelane_b32 v{vMAP}, {p}, {r}")
    e("s_branch L_mapd\nL_map40:")
    for r, p in enumerate(posmap(MAP40)): e(f"v_writelane_b32 v{vMAP}, {p}, {r}")
    e("L_mapd:")
    e(f"""v_and_b32 v2, 3, v{vL}
v_lshrrev_b32 v3, 2, v{vL}
v_lshl_add_u32 v{vQ}, v2, 4, v3
v_lshrrev_b32 v2, 5, v{vL}
v_lshlrev_b32 v{vH16}, 4, v2""")

def epi_addr():
    e(f"""s_and_b32 s{sT}, s{sW}, 3
s_lshl_b32 s58, s{sT}, 9
s_add_u32 s58, s58, {L_WM}
v_lshrrev_b32 v3, 4, v{vL}
v_mul_u32_u24 v2, {2048 - 256}, v3
v_add3_u32 v{vBA}, v2, s58, v{vL16}
s_lshr_b32 s58, s{sW}, 2
v_and_b32 v2, 15, v{vL}
v_mul_u32_u24 v{vAA}, {TROW}, v2
v_lshl_add_u32 v{vAA}, v3, 4, v{vAA}
s_mul_i32 s59, s58, {80*TROW}
v_add_u32 v{vAA}, s59, v{vAA}
v_lshlrev_b32 v{vOA}, 18, v3
v_lshl_add_u32 v{vOA}, v2, 4, v{vOA}
s_mul_i32 s58, s58, {20*256*1024}
s_lshl_b32 s59, s{2 if SPR else sKB}, 10
s_add_u32 s58, s58, s59
s_lshl_b32 s59, s{sT}, 8
s_add_u32 s58, s58, s59
v_add_u32 v{vOA}, s58, v{vOA}
v_mov_b32 v{vCA}, {L_CNT}""")

def build_cg():
    e(f"""v_and_b32 v2, 0x30, v{vL}
v_and_b32 v3, 3, v{vL}
v_lshl_add_u32 v2, v3, 2, v2
v_bfe_u32 v7, v{vL}, 2, 2
v_add_lshl_u32 v2, v2, v7, 1
ds_write_b16 v2, v{X+9} offset:{L_CG}
v_lshlrev_b32 v3, 3, v3""")
    for k in range(4): e(f"ds_read_b64 {vr(CG+2*k,2)}, v3 offset:{L_CG + 32*k}")

def build_wm():
    wM = TP + 16; fM = T0 + 32
    e(f"""v_lshrrev_b32 v7, 5, v0
v_and_b32 v3, 31, v{vL}
v_lshlrev_b32 v7, 11, v7
v_add_u32 v7, {L_WM}, v7
v_lshl_add_u32 v2, v3, 3, v7""")
    for m in range(8): e(f"ds_read_b64 {vr(wM+2*m,2)}, v2 offset:{256*m}")
    e(f"""s_mov_b32 s58, 0x05040100
s_mov_b32 s59, 0x07060302
v_bfe_u32 v3, v0, 3, 2
v_lshl_add_u32 v7, v3, 9, v7
v_and_b32 v3, 7, v0
v_lshl_add_u32 v7, v3, 5, v7
v_mov_b32 v5, {L_CNT}
v_mov_b32 v6, 1
s_waitcnt lgkmcnt(0)""")
    for q in range(4):
        for mp in range(4):
            e(f"v_perm_b32 v{fM+4*q+mp}, v{wM+2*(2*mp+1)+q//2}, v{wM+2*(2*mp)+q//2}, s{58 + q%2}")
        e(f"ds_write_b128 v7, {vr(fM+4*q,4)} offset:{256*(q%2) + 16*(q//2)}")
    e("s_mov_b64 exec, 1\nds_add_u32 v5, v6\ns_mov_b64 exec, -1")

def build_wb():
    wR = TP; t2 = TP + 16
    e(f"""v_and_b32 v3, 31, v{vL}
v_lshlrev_b32 v2, 7, v{vH16}
v_lshl_add_u32 v2, v3, 2, v2
v_add_u32 v3, 128, v2""")
    for u in range(2):
        for m in range(0, 8, 2): e(f"ds_read2st64_b32 {vr(wR+8*u+m,2)}, v{2+u} offset0:{L_WR//256 + m} offset1:{L_WR//256 + m + 1}")
    e(f"s_mov_b32 s{sK}, {f32(-LOG2E)}\ns_mov_b32 s{sK+1}, {f32(-LOG2E)}")
    for u in range(2):
        for mp in range(4):
            a0, a1 = wR + 8*u + 2*mp, wR + 8*u + 2*mp + 1
            e(f"""s_waitcnt lgkmcnt({7 - 4*u - mp})
v_lshlrev_b32 v{t2}, 16, v{a0}
v_lshlrev_b32 v{t2+1}, 16, v{a1}
v_and_b32 v{t2+2}, 0xffff0000, v{a0}
v_and_b32 v{t2+3}, 0xffff0000, v{a1}
v_pk_mul_f32 {vr(t2,2)}, {vr(t2,2)}, {P(sK)}
v_pk_mul_f32 {vr(t2+2,2)}, {vr(t2+2,2)}, {P(sK)}
v_cvt_pk_bf16_f32 v{WB+4*(2*u)+mp}, v{t2}, v{t2+1}
v_cvt_pk_bf16_f32 v{WB+4*(2*u+1)+mp}, v{t2+2}, v{t2+3}""")

def allrows():
    e(f"""v_mov_b32 v{TP}, 0
v_mov_b32 v{TP+1}, 1
s_mov_b64 exec, 1
buffer_store_dword v{TP+1}, v{TP}, {S(DG)}, 0 offen sc1
s_mov_b64 exec, -1""")

def poll(tag, vd, shift, first_issued):
    ld = f"buffer_load_dword v{vd}, v{vTA}, {S(WS)}, 0 offen sc1"
    if first_issued: e(f"s_branch L_pw{tag}")
    e(f"""L_p{tag}:
{ld}
L_pw{tag}:
s_waitcnt vmcnt(0)
v_xor_b32 v{TP}, v{vd}, v{vREF}""")
    if shift: e(f"v_lshlrev_b32 v{TP}, {shift}, v{TP}")
    e(f"""v_cmpx_le_i32 vcc, 0, v{TP}
s_cbranch_execz L_pd{tag}
s_sub_u32 s{sRem}, s{sRem}, 1
s_cbranch_scc1 L_end
s_and_b32 s58, s{sRem}, 7
s_cbranch_scc1 L_p{tag}
v_mov_b32 v{TP}, 0
buffer_load_dword v{TP+1}, v{TP}, {S(DG)}, 0 offen sc1
s_waitcnt vmcnt(0)
v_readfirstlane_b32 s{sFIN}, v{TP+1}
s_cmp_eq_u32 s{sFIN}, 0
s_cbranch_scc1 L_p{tag}
{ld}
s_waitcnt vmcnt(0)
L_pd{tag}:
s_mov_b64 exec, -1""")

def phase_a():
    SA, SB, SC, SD = 64, 68, 72, 76
    m2, mE = 60, 62; mT = 34; mY = 35
    aD, aS = TP, TP + 3
    aR = TP + 8
    aK, aB = TP + 20, TP + 23
    aC, aST = TP + 28, X
    aE, aO, aE1 = X + 12, X + 16, X + 20
    vE4, vE8, vY16, vP16 = X + 5, X + 6, X + 7, X + 8
    vRW = X + 24
    e(f""".globl {KNAME}
.p2align 8
.type {KNAME},@function
{KNAME}:
s_cmp_ge_u32 s2, 256
s_cbranch_scc1 L_end""")
    if STAMP: e("s_memrealtime s[84:85]")
    if SLOWT:
        e(f"s_and_b32 s58, s2, 15\ns_cmp_eq_u32 s58, {SLOWT-1}\ns_cbranch_scc0 L_slt\ns_sleep 127\ns_sleep 127\ns_lshr_b32 s58, s2, 7\ns_cbranch_scc0 L_slt\ns_sleep 127\ns_sleep 127\nL_slt:")
    e(f"""s_load_dwordx16 s[36:51], s[0:1], 0
s_load_dwordx4 s[52:55], s[0:1], 64
s_load_dwordx2 s[56:57], s[0:1], 80
v_lshrrev_b32 v2, 6, v0
v_and_b32 v{vL}, 63, v0
v_readfirstlane_b32 s{sW}, v2
s_and_b32 s{sKB}, s2, 7
s_lshl_b32 s{sKB}, s{sKB}, 5
s_lshr_b32 s{sT}, s2, 3
s_or_b32 s{sKB}, s{sKB}, s{sT}
v_lshlrev_b32 v7, 3, v0
v_mov_b32 v2, 0
v_mov_b32 v3, 0
v_mov_b32 v4, {L_CNT}
ds_write_b64 v7, v[2:3]
ds_write_b32 v4, v2
v_lshlrev_b32 v{vL16}, 4, v{vL}
s_mul_i32 s{sT}, s{sW}, 160
v_add_u32 v6, s{sT}, v{vL}
v_lshlrev_b32 v{vE4}, 2, v6
v_lshlrev_b32 v{vE8}, 3, v6
s_mul_i32 s{sT}, s{sW}, {120*16}
v_add_u32 v{vY16}, s{sT}, v{vL16}
s_mul_i32 s{sT}, s{sW}, {320*16}
v_add_u32 v{vP16}, s{sT}, v{vL16}
s_cmp_lt_u32 s{sW}, 7
s_cselect_b32 s{m2}, -1, 3
s_mov_b32 s{m2+1}, 0
s_cselect_b64 {P(mE)}, -1, 15
s_cselect_b32 s{mT}, -1, 0xff
s_cselect_b32 s{mY}, 0xffffff, s{mT}
s_mul_i32 s58, s{sKB}, {CH*4}
s_mul_i32 s59, s{sKB}, {CH*8}
s_lshl_b32 s{sS0}, s{sKB}, 6
s_add_u32 s{sS0}, s{sS0}, {WS_TBL}
s_waitcnt lgkmcnt(0)""")
    def ld3(op, d, n, va, Sd, so, step):
        for k in range(3):
            if k == 2: e(f"s_mov_b64 exec, {P(m2)}")
            e(f"{op} {vr(d[k], n)}, v{va}, {S(Sd)}, s{so} offen offset:{step*k}")
        e("s_mov_b64 exec, -1")
    def cpf():
        e(f"""s_getpc_b64 s[82:83]
L_pc:
s_lshr_b32 s80, s2, 3
s_lshl_b32 s80, s80, 3
s_add_u32 s80, s80, s{sW}
s_lshl_b32 s81, s80, 6
s_min_u32 s81, s81, L_end-L_pc
s_load_dword s3, s[82:83], s81""")
        if RTCH: e(f"""s_and_b32 s81, s2, 7
s_lshl_b32 s81, s81, 8
s_add_u32 s81, s81, s80
s_lshl_b32 s81, s81, 7
s_add_u32 s81, s81, {WS_TBL}
s_load_dword s3, s[56:57], s81
s_add_u32 s81, s81, 64
s_load_dword s3, s[56:57], s81""")
        e(f"""s_lshl_b32 s81, s80, 7
s_load_dword s3, s[50:51], s81
s_add_u32 s81, s81, 64
s_load_dword s3, s[50:51], s81""")
        if RPOS >= 3: e("""s_lshl_b32 s81, s80, 4
s_load_dword s3, s[46:47], s81
s_and_b32 s81, s80, 64
s_load_dword s3, s[48:49], s81""")
    srd(SA, 40, E * 4)
    ld3("buffer_load_dword", [aD, aD+1, aD+2], 1, vE4, SA, 58, 256)
    if CPF and CPOS == 2: cpf()
    srd(SB, 38, E * 4)
    ld3("buffer_load_dword", [aS, aS+1, aS+2], 1, vE4, SB, 58, 256)
    srd(SC, 42, E * 8)
    ld3("buffer_load_dwordx2", [aR, aR+4, aR+8], 2, vE8, SC, 59, 512)
    if CPF and CPOS == 0: cpf()
    srd(WS, 56, WS_SIZE)
    TA = [f"v_lshrrev_b32 v5, 1, v0", f"s_lshr_b32 s59, s{sKB}, 4", f"s_mul_i32 s59, s59, {16384 - 64}", f"s_lshl2_add_u32 s59, s{sKB}, s59",
          f"s_add_u32 s59, s59, {WS_TBL}", f"v_lshl_add_u32 v{vTA}, v5, 6, s59"]
    def side_a():
        if GPOS == 2:
            for x in TA: e(x)
            e(f"buffer_load_dword v{vREF}, v{vTA}, {S(WS)}, 0 offen {RSC}")
        e(f"""v_lshrrev_b32 v7, 2, v{vL}
v_mul_u32_u24 v7, {16384 - 64}, v7
v_add_u32 v{vRW}, v7, v{vL16}
s_cmp_eq_u32 s{sW}, 7
s_cselect_b32 s59, s{sS0}, 0x40000000
v_add_u32 v7, s59, v{vRW}
buffer_load_dwordx4 {vr(aO,4)}, v7, {S(WS)}, 0 offen {RSC}""")
    def side_b():
        srd(SB, 46, 16 * C * 2); srd(SA, 48, 128)
        e(f"""v_lshlrev_b32 v7, 1, v{vL}
s_lshl_b32 s58, s{sW}, 9
s_add_u32 m0, s58, {L_WR}
s_mov_b32 exec_hi, 0
buffer_load_dwordx4 v{vL16}, {S(SB)}, s58 offen lds
s_mov_b32 exec_hi, -1
buffer_load_ushort v{X+9}, v7, {S(SA)}, 0 offen""")
    def side_loads(): side_a(); side_b()
    nS = 0 if RPOS == 3 else 1 if RPOS >= 4 else 3 + (GPOS == 2)
    if RPOS == 0: side_loads()
    if RPOS == 5: side_a()
    srd(SD, 44, E * 32)
    e("s_barrier")
    if RPOS == 1: side_loads()
    e(f"s_add_u32 m0, s{sT}, {A_EF}\ns_mul_i32 s58, s{sKB}, {CH*32}")
    for k in range(4): e(f"buffer_load_dwordx4 v{vP16}, {S(SD)}, s58 offen offset:{1024*k} {INT} lds")
    e(f"""s_add_u32 m0, s{sT}, {A_EF + 4096}
s_add_u32 s58, s58, 4096
s_mov_b64 exec, {P(mE)}
buffer_load_dwordx4 v{vP16}, {S(SD)}, s58 offen {INT} lds
s_mov_b64 exec, -1
v_mov_b32 v6, 1""")
    if RPOS == 2: side_loads()
    if RPOS == 4: side_a()
    if CPF and CPOS == 1: cpf()
    stamp((1, 2))
    e(f"s_waitcnt vmcnt({11+nS})")
    stamp((2, 2))
    for k in range(3):
        if k == 2: e(f"s_mov_b64 exec, {P(m2)}")
        e((f"v_bfe_u32 v2, v{aD+k}, 3, 5\nv_and_b32 v3, 7, v{aD+k}\nv_lshl_or_b32 v2, v3, 5, v2" if SPR else f"v_and_b32 v2, 255, v{aD+k}") + f"\nv_lshlrev_b32 v{aB+k}, 2, v2\nds_add_rtn_u32 v{aK+k}, v{aB+k}, v6 offset:{A_HIST}")
    e(f"s_mov_b64 exec, -1\ns_movk_i32 s{sT2}, {RMUL}\ns_waitcnt vmcnt({8+nS})")
    if NF:
        k1 = (1 << 22) // W1; k2 = int((1 << 22) * (R - NF) / (N - NF * W1)); c2 = NF * (1 << 22) - NF * W1 * k2
        assert min(9999 * k1, 9999 * k2 + c2) >> 22 == R - 1 and c2 > 0
        e(f"s_movk_i32 s{sT2}, {k2}\nv_mov_b32 v5, {c2}")
    e("s_movk_i32 s59, -1250")
    for k in range(3):
        t = aS + k
        if ROT == 2:
            e(f"v_lshrrev_b32 v3, 7, v{aB+k}\nv_mad_i32_i24 v2, v3, s59, v{aS+k}\nv_add_u32 v3, {N}, v2\nv_min_u32 v2, v2, v3")
            t = 2
        if NF: e(f"v_mul_u32_u24 v3, {k1}, v{t}\nv_mad_u32_u24 v2, v{t}, s{sT2}, v5\nv_min_u32 v2, v2, v3\nv_lshrrev_b32 v2, 22, v2")
        else: e(f"v_mul_u32_u24 v2, s{sT2}, v{t}\nv_lshrrev_b32 v2, {RSH}, v2")
        e(f"""v_lshrrev_b32 v3, 8, v{aD+k}
v_mad_u32_u24 v2, v3, {R}, v2
v_lshl_or_b32 v{aR+4*k+2}, v{aS+k}, 10, v2""")
    e(f"""s_waitcnt lgkmcnt(0)
s_barrier
ds_read_b128 {vr(aC,4)}, v{vL16} offset:{A_HIST}
s_waitcnt lgkmcnt(0)
v_add_u32 v{aST+2}, v{aC}, v{aC+1}
v_add_u32 v{aST+3}, v{aST+2}, v{aC+2}
v_add_u32 v2, v{aST+3}, v{aC+3}
v_mov_b32 v3, v2""")
    scan(3, [f"v_lshlrev_b32 v4, 2, v{vE8}"] + (TA if GPOS != 2 else []))
    e(f"""v_sub_u32 v{aST}, v3, v2
v_add_u32 v{aST+1}, v{aST}, v{aC}
v_add_u32 v{aST+2}, v{aST}, v{aST+2}
v_add_u32 v{aST+3}, v{aST}, v{aST+3}
ds_write_b128 v{vL16}, {vr(aST,4)} offset:{A_START}""")
    for k in range(3):
        if k == 2: e(f"s_mov_b64 exec, {P(m2)}")
        e(f"ds_read_b32 v{aB+k}, v{aB+k} offset:{A_START}")
    e("s_mov_b64 exec, -1")
    if GPOS == 0: e(f"buffer_load_dword v{vREF}, v{vTA}, {S(WS)}, 0 offen {RSC}")
    for k in range(4): e(f"v_lshl_or_b32 v{aE+k}, v{aC+k}, 16, v{aST+k}")
    e(f"s_mov_b32 s{sT2}, {A_YM}\ns_waitcnt vmcnt({5 + nS + (GPOS == 0)}) lgkmcnt(0)")
    for k in range(3):
        if k == 2: e(f"s_mov_b64 exec, {P(m2)}")
        e(f"""v_add_lshl_u32 v2, v{aB+k}, v{aK+k}, 1
v_add_u32 v3, {2048*k}, v4
ds_write_b16 v2, v3 offset:{A_INV}
v_mad_u32_u24 v2, v2, 6, s{sT2}
ds_write2_b32 v2, v{aR+4*k}, v{aR+4*k+1} offset0:0 offset1:1
ds_write_b32 v2, v{aR+4*k+2} offset:8""")
    e(f"""s_mov_b64 exec, -1
v_lshrrev_b32 v2, 4, v{vP16}
v_and_b32 v2, 0xffe, v2
v_and_b32 v5, 1, v{vL}
v_lshlrev_b32 v5, 4, v5
s_waitcnt lgkmcnt(0)
s_barrier""")
    stamp((1, 1), (3, 2))
    aI = TP + 20
    if GPOS == 1: e(f"buffer_load_dword v{vREF}, v{vTA}, {S(WS)}, 0 offen {RSC}")
    if RPOS == 3: side_a()
    if RPOS >= 3 and BPOS == 1: side_b()
    for k in range(2): e(f"ds_read_b128 {vr(aR+4*k,4)}, v{vY16} offset:{A_YM + 1024*k}")
    for k in range(5): e(f"ds_read_u16 v{aI+k}, v2 offset:{A_INV + 64*k}")
    srd(XS, 36, N * 1024); srd(OS, 52, 0 if NOST else N * 1024)
    common_init()
    if IPOS & 1 and not DLY & 1: lane_helpers()
    if IPOS & 2 and not DLY & 2: epi_addr()
    if RPOS >= 3 and BPOS == 0: side_b()
    srd(SC, 50, C * C * 2); srd(DG, 54, 256)
    e("s_waitcnt lgkmcnt(0)")
    for k in range(5): e(f"v_or_b32 v{aI+k}, v{aI+k}, v5")
    e(f"""s_mul_i32 s{sT2}, s{sKB}, {CHP*12}
s_add_u32 s{sT2}, s{sT2}, {WS_YM}
s_mul_i32 s58, s{sKB}, {CHP*32}
s_add_u32 s59, s58, 4096
s_waitcnt vmcnt({EW if EW >= 0 else 3 if RPOS == 5 else 4 if RPOS >= 2 else int(GPOS != 2)})
s_barrier""")
    stamp((4, 2))
    aF = T0
    for k in range(5):
        if k == 4: e(f"s_mov_b64 exec, {P(mE)}")
        e(f"ds_read_b128 {vr(aF+4*k,4)}, v{aI+k} offset:{A_EF}")
    e("s_mov_b64 exec, -1")
    if DLY & 1: lane_helpers()
    if DLY & 2: epi_addr(); e(f"s_mul_i32 s58, s{sKB}, {CHP*32}\ns_add_u32 s59, s58, 4096")
    if EWL >= 0: e(f"s_waitcnt vmcnt({EWL})")
    e(f"""buffer_store_dwordx4 {vr(aR,4)}, v{vY16}, {S(WS)}, s{sT2} offen {PST}
s_mov_b32 exec_hi, s{mY}
{"s_waitcnt vmcnt(0)" if SCAP == 1 else ""}
buffer_store_dwordx4 {vr(aR+4,4)}, v{vY16}, {S(WS)}, s{sT2} offen offset:1024 {PST}
s_mov_b32 exec_hi, -1""")
    for k in range(5):
        if k == 4: e(f"s_mov_b32 exec_lo, s{mT}\ns_mov_b32 exec_hi, s{mE+1}")
        if SCAP and k + 2 >= SCAP: e(f"s_waitcnt vmcnt({SCAP-1})")
        e(f"s_waitcnt lgkmcnt({4-k})\nbuffer_store_dwordx4 {vr(aF+4*k,4)}, v{vP16}, {S(WS)}, s{58 + k//4} offen offset:{1024*(k%4)} {PST}")
    e("s_mov_b64 exec, -1")
    stamp((5, 2))
    e(f"s_mov_b32 s{sRem}, {SPIN}\ns_mov_b32 s{sFIN}, 0\ns_brev_b32 s59, 1\ns_waitcnt vmcnt(7)")
    for k in range(4):
        e(f"v_not_b32 v{aO+k}, v{aO+k}\nv_and_or_b32 v{aE+k}, v{aO+k}, s59, v{aE+k}")
    build_cg()
    if not IPOS & 1: lane_helpers()
    if not IPOS & 2: epi_addr()
    e(f"s_lshl_b32 s58, s{sW}, 12\ns_add_u32 m0, s58, {L_WM}\ns_cmp_eq_u32 s{sW}, 7\ns_waitcnt vmcnt(0) lgkmcnt(0)")
    stamp((6, 2))
    e(f"""s_barrier
s_cbranch_scc0 L_nrow2
buffer_store_dwordx4 {vr(aE,4)}, v{vRW}, {S(WS)}, s{sS0} offen sc1
L_nrow2:""")
    if TBAR: e("s_barrier")
    stamp((2, 1))
    for k in range(4): e(f"buffer_load_dwordx4 v{vL16}, {S(SC)}, s58 offen offset:{1024*k} lds")
    build_wb()
    list_fill()
    e(f"v_and_b32 v7, 1, v{vL}")
    poll("a", 6, 0, False)
    stamp((1, 3), (2, 8), (3, 1))
    e(f"v_bfe_u32 v{vPE}, v6, 16, 11\nv_and_b32 v5, 0xffff, v6\nv_sub_u32 v2, v{vPE}, v7")
    fill = [[], [f"v_add_u32 v5, v5, v{vCH}"], [], [], []]
    for m, f in zip(DPPS[1:], fill):
        if m is not DPPS[1]:
            for x in f: e(x)
            e(f"s_nop {1 - len(f)}")
        e(f"v_add_u32_dpp v{vPE}, v{vPE}, v{vPE} {m} bank_mask:0xf")
    e(f"""v_sub_u32 v3, v{vPE}, v2
v_min_u32 v4, {CAPW}, v{vPE}
v_lshl_add_u32 v6, v3, 2, s{sLB}
v_sub_u32 v4, v4, v3
v_sub_u32 v{vDL}, v5, v3
v_sub_u32 v{vPS}, v3, v7""")

NEF = (CAPW + 31) // 32
def phase_b():
    e("L_exp:")
    for k in range(UNR):
        e(f"v_cmpx_lt_i32 vcc, {2*k}, v4\nds_write_b32 v6, v5 offset:{8*k}\nv_add_u32 v5, 2, v5")
    e(f"""v_cmpx_lt_i32 vcc, {2*UNR}, v4
s_cbranch_execnz L_exp_more
L_exp_done:
s_mov_b64 exec, -1""")
    for k in (3, 2, 1, 0): e(f"ds_read_b32 v{tI+k}, v{vLY} offset:{256*k}")
    e(f"""v_readlane_b32 s{sCW}, v{vPE}, 63
s_mov_b32 s{sT}, {WS_YM}
s_sub_i32 s{sNT}, s{sCW}, s{sW0}
s_cmp_le_i32 s{sNT}, 192""")
    stamp((2, 3))
    for i, k in enumerate((3, 2, 1, 0)):
        if k == 3: e("s_cbranch_scc1 L_sk3")
        e(f"s_waitcnt lgkmcnt({3-i})\nv_mul_u32_u24 v{tI+k}, 12, v{tI+k}\nbuffer_load_dwordx3 {vr(tY+4*k,3)}, v{tI+k}, {S(WS)}, s{sT} offen sc1")
        if k == 3: e("L_sk3:")
    if YBAR == 2: e("s_barrier")
    for k in range(NEF): e(f"ds_read_b32 v{tI+4+k}, v{vLE} offset:{128*k}")
    e(f"s_max_i32 s{sNT}, s{sNT}, 0\ns_min_i32 s{sNT}, s{sNT}, {CAPW}")
    if YBAR == 1: e("s_barrier")
    def ef_dma(k):
        part = k == NEF - 1 and CAPW % 32
        e(f"s_add_u32 m0, s{sEB}, {L_EF + 1024*k}\ns_cmp_le_u32 s{sNT}, {32*(k+1)}")
        if part:
            assert CAPW % 32 > 16
            e(f"s_mov_b32 exec_hi, {hex((1 << (2 * (CAPW % 32) - 32)) - 1)}")
        e(f"buffer_load_dwordx4 v{tI+4+k}, {S(WS)}, 0 offen sc1 lds")
        if part: e("s_mov_b32 exec_hi, -1")
    for k in range(EF1):
        e(f"s_waitcnt lgkmcnt({NEF-1-k})\nv_lshl_or_b32 v{tI+4+k}, v{tI+4+k}, 5, v{vHP}")
        ef_dma(k)
    e("s_waitcnt lgkmcnt(0)")
    for k in range(EF1, NEF): e(f"v_lshl_or_b32 v{tI+4+k}, v{tI+4+k}, 5, v{vHP}")
    for k in range(4):
        e(f"s_sub_i32 s{sT2}, s{sNT}, {64*k}\nv_cmp_gt_i32 {P(mV+2*k)}, s{sT2}, v{vL}")
    e(f"v_mov_b32 v3, s{sCW}\nv_mov_b32 v4, {L_MAXC}\nds_max_u32 v4, v3\nv_mov_b32 v6, 1")
    if SLIM: e(f"v_lshrrev_b32 v5, 2, v{vFA}\nv_add_u32 v5, {L_YI}, v5")
    for i, k in enumerate((3, 2, 1, 0)):
        e(f"""s_waitcnt vmcnt({EF1 + 3 - i})
s_mov_b64 exec, {P(mV+2*k)}
v_and_b32 v2, 0x3ff, v{tY+4*k+2}
v_lshlrev_b32 v{tY+4*k+3}, 2, v2
ds_add_rtn_u32 v{tR+k}, v{tY+4*k+3}, v6 offset:{L_HIST}""")
        if SLIM: e(f"ds_write_b64 v5, {vr(tY+4*k,2)} offset:{512*k}")
    e("s_mov_b64 exec, -1")
    if SLIM:
        for k in range(4): e(f"v_lshrrev_b32 v2, 7, v{tY+4*k+2}\nv_add_u32 v3, {2048*k}, v{vFA}\nv_lshl_or_b32 v{tY+4*k+2}, v3, 12, v2")
    e("s_waitcnt lgkmcnt(0)\ns_barrier")
    stamp((3, 3))
    dg = TP + 4
    for j in range(R // 4): e(f"ds_read_b128 {vr(dg+4*j,4)}, v{vN48} offset:{L_HIST + 16*j}")
    e("ds_read_b32 v4, v4")
    e(f"s_lshl_b32 s{sT}, s2, 3\ns_add_u32 s{sT}, s{sT}, s{sW}\ns_add_u32 s{sT}, s{sT}, s{sW0}\ns_cmp_eq_u32 s{sT}, 7\ns_cbranch_scc0 L_noall")
    allrows()
    e(f"L_noall:\ns_cmp_le_u32 s{sNT}, {32*EF1}")
    for k in range(EF1, NEF):
        e("s_cbranch_scc1 L_efd")
        ef_dma(k)
    e("L_efd:")
    def xpf(pos):
        if XP and XPOS == pos:
            e(f"""s_mov_b32 exec_lo, {hex((1 << min(XP, 32)) - 1)}
s_mov_b32 exec_hi, {hex((1 << max(XP - 32, 0)) - 1)}
buffer_load_dword v{vJUNK}, v{vXA}, {S(XS)}, 0 offen
s_mov_b64 exec, -1""")
    xpf(0)
    e(f"v_cmp_gt_u32 vcc, 40, v{vL}\ns_waitcnt lgkmcnt(0)\nv_readfirstlane_b32 s{sT}, v4")
    e(f"v_add_u32 v3, v{dg}, v{dg+1}")
    for j in range(2, R, 2): e(f"v_add3_u32 v3, v3, v{dg+j}, v{dg+j+1}")
    e(f"""v_lshl_or_b32 v3, v3, 6, v{vNODE}
v_cndmask_b32 v3, 0, v3, vcc
s_max_u32 s{sMAXC}, s{sMAXC}, s{sT}
s_cmp_lg_u32 s{sW0}, 0
s_cbranch_scc1 L_havepos""")
    for j in range(5): e(f"v_readlane_b32 s{64+j}, v3, {j}")
    for j in range(5): e(f"v_cmp_lt_u32 {P(70+2*j)}, s{64+j}, v3")
    for j in range(5): e(f"s_bcnt1_i32_b64 s{64+j}, {P(70+2*j)}")
    for j in range(5): e(f"v_readlane_b32 s{70+j}, v{vMAP}, s{64+j}")
    for j in range(5): e(f"v_writelane_b32 v{vPOS}, s{70+j}, {j}")
    e(f"""v_lshlrev_b32 v{vPOS}, 2, v{vPOS}
L_havepos:
s_mov_b64 exec, 31
ds_write_b32 v{vPOS}, v3 offset:{L_ENTRY}
s_mov_b64 exec, -1
v_lshlrev_b32 v4, 2, v{vL}
v_and_b32 v6, 7, v{vL}
v_cmp_gt_u32 s[34:35], s{sW}, v6
s_and_b64 s[34:35], s[34:35], vcc
v_cmp_gt_u32 vcc, {5*R}, v{vL}""")
    xpf(1)
    e("s_waitcnt lgkmcnt(0)\ns_barrier")
    stamp((4, 3), (1, 7))
    if STAMP == 7: e("s_waitcnt vmcnt(0)")
    stamp((2, 7))
    c0, c1, c2, c3 = T0 + 36, T0 + 37, T0 + 38, T0 + 39
    e(f"""ds_read_b32 v{c3}, v{vEN} offset:{L_ENTRY}
ds_read_b32 v4, v4 offset:{L_ENTRY}
s_waitcnt lgkmcnt(1)
v_and_b32 v{c3}, 63, v{c3}
v_mad_u32_u24 v3, v{c3}, {4*R}, v{vR4}
ds_read_b32 v{c0}, v3 offset:{L_HIST}
s_waitcnt lgkmcnt(1)
v_lshrrev_b32 v4, 6, v4
v_cndmask_b32 v{c2}, 0, v4, s[34:35]
v_mul_u32_u24 v{c3}, {4*TROW}, v{c3}
s_waitcnt lgkmcnt(0)
v_cndmask_b32 v{c0}, 0, v{c0}, vcc
v_mov_b32 v{c1}, v{c0}""")
    scan2(c1, c2, [f"v_readlane_b32 s{sROW+j}, v{c3}, {j}" for j in range(5)] + [f"v_lshlrev_b32 v4, {0 if SLIM else 3}, v{vS}", f"s_min_u32 s{sMAXC}, s{sMAXC}, {32*CH}"])
    e(f"""v_sub_u32 v{c0}, v{c1}, v{c0}
v_readlane_b32 s{sS0}, v{c2}, 63
v_readlane_b32 s{sN}, v{c1}, 63
s_lshl_b32 s{sT}, s{sS0}, {ES}
s_add_u32 s{sT}, s{sT}, {L_SW if SLIM else L_ST}
v_lshl_add_u32 v{c0}, v{c0}, {ES}, s{sT}
v_lshl_or_b32 v{c0}, v{c0}, 10, v4
s_mov_b64 exec, vcc
ds_write_b32 v3, v{c0} offset:{L_TBL}
s_mov_b64 exec, -1
s_min_u32 s{sN}, s{sN}, {8*CAPW}
v_lshl_add_u32 v{vEntA}, v{vQ}, {ES}, s{sT}
v_and_b32 v2, 3, v{vL}
v_bfe_u32 v3, v{vL}, 3, 2
v_lshl_add_u32 v2, v3, 2, v2
v_lshl_add_u32 v{vEfA}, v2, {ES}, s{sT}
s_movk_i32 s{sT2}, {7 if SLIM else 0x3ff}""")
    xpf(2)
    e("s_waitcnt lgkmcnt(0)\ns_barrier")
    stamp((5, 3))
    for k in range(4): e(f"s_mov_b64 exec, {P(mV+2*k)}\nds_read_b32 v{tI+k}, v{tY+4*k+3} offset:{L_TBL}")
    e("s_mov_b64 exec, -1")
    for k in range(0 if SLIM else 4): e(f"v_add_u32 v{tY+4*k+3}, {2048*k}, v{vFA}")
    e("s_waitcnt lgkmcnt(0)")
    for k in range(4):
        e(f"""s_mov_b64 exec, {P(mV+2*k)}
v_bfi_b32 v{tY+4*k+2}, s{sT2}, v{tI+k}, v{tY+4*k+2}
v_lshrrev_b32 v{tI+k}, 10, v{tI+k}
v_lshl_add_u32 v{tI+k}, v{tR+k}, {ES}, v{tI+k}""")
        e(f"ds_write_b32 v{tI+k}, v{tY+4*k+2}" if SLIM else f"ds_write_b128 v{tI+k}, {vr(tY+4*k,4)}")
    e(f"""s_mov_b64 exec, -1
v_cmp_gt_i32 vcc, s{sN}, v{vQ}
v_mov_b32 v4, s{sDUM}
s_waitcnt lgkmcnt(0)
s_barrier""")
    stamp((4, 1), (6, 3), (5, 8))

lane_of = lambda q: 4 * (q % 16) + (q % 64) // 16
ring = lambda q: RING + q % 16
def xload(q, so): return f"buffer_load_dwordx4 {vr(X+4*(q%D),4)}, v{vL16}, {S(XS)}, s{so} offen"
def rd_efa(us):
    for u in us: e(f"s_mov_b64 exec, {P((mU0,mU1)[u])}\nds_read_b128 {vr(EFA+4*u,4)}, v{EFAD} offset:{L_EF}")
    e("s_mov_b64 exec, -1")
def rmfma(buf, j):
    u, par = j // 2, j % 2
    d = T[buf] + 16 * par
    return f"v_mfma_f32_32x32x16_bf16 {vr(d,16)}, {vr(EFA+4*u,4)}, {vr(WB+4*(2*u+par),4)}, {'0' if u == 0 else vr(d,16)}"
BST = 16 << ES; EO = 0 if SLIM else 12
rd_ent = lambda: f"ds_read_b32 v{ENT+3}, v{vEntA}" if SLIM else f"ds_read_b128 {vr(ENT,4)}, v{vEntA}"
def mk_efad(src):
    if SLIM: e(f"v_lshrrev_b32 v{src}, 12, v{src}")
    e(f"v_and_or_b32 v{EFAD}, v{src}, s{sEFM}, v{vH16}")
def mk_meta():
    e(f"v_bfe_u32 v3, v{ENT+3}, 3, 14\nv_and_b32 v{ENT+2}, 7, v{ENT+3}\nv_lshlrev_b32 v{ENT+2}, 3, v{ENT+2}\nv_lshl_or_b32 v{ENT+2}, v3, 10, v{ENT+2}")
def rd_y():
    e(f"v_bfe_u32 v3, v{ENT+3}, 17, 11\nv_lshl_add_u32 v3, v3, 3, s{sYI}\nds_read_b64 {vr(ENT,2)}, v3")
def loop():
    e(f"""{rd_ent()}
ds_read_b32 v{EFAD}, v{vEfA} offset:{EO}
ds_read_b32 v2, v{vEfA} offset:{BST+EO}
s_mov_b32 s{sYI}, {L_YI}
s_waitcnt lgkmcnt({2 if SLIM else 0})""")
    if SLIM: mk_meta()
    e(f"v_cndmask_b32 v{META}, v4, v{ENT+2}, vcc")
    if SLIM: e("s_nop 0")
    else: mk_efad(EFAD)
    for q in range(DIST): e(f"v_readlane_b32 s{ring(q)}, v{META}, {lane_of(q)}")
    for q in range(PRE): e(f"s_and_b32 s{sOFF+q%4}, s{ring(q)}, s{sMASK}\n{xload(q, sOFF+q%4)}")
    if SLIM: e("s_waitcnt lgkmcnt(0)"); mk_efad(EFAD); rd_y()
    e(f"s_waitcnt vmcnt({PRE + (1 if XP else 0)})\ns_barrier")
    stamp((5, 1), (5, 5))
    if STAMP: e("s_memtime s[60:61]")
    rd_efa((0, 1))
    mk_efad(2)
    for q in range(PRE, 4): e(f"s_and_b32 s{sOFF+q%4}, s{ring(q)}, s{sMASK}\n{xload(q, sOFF+q%4)}")
    e("s_waitcnt lgkmcnt(0)")
    for j in range(4): e(rmfma(0, j))
    def rest_loads():
        for q in range(max(PRE, 4), DIST): e(f"s_and_b32 s{sOFF+q%4}, s{ring(q)}, s{sMASK}\n{xload(q, sOFF+q%4)}")
    if not WMP: rest_loads()
    else: e("s_nop 7")
    rd_efa((0,))
    e(f"s_cmp_lg_u32 s{sW0}, 0\ns_cbranch_scc1 L_wdone")
    build_wm()
    e(f"L_wdone:\ns_mov_b32 s{sYI}, {L_YI}")
    if WMP: rest_loads()
    e(f"s_cmp_eq_u32 s{sW}, 7\ns_cselect_b32 s3, 64, 0x80000000\ns_mov_b32 s{sFIN}, 1\ns_mov_b32 s{sRem}, s{sN}\ns_waitcnt lgkmcnt(0)")
    if AL >= 0:
        e("s_branch L_sb\n.p2align 6")
        for _ in range(AL): e("s_nop 0")
    e("L_sb:")
    if STAMP == 5: e("s_mov_b32 s86, s88\ns_mov_b32 s88, s90\ns_memrealtime s[90:91]")
    e(f"s_cmp_gt_i32 s{sRem}, s3\ns_cbranch_scc1 L_nofl\ns_load_dword s{sFIN}, s[54:55], 0\nL_nofl:")
    for i in range(4): e(f"v_mfma_f32_4x4x4_16b_bf16 {vr(TP+4*i,4)}, {vr(ENT,2)}, {vr(CG+2*i,2)}, 0")
    e(f"v_add_u32 v{vEntA}, {4*BST}, v{vEntA}\ns_sub_u32 s{sT}, s{sRem}, 64\nv_cmp_gt_i32 s[34:35], s{sT}, v{vQ}\ns_cmp_le_i32 s{sRem}, 0\ns_nop 0")
    for r in range(4):
        e(f"v_cvt_pk_bf16_f32 v{AE+2*r}, v{TP+r}, v{TP+4+r}\nv_cvt_pk_bf16_f32 v{AE+2*r+1}, v{TP+8+r}, v{TP+12+r}")
    e(f"{rd_ent()}\nds_read_b32 v{vCNT}, v{vCA}")
    for q in range(0, 64, 4):
        b, p = q // 16, (q % 16) // 4
        cur = b % 2
        te, to = T[cur] + q % 16, T[cur] + 16 + q % 16
        e(f"; ---- edges {q}..{q+3}")
        mf = lambda d, x, qq: f"v_mfma_f32_4x4x4_16b_bf16 {vr(d,4)}, {vr(AE+2*b,2)}, {vr(x,2)}, 0 cbsz:4 abid:{qq%16}"
        e("s_cbranch_scc1 L_exit")
        if STAMP == 5 and q == SQ: e(f"s_cmp_eq_u32 s{sRem}, s{sN}\ns_cbranch_scc0 L_nst\ns_memrealtime s[92:93]\nL_nst:")
        if PRIO == 2 and p == 0: e(f"s_setprio {3-b}")
        if PRIO == 4 and p % 2 == 0: e(f"s_setprio {3 - (q // 8) % 4}")
        if q + DIST == 64: e(f"v_cndmask_b32 v{META}, v4, v{ENT+2}, s[34:35]")
        e(f"s_waitcnt vmcnt({DIST-4})")
        for j in range(4):
            x = X + 4 * ((q + j) % D)
            e(f"""{mf(TP+8*j, x, q+j)}
v_exp_f32 v{TMP+j}, v{te+j}
{mf(TP+8*j+4, x+2, q+j)}
v_exp_f32 v{TMP+4+j}, v{to+j}""")
        for j in range(4): e(f"v_readlane_b32 s{ring(q+DIST+j)}, v{META}, {lane_of(q+DIST+j)}")
        if p == 2: mk_efad(2)
        if SLIM and q == 16: mk_meta(); rd_y()
        for j in range(4):
            e(f"s_and_b32 s{sOFF+j}, s{ring(q+DIST+j)}, s{sMASK}")
            e(f"v_pk_fma_f32 {vr(TMP+2*j,2)}, {vr(TMP+2*j,2)}, {P(sK)}, {P(sK)}")
        e(rmfma(1 - cur, p))
        for j in range(8):
            e(f"v_rcp_f32 v{TMP+j}, v{TMP+j}")
            if j >= 4: e(xload(q + DIST + j - 4, sOFF + j - 4))
        if q < 60: e(f"s_cmp_le_i32 s{sRem}, {q+4}")
        if p == 0: rd_efa((1,)); e(f"ds_read_b32 v2, v{vEfA} offset:{BST*(b+2)+EO}")
        if p == 2: rd_efa((0,))
        if p in (1, 3): e("s_waitcnt lgkmcnt(0)")
        for j in range(2): e(f"v_pk_mul_f32 {vr(TMP+2*j,2)}, {vr(TMP+2*j,2)}, {vr(te+2*j,2)}")
        for j in range(2): e(f"v_pk_mul_f32 {vr(TMP+4+2*j,2)}, {vr(TMP+4+2*j,2)}, {vr(to+2*j,2)}")
        for s in range(4):
            e(f"s_set_gpr_idx_on s{ring(q+s)}, gpr_idx(SRC2,DST)" if s == 0 else f"s_set_gpr_idx_idx s{ring(q+s)}")
            for j in range(4):
                e(f"v_pk_fma_f32 {vr(ACC+2*j,2)}, {vr(TMP+4*(j//2)+2*(s//2),2)}, {vr(TP+8*s+2*j,2)}, {vr(ACC+2*j,2)} op_sel:[{s%2},0,0] op_sel_hi:[{s%2},1,1]")
        e("s_set_gpr_idx_off")
    e(f"""v_add_u32 v{vEfA}, {4*BST}, v{vEfA}
s_sub_u32 s{sRem}, s{sRem}, 64
s_branch L_sb
L_exit:""")
    if PRIO: e("s_setprio 0")
    stamp((6, 1), (6, 5), (1, 6), (6, 8))
    if STAMP: e("s_memtime s[62:63]")
    e(f"""s_add_u32 s{sW0}, s{sW0}, {CAPW}
s_cmp_lt_u32 s{sW0}, s{sMAXC}
s_cbranch_scc0 L_epi
v_lshlrev_b32 v7, 3, v0
v_mov_b32 v2, 0
v_mov_b32 v3, 0
ds_write_b64 v7, v[2:3]
s_waitcnt vmcnt(0) lgkmcnt(0)
s_nop 15""")
    lane_helpers()
    list_fill()
    e(f"""s_barrier
v_and_b32 v2, 1, v0
v_max_u32 v3, s{sW0}, v{vPS}
v_add_u32 v3, v3, v2
s_add_u32 s{sT2}, s{sW0}, {CAPW}
v_min_u32 v4, s{sT2}, v{vPE}
v_add_u32 v5, v{vDL}, v3
s_lshl_b32 s{sT2}, s{sW0}, 2
s_sub_u32 s{sT2}, s{sLB}, s{sT2}
v_lshl_add_u32 v6, v3, 2, s{sT2}
v_sub_u32 v4, v4, v3
s_branch L_exp
L_exp_more:
v_add_u32 v6, {8*UNR}, v6
v_subrev_u32 v4, {2*UNR}, v4
s_branch L_exp
L_epi:""")

def epilogue():
    FB = EFA; FD = ACC; FO = TP + 16
    FA = lambda t: T0 + 16 * t
    assert CG + 8 == EFA + 32 and TP == T0 + 64
    def rdB():
        for ks in range(4):
            for par in range(2): e(f"ds_read_b128 {vr(FB+16*par+4*ks,4)}, v{vBA} offset:{8192*ks + 256*par}")
    e(f"""s_waitcnt lgkmcnt(0)
v_readfirstlane_b32 s38, v{vCNT}
v_lshlrev_b32 v2, 2, v{vL}""")
    for s in range(5):
        e(f"v_add_u32 v3, s{sROW+s}, v2")
        for o in range(4): e(f"v_cvt_pk_bf16_f32 v{ACC+8*s+o}, v{ACC+8*s+o}, v{ACC+8*s+4+o}")
        for o in range(0, 4, 2): e(f"ds_write2_b32 v3, v{ACC+8*s+o}, v{ACC+8*s+o+1} offset0:{o*TROW//4} offset1:{(o+1)*TROW//4}")
    e("s_cmp_eq_u32 s38, 8\ns_cbranch_scc0 L_nob")
    rdB()
    e("s_waitcnt lgkmcnt(8)")
    stamp((2, 6))
    e("s_barrier\ns_branch L_haveb\nL_nob:\ns_waitcnt lgkmcnt(0)\ns_barrier")
    rdB()
    e("L_haveb:")
    stamp((3, 6))
    def rdA(t):
        for ks in range(4): e(f"ds_read_b128 {vr(FA(t)+4*ks,4)}, v{vAA} offset:{L_TILE + t*16*TROW + 64*ks}")
    def fin(t):
        d = FD + 8 * t; o = FO + 4 * (t % 4)
        for j in range(4): e(f"v_cvt_pk_bf16_f32 v{o+j}, v{d+2*j}, v{d+2*j+1}")
        e(f"buffer_store_dwordx4 {vr(o,4)}, v{vOA}, {S(OS)}, 0 offen {OUTST}")
        if t < 4: e(f"v_add_u32 v{vOA}, {4*256*1024}, v{vOA}")
    rdA(0); rdA(1); rdA(2)
    issued = 12
    for t in range(5):
        d = FD + 8 * t
        for ks in range(4):
            e(f"s_waitcnt lgkmcnt({issued - 4*t - ks - 1})")
            for par in range(2):
                e(f"v_mfma_f32_16x16x32_bf16 {vr(d+4*par,4)}, {vr(FA(t)+4*ks,4)}, {vr(FB+16*par+4*ks,4)}, {'0' if ks == 0 else vr(d+4*par,4)}")
            if ks == 0 and t + 3 < 5: rdA(t + 3); issued += 4
            if ks == 2 and t >= 1: fin(t - 1)
    e("s_nop 7")
    fin(4)
    stamp((4, 6))
    e(f"s_cmp_eq_u32 s{sFIN}, 0\ns_cbranch_scc0 L_fin")
    allrows()
    e("L_fin:")
    if STAMP:
        e("s_waitcnt vmcnt(0)"); stamp((7, 0))
        e(f"""s_lshl_b32 s34, s2, 3
s_add_u32 s34, s34, s{sW}
s_add_u32 s34, s34, 4096
s_getreg_b32 s59, hwreg(HW_REG_HW_ID)
s_mov_b64 exec, 1
s_lshl_b32 s34, s34, 6
s_add_u32 s34, s34, {WS_STAMP}
v_mov_b32 v2, 0""")
        for i, r in enumerate([84 + 2*i for i in range(8)] + [60, 62, sN, 59]):
            e(f"v_mov_b32 v3, s{r}\nbuffer_store_dword v3, v2, {S(WS)}, s34 offen offset:{4*i}")
    e("L_end:\ns_endpgm")

ref = open("standalone__tensor_product_equiv_tfn__graph.s.ref").read().splitlines()
for l in ref:
    if l.startswith("; Override"): break
    out.append(l)
out.append("; Generated by gen/gen2.py " + " ".join(sys.argv[2:]))
out.append(f"; @launch grid=(256,1,1) block=(512,1,1) lds={M_LDS}")
e('.amdgcn_target "amdgcn-amd-amdhsa--gfx950"\n.text')
phase_a(); phase_b(); loop(); epilogue()
e(f""".section .rodata,"a"
.p2align 6
.amdhsa_kernel {KNAME}
.amdhsa_next_free_vgpr {NV}
.amdhsa_next_free_sgpr 100
.amdhsa_accum_offset {(NV+3)//4*4}
.amdhsa_group_segment_fixed_size 0
.amdhsa_kernarg_size 88
.amdhsa_user_sgpr_count 2
.amdhsa_user_sgpr_kernarg_segment_ptr 1
.amdhsa_system_sgpr_workgroup_id_x 1
.amdhsa_float_denorm_mode_32 3
.end_amdhsa_kernel""")
if NOLOAD or NOV:
    i0 = out.index("L_sb:"); i1 = out.index("L_exit:")
    rm = tuple((["buffer_load"] if NOLOAD else []) + (NOV.split(",") if NOV else []))
    out[i0:i1] = [l for l in out[i0:i1] if not l.strip().startswith(rm)]
if E64:
    i0 = out.index("L_sb:"); i1 = out.index("L_exit:")
    for i in range(i0, i1):
        l = out[i].strip()
        if (E64 & 1) and l.startswith("v_exp_f32"): out[i] = out[i].replace("v_exp_f32", "v_exp_f32_e64")
        if (E64 & 2) and l.startswith("v_rcp_f32"): out[i] = out[i].replace("v_rcp_f32", "v_rcp_f32_e64")
text = "\n".join(out) + "\n"
errs = hazard.check(text)
for x in errs: print("HAZARD", x)
open(sys.argv[1], "w").write(text)
print(f"wrote {sys.argv[1]}: NV={NV} LDS={M_LDS} hazards={len(errs)}")
```

```python
import sys, struct, math
sys.path.insert(0, "gen")
import hazard

OPT = dict(STAMP=0, SQ=16, SLOWT=0, NOLOAD=0, NOV="", R=12, EF1=2, PRE=4, YBAR=1, ROT=2, CPF=3, EARLY=0, UNR=6,
           OUTST="sc1", PRIO=3, XP=0, TBAR=1, RPOS=4, RTCH=0, GPOS=1, EW=-1, CPOS=2, SCAP=0, AL=-1, E64=0, BPOS=1, IPOS=3, SPR=1, NF=0, W1=300, PST='sc1', INT='', DLY=0, EWL=2, XPOS=0, WMP=0, TR=288, NOST=0, RSC='sc1', SLIM=0, WBE=0, PD=0, WMD=0, W2=0, LP='F4,F4,F4,F4', PS='Q', SA=2, SCH=2, SP='F', POLL2=0, DST=0, TLB=0, EFF=0, TH=0, TS=1, TH2=0, TL=0)
for a in sys.argv[2:]:
    k, v = a.split("=")
    assert k in OPT, k
    OPT[k] = int(v) if v.lstrip("-").isdigit() else v.replace("+", " ")
globals().update(OPT)

KNAME = "standalone__tensor_product_equiv_tfn__graph_kernel"
N, E, C = 10000, 320000, 128
CH = 1250; CHP = 1280
WS_EF = 0; WS_YM = 256 * CHP * 32; WS_TBL = WS_YM + 256 * CHP * 12
WS_STAMP = 0x1000000
WS_SIZE = 0x1000000 + (0x100000 if STAMP else 0) + (0x400000 if DST else 0)
assert WS_TBL + 256 * 1024 <= WS_STAMP
def f32(x): return "0x%08x" % struct.unpack("<I", struct.pack("<f", x))[0]
LOG2E = math.log2(math.e); LN2 = math.log(2.0)
RMUL, RSH = {4: (6711, 24), 8: (6711, 23), 12: (5033, 22)}[R]
assert (9999 * RMUL) >> RSH == R - 1
SPIN = 400000
OOB = 0x00ffffff

CAPW = 216; TROW = TR
L_HIST = 0; L_MAXC = 2048; A_HIST = 3072; L_ENTRY = 4096; L_TBL = 4608; L_CG = 6656
L_LIST = 8192; L_WR = 16384
L_TILE = 0
L_EF = 160 * TROW; L_ST = L_EF + 8 * CAPW * 32; L_WM = L_ST + 8 * CAPW * 16; L_CNT = L_WM + 32768
M_LDS = L_CNT + 16
L_YI = L_ST; L_SW = L_ST + 8 * CAPW * 8
ES = 2 if SLIM else 4
A_YM = L_EF; A_EF = A_YM + CHP * 12; A_INV = L_LIST; A_START = L_LIST + 2560
assert M_LDS <= 163840 and A_EF < 65536 and A_EF + CHP * 32 <= L_WM and 40 * R * 4 <= 2048 and 5 * R <= 64 and R % 4 == 0

D = 8; DIST = 8
ACC = 8; X = 48; T0 = 80; T = [T0, T0 + 32]; TP = T0 + 64; TMP = TP + 32; AE = TMP + 8; EFA = AE + 8; WB = EFA + 8
CG = WB + 16; ENT = CG + 8; META = ENT + 4; EFAD = META + 1
vEntA = EFAD + 1; vEfA = vEntA + 1; vL16 = vEfA + 1; vH16 = vL16 + 1; vQ = vH16 + 1
vPS = vQ + 1; vPE = vPS + 1; vDL = vPE + 1; vPOS = vDL + 1; vJUNK = vPOS + 1; vBA = vJUNK + 1; vAA = vBA + 1; vOA = vAA + 1; vCNT = vOA + 1; vCA = vCNT + 1; NV = vCA + 1
vL = 1
assert NV <= 256
XS, WS, OS = 4, 8, 12
sW, sKB, sN, sCW, sW0, sMAXC, sT, sT2, sNT, sS0, sRem = 16, 17, 18, 19, 24, 25, 26, 27, 28, 29, 30
mU0, mU1 = 20, 22
sMASK, sDUM, sEFM = 31, 32, 33
mV = 36
DG = 44
sROW = 48
sFIN = 53
sYI = 59
sEW = 82
sK = 56
RING = 64; sOFF = 80
DUMMY = (N * 1024) | 40
MAP39 = [0, 5, 6, 3, 0, 7, 2, 4, 1, 0, 2, 7, 1, 0, 6, 3, 5, 4, 1, 7, 4, 6, 3, 2, 5, 4, 5, 7, 2, 1, 3, 6, 4, 1, 3, 2, 6, 7, 5, 0]
MAP40 = [7, 0, 5, 2, 4, 3, 1, 6, 4, 1, 6, 3, 7, 2, 0, 5, 5, 6, 3, 0, 7, 1, 2, 4, 2, 5, 3, 1, 4, 6, 0, 7, 6, 1, 4, 3, 2, 0, 5, 7]
def posmap(m):
    c = [0] * 8; o = []
    for w in m: o.append(c[w] * 8 + w); c[w] += 1
    assert sorted(o) == list(range(40))
    return o

out = []
def e(s=""):
    for l in s.split("\n"):
        l = l.strip()
        if not l: continue
        out.append(l if l.endswith(":") or l.startswith((".", ";")) else "    " + l)
def vr(a, n): return f"v[{a}:{a+n-1}]" if n > 1 else f"v{a}"
def S(a): return f"s[{a}:{a+3}]"
def P(a): return f"s[{a}:{a+1}]"
def srd(d, base, nbytes):
    e(f"s_mov_b32 s{d}, s{base}\ns_mov_b32 s{d+1}, s{base+1}\ns_mov_b32 s{d+2}, {nbytes}\ns_mov_b32 s{d+3}, 0x00020000")
DPPS = ("row_shr:1 row_mask:0xf", "row_shr:2 row_mask:0xf", "row_shr:4 row_mask:0xf", "row_shr:8 row_mask:0xf",
        "row_bcast:15 row_mask:0xa", "row_bcast:31 row_mask:0xc")
def scan(v, fill=()):
    fill = list(fill)
    for m in DPPS:
        k = 0
        while k < 2 and fill: e(fill.pop(0)); k += 1
        if k < 2: e(f"s_nop {1-k}")
        e(f"v_add_u32_dpp v{v}, v{v}, v{v} {m} bank_mask:0xf")
    for x in fill: e(x)
def scan2(v1, v2, fill=()):
    fill = list(fill)
    e(fill.pop(0) if fill else "s_nop 0")
    for m in DPPS:
        e(fill.pop(0) if fill else "s_nop 0")
        e(f"v_add_u32_dpp v{v1}, v{v1}, v{v1} {m} bank_mask:0xf\nv_add_u32_dpp v{v2}, v{v2}, v{v2} {m} bank_mask:0xf")
    for x in fill: e(x)
def stamp(*specs):
    for i, st in specs:
        if STAMP and (st == STAMP or st == 0):
            e(f"s_memrealtime s[{84+2*i}:{85+2*i}]")
            if (i, st) not in ((1, 2), (2, 2), (3, 2), (5, 2)): e("s_waitcnt lgkmcnt(0)")

tY = T0
tI = T0 + 16
tR = T0 + 28
vMAP, vNODE, vR4, vS, vXA = T0 + 32, T0 + 33, T0 + 34, T0 + 35, T0 + 40
vLY, vLE, vHP, vCH, vN48, vEN, vFA = T0 + 41, T0 + 42, T0 + 43, T0 + 44, T0 + 45, T0 + 46, T0 + 47
sLB, sEB = 81, 80
vREF, vTA, vP2 = X + 11, X + 10, X + 4

def lane_helpers():
    e(f"""s_mul_i32 s{sT}, s{sW}, 5
v_add_u32 v{vNODE}, s{sT}, v{vL}
v_subrev_u32 v3, 40, v{vNODE}
v_min_u32 v{vNODE}, v{vNODE}, v3
v_mul_u32_u24 v3, 205, v{vL}
v_lshrrev_b32 v3, 10, v3
v_mul_u32_u24 v2, 5, v3
v_sub_u32 v{vS}, v{vL}, v2""")
    if ROT == 1:
        e(f"""s_lshr_b32 s{sT}, s{sKB}, 5
s_mul_i32 s{sT}, s{sT}, {R}
s_lshr_b32 s{sT}, s{sT}, 3
v_add_u32 v3, s{sT}, v3
v_subrev_u32 v2, {R}, v3
v_min_u32 v3, v3, v2""")
    e(f"""v_lshlrev_b32 v{vR4}, 2, v3
s_lshl_b32 s{sLB}, s{sW}, 10
s_add_u32 s{sLB}, s{sLB}, {L_LIST}
s_mul_i32 s{sEB}, s{sW}, {CAPW*32}
v_lshl_add_u32 v{vLY}, v{vL}, 2, s{sLB}
v_lshrrev_b32 v3, 1, v{vL}
v_lshl_add_u32 v{vLE}, v3, 2, s{sLB}
v_and_b32 v2, 1, v{vL}
v_lshlrev_b32 v{vHP}, 4, v2
v_lshrrev_b32 v3, 1, v0
v_mul_u32_u24 v3, {CHP}, v3
v_add_u32 v{vCH}, v3, v2
v_mul_u32_u24 v{vN48}, {4*R}, v{vNODE}
s_lshl_b32 s{sT}, s{sW}, 2
v_lshl_add_u32 v{vEN}, v{vS}, 5, s{sT}
v_lshl_add_u32 v{vFA}, v{vL}, 5, s{sEB}
s_lshr_b32 s{sT}, s2, 6
s_mul_i32 s{sT}, s{sT}, 65
s_sub_u32 s{sT}, s2, s{sT}
s_lshl3_add_u32 s{sT}, s{sT}, s{sW}
s_cmp_eq_u32 s{sT}, 7
s_cselect_b32 s{sEW}, 0, 1""")
    if XP:
        assert ROT == 2
        e(f"""s_lshr_b32 s{sT}, s{sKB}, 5
s_mul_i32 s{sT}, s{sT}, {1250 - 32}
s_add_u32 s{sT}, s{sT}, s{sKB}
s_lshl3_add_u32 s{sT}, s{sT}, s{sW}
s_lshl_b32 s{sT}, s{sT}, 7
v_lshl_add_u32 v{vXA}, v{vL}, 15, s{sT}""")

def list_fill():
    for i in range(4): e(f"v_mov_b32 v{tY+i}, {hex(OOB)}")
    e(f"v_add_u32 v2, s{sLB}, v{vL16}\nds_write_b128 v2, {vr(tY,4)}")

def common_init():
    e(f"""s_mov_b32 s{mU0}, 0x0f0f0f0f
s_mov_b32 s{mU0+1}, 0x0f0f0f0f
s_mov_b32 s{mU1}, 0xf0f0f0f0
s_mov_b32 s{mU1+1}, 0xf0f0f0f0
s_mov_b32 s{sMASK}, 0xfffffc00
s_mov_b32 s{sDUM}, {hex(DUMMY)}
s_mov_b32 s{sEFM}, 0xffe0
s_mov_b32 s{sW0}, 0
s_mov_b32 s{sMAXC}, 0""")
    for i in range(40): e(f"v_mov_b32 v{ACC+i}, 0")
    for i in range(8): e(f"v_mov_b32 v{EFA+i}, 0")
    e(f"v_mov_b32 v{vMAP}, 0\nv_mov_b32 v{vPOS}, 0\ns_cmp_lt_u32 s{2 if SPR else sKB}, {N - 39*256}\ns_cbranch_scc1 L_map40")
    for r, p in enumerate(posmap(MAP39)): e(f"v_writelane_b32 v{vMAP}, {p}, {r}")
    e("s_branch L_mapd\nL_map40:")
    for r, p in enumerate(posmap(MAP40)): e(f"v_writelane_b32 v{vMAP}, {p}, {r}")
    e("L_mapd:")
    e(f"""v_and_b32 v2, 3, v{vL}
v_lshrrev_b32 v3, 2, v{vL}
v_lshl_add_u32 v{vQ}, v2, 4, v3
v_lshrrev_b32 v2, 5, v{vL}
v_lshlrev_b32 v{vH16}, 4, v2""")

def epi_addr():
    e(f"""s_and_b32 s{sT}, s{sW}, 3
s_lshl_b32 s58, s{sT}, 9
s_add_u32 s58, s58, {L_WM}
v_lshrrev_b32 v3, 4, v{vL}
v_mul_u32_u24 v2, {2048 - 256}, v3
v_add3_u32 v{vBA}, v2, s58, v{vL16}
s_lshr_b32 s58, s{sW}, 2
v_and_b32 v2, 15, v{vL}
v_mul_u32_u24 v{vAA}, {TROW}, v2
v_lshl_add_u32 v{vAA}, v3, 4, v{vAA}
s_mul_i32 s59, s58, {80*TROW}
v_add_u32 v{vAA}, s59, v{vAA}
v_lshlrev_b32 v{vOA}, 18, v3
v_lshl_add_u32 v{vOA}, v2, 4, v{vOA}
s_mul_i32 s58, s58, {20*256*1024}
s_lshl_b32 s59, s{2 if SPR else sKB}, 10
s_add_u32 s58, s58, s59
s_lshl_b32 s59, s{sT}, 8
s_add_u32 s58, s58, s59
v_add_u32 v{vOA}, s58, v{vOA}
v_mov_b32 v{vCA}, {L_CNT}""")

def build_cg():
    e(f"""v_and_b32 v2, 0x30, v{vL}
v_and_b32 v3, 3, v{vL}
v_lshl_add_u32 v2, v3, 2, v2
v_bfe_u32 v7, v{vL}, 2, 2
v_add_lshl_u32 v2, v2, v7, 1
ds_write_b16 v2, v{X+9} offset:{L_CG}
v_lshlrev_b32 v3, 3, v3""")
    for k in range(4): e(f"ds_read_b64 {vr(CG+2*k,2)}, v3 offset:{L_CG + 32*k}")

def build_wm(fM=T0 + 32):
    wM = TP + 16
    e(f"""v_lshrrev_b32 v7, 5, v0
v_and_b32 v3, 31, v{vL}
v_lshlrev_b32 v7, 11, v7
v_add_u32 v7, {L_WM}, v7
v_lshl_add_u32 v2, v3, 3, v7""")
    for m in range(8): e(f"ds_read_b64 {vr(wM+2*m,2)}, v2 offset:{256*m}")
    e(f"""s_mov_b32 s58, 0x05040100
s_mov_b32 s59, 0x07060302
v_bfe_u32 v3, v0, 3, 2
v_lshl_add_u32 v7, v3, 9, v7
v_and_b32 v3, 7, v0
v_lshl_add_u32 v7, v3, 5, v7
v_mov_b32 v5, {L_CNT}
v_mov_b32 v6, 1
s_waitcnt lgkmcnt(0)""")
    for q in range(4):
        for mp in range(4):
            e(f"v_perm_b32 v{fM+4*q+mp}, v{wM+2*(2*mp+1)+q//2}, v{wM+2*(2*mp)+q//2}, s{58 + q%2}")
        e(f"ds_write_b128 v7, {vr(fM+4*q,4)} offset:{256*(q%2) + 16*(q//2)}")
    e("s_mov_b64 exec, 1\nds_add_u32 v5, v6\ns_mov_b64 exec, -1")

def build_wb(wR=TP, t2=TP + 16):
    e(f"""v_and_b32 v3, 31, v{vL}
v_lshlrev_b32 v2, 7, v{vH16}
v_lshl_add_u32 v2, v3, 2, v2
v_add_u32 v3, 128, v2""")
    for u in range(2):
        for m in range(0, 8, 2): e(f"ds_read2st64_b32 {vr(wR+8*u+m,2)}, v{2+u} offset0:{L_WR//256 + m} offset1:{L_WR//256 + m + 1}")
    e(f"s_mov_b32 s{sK}, {f32(-LOG2E)}\ns_mov_b32 s{sK+1}, {f32(-LOG2E)}")
    for u in range(2):
        for mp in range(4):
            a0, a1 = wR + 8*u + 2*mp, wR + 8*u + 2*mp + 1
            e(f"""s_waitcnt lgkmcnt({7 - 4*u - mp})
v_lshlrev_b32 v{t2}, 16, v{a0}
v_lshlrev_b32 v{t2+1}, 16, v{a1}
v_and_b32 v{t2+2}, 0xffff0000, v{a0}
v_and_b32 v{t2+3}, 0xffff0000, v{a1}
v_pk_mul_f32 {vr(t2,2)}, {vr(t2,2)}, {P(sK)}
v_pk_mul_f32 {vr(t2+2,2)}, {vr(t2+2,2)}, {P(sK)}
v_cvt_pk_bf16_f32 v{WB+4*(2*u)+mp}, v{t2}, v{t2+1}
v_cvt_pk_bf16_f32 v{WB+4*(2*u+1)+mp}, v{t2+2}, v{t2+3}""")

def allrows():
    e(f"""v_mov_b32 v{TP}, 0
v_mov_b32 v{TP+1}, 1
s_mov_b64 exec, 1
buffer_store_dword v{TP+1}, v{TP}, {S(DG)}, 0 offen sc1
s_mov_b64 exec, -1""")

def poll(tag, vd, shift, first_issued):
    ld = f"buffer_load_dword v{vd}, v{vTA}, {S(WS)}, 0 offen sc1"
    if first_issued: e(f"s_branch L_pw{tag}")
    e(f"""L_p{tag}:
{ld}
L_pw{tag}:
s_waitcnt vmcnt(0)
v_xor_b32 v{TP}, v{vd}, v{vREF}""")
    if shift: e(f"v_lshlrev_b32 v{TP}, {shift}, v{TP}")
    e(f"""v_cmpx_le_i32 vcc, 0, v{TP}
s_cbranch_execz L_pd{tag}
s_sub_u32 s{sRem}, s{sRem}, 1
s_cbranch_scc1 L_end
s_and_b32 s58, s{sRem}, 7
s_cbranch_scc1 L_p{tag}
v_mov_b32 v{TP}, 0
buffer_load_dword v{TP+1}, v{TP}, {S(DG)}, 0 offen sc1
s_waitcnt vmcnt(0)
v_readfirstlane_b32 s{sFIN}, v{TP+1}
s_cmp_eq_u32 s{sFIN}, 0
s_cbranch_scc1 L_p{tag}
{ld}
s_waitcnt vmcnt(0)
L_pd{tag}:
s_mov_b64 exec, -1""")

def phase_a():
    SA, SB, SC, SD = 64, 68, 72, 76
    m2, mE = 60, 62; mT = 34; mY = 35
    aD, aS = TP, TP + 3
    aR = TP + 8
    aK, aB = TP + 20, TP + 23
    aC, aST = TP + 28, X
    aE, aO, aE1 = X + 12, X + 16, X + 20
    vE4, vE8, vY16, vP16 = X + 5, X + 6, X + 7, X + 8
    vRW = X + 24
    e(f""".globl {KNAME}
.p2align 8
.type {KNAME},@function
{KNAME}:
s_cmp_ge_u32 s2, 256
s_cbranch_scc1 L_end""")
    if STAMP: e("s_memrealtime s[84:85]")
    if SLOWT:
        e(f"s_and_b32 s58, s2, 15\ns_cmp_eq_u32 s58, {SLOWT-1}\ns_cbranch_scc0 L_slt\ns_sleep 127\ns_sleep 127\ns_lshr_b32 s58, s2, 7\ns_cbranch_scc0 L_slt\ns_sleep 127\ns_sleep 127\nL_slt:")
    e(f"""s_load_dwordx16 s[36:51], s[0:1], 0
s_load_dwordx4 s[52:55], s[0:1], 64
s_load_dwordx2 s[56:57], s[0:1], 80
v_lshrrev_b32 v2, 6, v0
v_and_b32 v{vL}, 63, v0
v_readfirstlane_b32 s{sW}, v2
s_and_b32 s{sKB}, s2, 7
s_lshl_b32 s{sKB}, s{sKB}, 5
s_lshr_b32 s{sT}, s2, 3
s_or_b32 s{sKB}, s{sKB}, s{sT}
v_lshlrev_b32 v7, 3, v0
v_mov_b32 v2, 0
v_mov_b32 v3, 0
v_mov_b32 v4, {L_CNT}
ds_write_b64 v7, v[2:3]
ds_write_b32 v4, v2
v_lshlrev_b32 v{vL16}, 4, v{vL}
s_mul_i32 s{sT}, s{sW}, 160
v_add_u32 v6, s{sT}, v{vL}
v_lshlrev_b32 v{vE4}, 2, v6
v_lshlrev_b32 v{vE8}, 3, v6
s_mul_i32 s{sT}, s{sW}, {120*16}
v_add_u32 v{vY16}, s{sT}, v{vL16}
s_mul_i32 s{sT}, s{sW}, {320*16}
v_add_u32 v{vP16}, s{sT}, v{vL16}
s_cmp_lt_u32 s{sW}, 7
s_cselect_b32 s{m2}, -1, 3
s_mov_b32 s{m2+1}, 0
s_cselect_b64 {P(mE)}, -1, 15
s_cselect_b32 s{mT}, -1, 0xff
s_cselect_b32 s{mY}, 0xffffff, s{mT}
s_mul_i32 s58, s{sKB}, {CH*4}
s_mul_i32 s59, s{sKB}, {CH*8}
s_lshl_b32 s{sS0}, s{sKB}, 6
s_add_u32 s{sS0}, s{sS0}, {WS_TBL}
s_waitcnt lgkmcnt(0)""")
    def ld3(op, d, n, va, Sd, so, step):
        for k in range(3):
            if k == 2: e(f"s_mov_b64 exec, {P(m2)}")
            e(f"{op} {vr(d[k], n)}, v{va}, {S(Sd)}, s{so} offen offset:{step*k}")
        e("s_mov_b64 exec, -1")
    def cpf():
        e(f"""s_getpc_b64 s[82:83]
L_pc:
s_lshr_b32 s80, s2, 3
s_lshl_b32 s80, s80, 3
s_add_u32 s80, s80, s{sW}
s_lshl_b32 s81, s80, 6
s_min_u32 s81, s81, L_end-L_pc
s_load_dword s3, s[82:83], s81""")
        if RTCH: e(f"""s_and_b32 s81, s2, 7
s_lshl_b32 s81, s81, 8
s_add_u32 s81, s81, s80
s_lshl_b32 s81, s81, 7
s_add_u32 s81, s81, {WS_TBL}
s_load_dword s3, s[56:57], s81
s_add_u32 s81, s81, 64
s_load_dword s3, s[56:57], s81""")
        if CPF & 2: e(f"""s_lshl_b32 s81, s80, 7
s_load_dword s3, s[50:51], s81
s_add_u32 s81, s81, 64
s_load_dword s3, s[50:51], s81""")
        if RPOS >= 3 and not WBE and CPF & 4: e("""s_lshl_b32 s81, s80, 4
s_load_dword s3, s[46:47], s81
s_and_b32 s81, s80, 64
s_load_dword s3, s[48:49], s81""")
    if TLB & 1:
        e(f"""s_mul_i32 s80, s{sKB}, {CH*32}
s_load_dword s3, s[44:45], s80
s_load_dword s3, s[42:43], s59
s_load_dword s3, s[38:39], s58""")
    if TLB & 2:
        e(f"""s_mul_i32 s80, s{sKB}, {CHP*32}
s_load_dword s3, s[56:57], s80
s_load_dword s3, s[56:57], s{sS0}""")
    srd(SA, 40, E * 4)
    ld3("buffer_load_dword", [aD, aD+1, aD+2], 1, vE4, SA, 58, 256)
    if CPF and CPOS == 2: cpf()
    srd(SB, 38, E * 4)
    ld3("buffer_load_dword", [aS, aS+1, aS+2], 1, vE4, SB, 58, 256)
    srd(SC, 42, E * 8)
    ld3("buffer_load_dwordx2", [aR, aR+4, aR+8], 2, vE8, SC, 59, 512)
    if CPF and CPOS == 0: cpf()
    srd(WS, 56, WS_SIZE)
    TA = [f"v_lshrrev_b32 v5, 1, v0", f"s_lshr_b32 s59, s{sKB}, 4", f"s_mul_i32 s59, s59, {16384 - 64}", f"s_lshl2_add_u32 s59, s{sKB}, s59",
          f"s_add_u32 s59, s59, {WS_TBL}", f"v_lshl_add_u32 v{vTA}, v5, 6, s59"]
    def side_a():
        if GPOS == 2:
            for x in TA: e(x)
            e(f"buffer_load_dword v{vREF}, v{vTA}, {S(WS)}, 0 offen {RSC}")
        e(f"""v_lshrrev_b32 v7, 2, v{vL}
v_mul_u32_u24 v7, {16384 - 64}, v7
v_add_u32 v{vRW}, v7, v{vL16}
s_cmp_eq_u32 s{sW}, 7
s_cselect_b32 s59, s{sS0}, 0x40000000
v_add_u32 v7, s59, v{vRW}
buffer_load_dwordx4 {vr(aO,4)}, v7, {S(WS)}, 0 offen {RSC}""")
    def side_b():
        srd(SB, 46, 16 * C * 2); srd(SA, 48, 128)
        e(f"""v_lshlrev_b32 v7, 1, v{vL}
s_lshl_b32 s58, s{sW}, 9
s_add_u32 m0, s58, {L_WR}
s_mov_b32 exec_hi, 0
buffer_load_dwordx4 v{vL16}, {S(SB)}, s58 offen lds
s_mov_b32 exec_hi, -1
buffer_load_ushort v{X+9}, v7, {S(SA)}, 0 offen""")
    def side_loads(): side_a(); side_b()
    nS = 0 if RPOS == 3 else 1 if RPOS >= 4 else 3 + (GPOS == 2)
    if WBE: assert RPOS == 4 and GPOS == 1; nS = 3
    if RPOS == 0: side_loads()
    if RPOS == 5: side_a()
    srd(SD, 44, E * 32)
    if not EFF: e("s_barrier")
    if RPOS == 1: side_loads()
    if WBE: side_b()
    e(f"s_add_u32 m0, s{sT}, {A_EF}\ns_mul_i32 s58, s{sKB}, {CH*32}")
    for k in range(4):
        if EFF and k == EFF: e("s_barrier")
        e(f"buffer_load_dwordx4 v{vP16}, {S(SD)}, s58 offen offset:{1024*k} {INT} lds")
    e(f"""s_add_u32 m0, s{sT}, {A_EF + 4096}
s_add_u32 s58, s58, 4096
s_mov_b64 exec, {P(mE)}
buffer_load_dwordx4 v{vP16}, {S(SD)}, s58 offen {INT} lds
s_mov_b64 exec, -1
v_mov_b32 v6, 1""")
    if RPOS == 2: side_loads()
    if RPOS == 4: side_a()
    if CPF and CPOS == 1: cpf()
    stamp((1, 2))
    e(f"s_waitcnt vmcnt({11+nS})")
    stamp((2, 2))
    for k in range(3):
        if k == 2: e(f"s_mov_b64 exec, {P(m2)}")
        e((f"v_bfe_u32 v2, v{aD+k}, 3, 5\nv_and_b32 v3, 7, v{aD+k}\nv_lshl_or_b32 v2, v3, 5, v2" if SPR else f"v_and_b32 v2, 255, v{aD+k}") + f"\nv_lshlrev_b32 v{aB+k}, 2, v2\nds_add_rtn_u32 v{aK+k}, v{aB+k}, v6 offset:{A_HIST}")
    e(f"s_mov_b64 exec, -1\ns_movk_i32 s{sT2}, {RMUL}\ns_waitcnt vmcnt({8+nS})")
    if NF:
        k1 = (1 << 22) // W1; k2 = int((1 << 22) * (R - NF) / (N - NF * W1)); c2 = NF * (1 << 22) - NF * W1 * k2
        assert min(9999 * k1, 9999 * k2 + c2) >> 22 == R - 1 and c2 > 0
        e(f"s_movk_i32 s{sT2}, {k2}\nv_mov_b32 v5, {c2}")
    e("s_movk_i32 s59, -1250")
    for k in range(3):
        t = aS + k
        if ROT == 2:
            e(f"v_lshrrev_b32 v3, 7, v{aB+k}\nv_mad_i32_i24 v2, v3, s59, v{aS+k}\nv_add_u32 v3, {N}, v2\nv_min_u32 v2, v2, v3")
            t = 2
        if NF: e(f"v_mul_u32_u24 v3, {k1}, v{t}\nv_mad_u32_u24 v2, v{t}, s{sT2}, v5\nv_min_u32 v2, v2, v3\nv_lshrrev_b32 v2, 22, v2")
        else: e(f"v_mul_u32_u24 v2, s{sT2}, v{t}\nv_lshrrev_b32 v2, {RSH}, v2")
        e(f"""v_lshrrev_b32 v3, 8, v{aD+k}
v_mad_u32_u24 v2, v3, {R}, v2
v_lshl_or_b32 v{aR+4*k+2}, v{aS+k}, 10, v2""")
    e(f"""s_waitcnt lgkmcnt(0)
s_barrier
ds_read_b128 {vr(aC,4)}, v{vL16} offset:{A_HIST}
s_waitcnt lgkmcnt(0)
v_add_u32 v{aST+2}, v{aC}, v{aC+1}
v_add_u32 v{aST+3}, v{aST+2}, v{aC+2}
v_add_u32 v2, v{aST+3}, v{aC+3}
v_mov_b32 v3, v2""")
    scan(3, [f"v_lshlrev_b32 v4, 2, v{vE8}"] + (TA if GPOS != 2 else []))
    e(f"""v_sub_u32 v{aST}, v3, v2
v_add_u32 v{aST+1}, v{aST}, v{aC}
v_add_u32 v{aST+2}, v{aST}, v{aST+2}
v_add_u32 v{aST+3}, v{aST}, v{aST+3}
ds_write_b128 v{vL16}, {vr(aST,4)} offset:{A_START}""")
    for k in range(3):
        if k == 2: e(f"s_mov_b64 exec, {P(m2)}")
        e(f"ds_read_b32 v{aB+k}, v{aB+k} offset:{A_START}")
    e("s_mov_b64 exec, -1")
    if GPOS == 0: e(f"buffer_load_dword v{vREF}, v{vTA}, {S(WS)}, 0 offen {RSC}")
    for k in range(4): e(f"v_lshl_or_b32 v{aE+k}, v{aC+k}, 16, v{aST+k}")
    e(f"s_mov_b32 s{sT2}, {A_YM}\ns_waitcnt vmcnt({6 if WBE else 5 + nS + (GPOS == 0)}) lgkmcnt(0)")
    for k in range(3):
        if k == 2: e(f"s_mov_b64 exec, {P(m2)}")
        e(f"""v_add_lshl_u32 v2, v{aB+k}, v{aK+k}, 1
v_add_u32 v3, {2048*k}, v4
ds_write_b16 v2, v3 offset:{A_INV}
v_mad_u32_u24 v2, v2, 6, s{sT2}
ds_write2_b32 v2, v{aR+4*k}, v{aR+4*k+1} offset0:0 offset1:1
ds_write_b32 v2, v{aR+4*k+2} offset:8""")
    e(f"""s_mov_b64 exec, -1
v_lshrrev_b32 v2, 4, v{vP16}
v_and_b32 v2, 0xffe, v2
v_and_b32 v5, 1, v{vL}
v_lshlrev_b32 v5, 4, v5
s_waitcnt lgkmcnt(0)
s_barrier""")
    stamp((1, 1), (3, 2))
    aI = TP + 20
    if GPOS == 1: e(f"buffer_load_dword v{vREF}, v{vTA}, {S(WS)}, 0 offen {RSC}")
    if RPOS == 3: side_a()
    if RPOS >= 3 and BPOS == 1 and not WBE: side_b()
    for k in range(2): e(f"ds_read_b128 {vr(aR+4*k,4)}, v{vY16} offset:{A_YM + 1024*k}")
    for k in range(5): e(f"ds_read_u16 v{aI+k}, v2 offset:{A_INV + 64*k}")
    srd(XS, 36, N * 1024); srd(OS, 52, 0 if NOST else N * 1024)
    common_init()
    if IPOS & 1 and not DLY & 1: lane_helpers()
    if IPOS & 2 and not DLY & 2: epi_addr()
    if RPOS >= 3 and BPOS == 0: side_b()
    srd(SC, 50, C * C * 2); srd(DG, 54, 256)
    e("s_waitcnt lgkmcnt(0)")
    for k in range(5): e(f"v_or_b32 v{aI+k}, v{aI+k}, v5")
    if WBE: build_wb(T0, T0 + 16); build_cg()
    e(f"""s_mul_i32 s{sT2}, s{sKB}, {CHP*12}
s_add_u32 s{sT2}, s{sT2}, {WS_YM}
s_mul_i32 s58, s{sKB}, {CHP*32}
s_add_u32 s59, s58, 4096
s_waitcnt vmcnt({EW if EW >= 0 else 2 if WBE else 3 if RPOS == 5 else 4 if RPOS >= 2 else int(GPOS != 2)})
s_barrier""")
    stamp((4, 2))
    aF = T0
    for k in range(5):
        if k == 4: e(f"s_mov_b64 exec, {P(mE)}")
        e(f"ds_read_b128 {vr(aF+4*k,4)}, v{aI+k} offset:{A_EF}")
    e("s_mov_b64 exec, -1")
    if DLY & 1: lane_helpers()
    if DLY & 2: epi_addr(); e(f"s_mul_i32 s58, s{sKB}, {CHP*32}\ns_add_u32 s59, s58, 4096")
    if EWL >= 0: e(f"s_waitcnt vmcnt({0 if WBE else EWL})")
    e(f"""buffer_store_dwordx4 {vr(aR,4)}, v{vY16}, {S(WS)}, s{sT2} offen {PST}
s_mov_b32 exec_hi, s{mY}
{"s_waitcnt vmcnt(0)" if SCAP == 1 else ""}
buffer_store_dwordx4 {vr(aR+4,4)}, v{vY16}, {S(WS)}, s{sT2} offen offset:1024 {PST}
s_mov_b32 exec_hi, -1""")
    for k in range(5):
        if k == 4: e(f"s_mov_b32 exec_lo, s{mT}\ns_mov_b32 exec_hi, s{mE+1}")
        if SCAP and k + 2 >= SCAP: e(f"s_waitcnt vmcnt({SCAP-1})")
        e(f"s_waitcnt lgkmcnt({4-k})\nbuffer_store_dwordx4 {vr(aF+4*k,4)}, v{vP16}, {S(WS)}, s{58 + k//4} offen offset:{1024*(k%4)} {PST}")
    e("s_mov_b64 exec, -1")
    stamp((5, 2))
    e(f"s_mov_b32 s{sRem}, {SPIN}\ns_mov_b32 s{sFIN}, 0\ns_brev_b32 s59, 1\ns_waitcnt vmcnt(7)")
    for k in range(4):
        e(f"v_not_b32 v{aO+k}, v{aO+k}\nv_and_or_b32 v{aE+k}, v{aO+k}, s59, v{aE+k}")
    if not WBE: build_cg()
    if not IPOS & 1 and not PD & 1 and not POLL2 & 2: lane_helpers()
    if not IPOS & 2 and not PD & 2 and not POLL2 & 4: epi_addr()
    e(f"s_lshl_b32 s58, s{sW}, 12\ns_add_u32 m0, s58, {L_WM}\ns_cmp_eq_u32 s{sW}, 7\ns_waitcnt vmcnt(0) lgkmcnt(0)")
    stamp((6, 2))
    e(f"""s_barrier
s_cbranch_scc0 L_nrow2
buffer_store_dwordx4 {vr(aE,4)}, v{vRW}, {S(WS)}, s{sS0} offen sc1
L_nrow2:""")
    if TBAR: e("s_barrier")
    stamp((2, 1))
    def wdma_m():
        for k in range(4): e(f"buffer_load_dwordx4 v{vL16}, {S(SC)}, s58 offen offset:{1024*k} lds")
    if WMD == 0: wdma_m()
    if not WBE: build_wb()
    if WMD == 1: wdma_m()
    if PD & 1: lane_helpers()
    if PD & 2: epi_addr()
    if PD & 4: e("s_waitcnt vmcnt(0)"); build_wm(T0)
    if POLL2:
        pa, pb = vJUNK, vP2
        ld = lambda r: f"buffer_load_dword v{r}, v{vTA}, {S(WS)}, 0 offen sc1"
        e(ld(pa))
        if POLL2 & 2: lane_helpers()
        if POLL2 & 4: epi_addr()
        list_fill()
        e(f"v_and_b32 v7, 1, v{vL}\ns_movk_i32 s58, 4")
        e("L_q2:")
        for r, o in ((pa, pb), (pb, pa)):
            e(f"""{ld(o)}
s_waitcnt vmcnt(1)
v_mov_b32 v6, v{r}
v_xor_b32 v{TP}, v{r}, v{vREF}
v_cmpx_le_i32 vcc, 0, v{TP}
s_cbranch_execz L_pda""")
        e("s_sub_u32 s58, s58, 1\ns_cbranch_scc0 L_q2")
    else:
        list_fill()
        e(f"v_and_b32 v7, 1, v{vL}")
    poll("a", 6, 0, False)
    stamp((1, 3), (2, 8), (3, 1))
    e(f"v_bfe_u32 v{vPE}, v6, 16, 11\nv_and_b32 v5, 0xffff, v6\nv_sub_u32 v2, v{vPE}, v7")
    fill = [[], [f"v_add_u32 v5, v5, v{vCH}"], [], [], []]
    for m, f in zip(DPPS[1:], fill):
        if m is not DPPS[1]:
            for x in f: e(x)
            e(f"s_nop {1 - len(f)}")
        e(f"v_add_u32_dpp v{vPE}, v{vPE}, v{vPE} {m} bank_mask:0xf")
    e(f"""v_sub_u32 v3, v{vPE}, v2
v_min_u32 v4, {CAPW}, v{vPE}
v_lshl_add_u32 v6, v3, 2, s{sLB}
v_sub_u32 v4, v4, v3
v_sub_u32 v{vDL}, v5, v3
v_sub_u32 v{vPS}, v3, v7""")

NEF = (CAPW + 31) // 32
def phase_b():
    e("L_exp:")
    for k in range(UNR):
        e(f"v_cmpx_lt_i32 vcc, {2*k}, v4\nds_write_b32 v6, v5 offset:{8*k}\nv_add_u32 v5, 2, v5")
    e(f"""v_cmpx_lt_i32 vcc, {2*UNR}, v4
s_cbranch_execnz L_exp_more
L_exp_done:
s_mov_b64 exec, -1""")
    for k in (3, 2, 1, 0): e(f"ds_read_b32 v{tI+k}, v{vLY} offset:{256*k}")
    e(f"""v_readlane_b32 s{sCW}, v{vPE}, 63
s_mov_b32 s{sT}, {WS_YM}
s_sub_i32 s{sNT}, s{sCW}, s{sW0}
s_cmp_le_i32 s{sNT}, 192""")
    stamp((2, 3))
    for i, k in enumerate((3, 2, 1, 0)):
        if k == 3: e("s_cbranch_scc1 L_sk3")
        e(f"s_waitcnt lgkmcnt({3-i})\nv_mul_u32_u24 v{tI+k}, 12, v{tI+k}\nbuffer_load_dwordx3 {vr(tY+4*k,3)}, v{tI+k}, {S(WS)}, s{sT} offen sc1")
        if k == 3: e("L_sk3:")
    if YBAR == 2: e("s_barrier")
    for k in range(NEF): e(f"ds_read_b32 v{tI+4+k}, v{vLE} offset:{128*k}")
    e(f"s_max_i32 s{sNT}, s{sNT}, 0\ns_min_i32 s{sNT}, s{sNT}, {CAPW}")
    if YBAR == 1: e("s_barrier")
    def ef_dma(k):
        part = k == NEF - 1 and CAPW % 32
        e(f"s_add_u32 m0, s{sEB}, {L_EF + 1024*k}\ns_cmp_le_u32 s{sNT}, {32*(k+1)}")
        if part:
            assert CAPW % 32 > 16
            e(f"s_mov_b32 exec_hi, {hex((1 << (2 * (CAPW % 32) - 32)) - 1)}")
        e(f"buffer_load_dwordx4 v{tI+4+k}, {S(WS)}, 0 offen sc1 lds")
        if part: e("s_mov_b32 exec_hi, -1")
    for k in range(EF1):
        e(f"s_waitcnt lgkmcnt({NEF-1-k})\nv_lshl_or_b32 v{tI+4+k}, v{tI+4+k}, 5, v{vHP}")
        ef_dma(k)
    e("s_waitcnt lgkmcnt(0)")
    for k in range(EF1, NEF): e(f"v_lshl_or_b32 v{tI+4+k}, v{tI+4+k}, 5, v{vHP}")
    for k in range(4):
        e(f"s_sub_i32 s{sT2}, s{sNT}, {64*k}\nv_cmp_gt_i32 {P(mV+2*k)}, s{sT2}, v{vL}")
    e(f"v_mov_b32 v3, s{sCW}\nv_mov_b32 v4, {L_MAXC}\nds_max_u32 v4, v3\nv_mov_b32 v6, 1")
    if TH: e("s_mov_b64 exec, 1\nds_add_u32 v4, v3 offset:4\ns_mov_b64 exec, -1")
    if SLIM: e(f"v_lshrrev_b32 v5, 2, v{vFA}\nv_add_u32 v5, {L_YI}, v5")
    for i, k in enumerate((3, 2, 1, 0)):
        e(f"""s_waitcnt vmcnt({EF1 + 3 - i})
s_mov_b64 exec, {P(mV+2*k)}
v_and_b32 v2, 0x3ff, v{tY+4*k+2}
v_lshlrev_b32 v{tY+4*k+3}, 2, v2
ds_add_rtn_u32 v{tR+k}, v{tY+4*k+3}, v6 offset:{L_HIST}""")
        if SLIM: e(f"ds_write_b64 v5, {vr(tY+4*k,2)} offset:{512*k}")
    e("s_mov_b64 exec, -1")
    if SLIM:
        for k in range(4): e(f"v_lshrrev_b32 v2, 7, v{tY+4*k+2}\nv_add_u32 v3, {2048*k}, v{vFA}\nv_lshl_or_b32 v{tY+4*k+2}, v3, 12, v2")
    e("s_waitcnt lgkmcnt(0)\ns_barrier")
    stamp((3, 3))
    dg = TP + 4
    for j in range(R // 4): e(f"ds_read_b128 {vr(dg+4*j,4)}, v{vN48} offset:{L_HIST + 16*j}")
    e("ds_read_b64 v[4:5], v4" if TH else "ds_read_b32 v4, v4")
    e(f"s_cmp_eq_u32 s{sW0}, s{sEW}\ns_cbranch_scc0 L_noall")
    allrows()
    e(f"L_noall:\ns_cmp_le_u32 s{sNT}, {32*EF1}")
    for k in range(EF1, NEF):
        e("s_cbranch_scc1 L_efd")
        ef_dma(k)
    e("L_efd:")
    def xpf(pos):
        if XP and XPOS == pos:
            e(f"""s_mov_b32 exec_lo, {hex((1 << min(XP, 32)) - 1)}
s_mov_b32 exec_hi, {hex((1 << max(XP - 32, 0)) - 1)}
buffer_load_dword v{vJUNK}, v{vXA}, {S(XS)}, 0 offen
s_mov_b64 exec, -1""")
    xpf(0)
    e(f"v_cmp_gt_u32 vcc, 40, v{vL}\ns_waitcnt lgkmcnt(0)\nv_readfirstlane_b32 s{sT}, v4")
    if TH: e(f"v_readfirstlane_b32 s{sT2}, v5")
    e(f"v_add_u32 v3, v{dg}, v{dg+1}")
    for j in range(2, R, 2): e(f"v_add3_u32 v3, v3, v{dg+j}, v{dg+j+1}")
    e(f"""v_lshl_or_b32 v3, v3, 6, v{vNODE}
v_cndmask_b32 v3, 0, v3, vcc
s_max_u32 s{sMAXC}, s{sMAXC}, s{sT}
s_cmp_lg_u32 s{sW0}, 0
s_cbranch_scc1 L_havepos""")
    for j in range(5): e(f"v_readlane_b32 s{64+j}, v3, {j}")
    for j in range(5): e(f"v_cmp_lt_u32 {P(70+2*j)}, s{64+j}, v3")
    for j in range(5): e(f"s_bcnt1_i32_b64 s{64+j}, {P(70+2*j)}")
    for j in range(5): e(f"v_readlane_b32 s{70+j}, v{vMAP}, s{64+j}")
    for j in range(5): e(f"v_writelane_b32 v{vPOS}, s{70+j}, {j}")
    e(f"""v_lshlrev_b32 v{vPOS}, 2, v{vPOS}
L_havepos:
s_mov_b64 exec, 31
ds_write_b32 v{vPOS}, v3 offset:{L_ENTRY}
s_mov_b64 exec, -1
v_lshlrev_b32 v4, 2, v{vL}
v_and_b32 v6, 7, v{vL}
v_cmp_gt_u32 s[34:35], s{sW}, v6
s_and_b64 s[34:35], s[34:35], vcc
v_cmp_gt_u32 vcc, {5*R}, v{vL}""")
    if TH:
        e(f"s_cmp_gt_u32 s{sT2}, {TH}\ns_cselect_b32 s{sT}, {4*(R-TS)}, 0")
        if TH2: e(f"s_cmp_gt_u32 s{sT2}, {TH2}\ns_cselect_b32 s{sT}, {4*(R-TS-1)}, s{sT}")
        if TL: e(f"s_cmp_lt_u32 s{sT2}, {TL}\ns_cselect_b32 s{sT}, 4, s{sT}")
        e(f"v_add_u32 v{vR4}, s{sT}, v{vR4}\nv_subrev_u32 v2, {4*R}, v{vR4}\nv_min_u32 v{vR4}, v{vR4}, v2")
    xpf(1)
    e("s_waitcnt lgkmcnt(0)\ns_barrier")
    stamp((4, 3), (1, 7))
    if STAMP == 7: e("s_waitcnt vmcnt(0)")
    stamp((2, 7))
    c0, c1, c2, c3 = T0 + 36, T0 + 37, T0 + 38, T0 + 39
    e(f"""ds_read_b32 v{c3}, v{vEN} offset:{L_ENTRY}
ds_read_b32 v4, v4 offset:{L_ENTRY}
s_waitcnt lgkmcnt(1)
v_and_b32 v{c3}, 63, v{c3}
v_mad_u32_u24 v3, v{c3}, {4*R}, v{vR4}
ds_read_b32 v{c0}, v3 offset:{L_HIST}
s_waitcnt lgkmcnt(1)
v_lshrrev_b32 v4, 6, v4
v_cndmask_b32 v{c2}, 0, v4, s[34:35]
v_mul_u32_u24 v{c3}, {4*TROW}, v{c3}
s_waitcnt lgkmcnt(0)
v_cndmask_b32 v{c0}, 0, v{c0}, vcc
v_mov_b32 v{c1}, v{c0}""")
    scan2(c1, c2, [f"v_readlane_b32 s{sROW+j}, v{c3}, {j}" for j in range(5)] + [f"v_lshlrev_b32 v4, {0 if SLIM else 3}, v{vS}", f"s_min_u32 s{sMAXC}, s{sMAXC}, {32*CH}"])
    e(f"""v_sub_u32 v{c0}, v{c1}, v{c0}
v_readlane_b32 s{sS0}, v{c2}, 63
v_readlane_b32 s{sN}, v{c1}, 63
s_lshl_b32 s{sT}, s{sS0}, {ES}
s_add_u32 s{sT}, s{sT}, {L_SW if SLIM else L_ST}
v_lshl_add_u32 v{c0}, v{c0}, {ES}, s{sT}
v_lshl_or_b32 v{c0}, v{c0}, 10, v4
s_mov_b64 exec, vcc
ds_write_b32 v3, v{c0} offset:{L_TBL}
s_mov_b64 exec, -1
s_min_u32 s{sN}, s{sN}, {8*CAPW}
v_lshl_add_u32 v{vEntA}, v{vQ}, {ES}, s{sT}
v_and_b32 v2, 3, v{vL}
v_bfe_u32 v3, v{vL}, 3, 2
v_lshl_add_u32 v2, v3, 2, v2
v_lshl_add_u32 v{vEfA}, v2, {ES}, s{sT}
s_movk_i32 s{sT2}, {7 if SLIM else 0x3ff}""")
    xpf(2)
    e("s_waitcnt lgkmcnt(0)\ns_barrier")
    stamp((5, 3))
    for k in range(4): e(f"s_mov_b64 exec, {P(mV+2*k)}\nds_read_b32 v{tI+k}, v{tY+4*k+3} offset:{L_TBL}")
    e("s_mov_b64 exec, -1")
    for k in range(0 if SLIM else 4): e(f"v_add_u32 v{tY+4*k+3}, {2048*k}, v{vFA}")
    e("s_waitcnt lgkmcnt(0)")
    for k in range(4):
        e(f"""s_mov_b64 exec, {P(mV+2*k)}
v_bfi_b32 v{tY+4*k+2}, s{sT2}, v{tI+k}, v{tY+4*k+2}
v_lshrrev_b32 v{tI+k}, 10, v{tI+k}
v_lshl_add_u32 v{tI+k}, v{tR+k}, {ES}, v{tI+k}""")
        e(f"ds_write_b32 v{tI+k}, v{tY+4*k+2}" if SLIM else f"ds_write_b128 v{tI+k}, {vr(tY+4*k,4)}")
    e(f"""s_mov_b64 exec, -1
v_cmp_gt_i32 vcc, s{sN}, v{vQ}
v_mov_b32 v4, s{sDUM}
s_waitcnt lgkmcnt(0)
s_barrier""")
    stamp((4, 1), (6, 3), (5, 8))

lane_of = lambda q: 4 * (q % 16) + (q % 64) // 16
ring = lambda q: RING + q % 16
def xload(q, so): return f"buffer_load_dwordx4 {vr(X+4*(q%D),4)}, v{vL16}, {S(XS)}, s{so} offen"
def rd_efa(us):
    for u in us: e(f"s_mov_b64 exec, {P((mU0,mU1)[u])}\nds_read_b128 {vr(EFA+4*u,4)}, v{EFAD} offset:{L_EF}")
    e("s_mov_b64 exec, -1")
def rmfma(buf, j):
    u, par = j // 2, j % 2
    d = T[buf] + 16 * par
    return f"v_mfma_f32_32x32x16_bf16 {vr(d,16)}, {vr(EFA+4*u,4)}, {vr(WB+4*(2*u+par),4)}, {'0' if u == 0 else vr(d,16)}"
BST = 16 << ES; EO = 0 if SLIM else 12
rd_ent = lambda: f"ds_read_b32 v{ENT+3}, v{vEntA}" if SLIM else f"ds_read_b128 {vr(ENT,4)}, v{vEntA}"
def mk_efad(src):
    if SLIM: e(f"v_lshrrev_b32 v{src}, 12, v{src}")
    e(f"v_and_or_b32 v{EFAD}, v{src}, s{sEFM}, v{vH16}")
def mk_meta():
    e(f"v_bfe_u32 v3, v{ENT+3}, 3, 14\nv_and_b32 v{ENT+2}, 7, v{ENT+3}\nv_lshlrev_b32 v{ENT+2}, 3, v{ENT+2}\nv_lshl_or_b32 v{ENT+2}, v3, 10, v{ENT+2}")
def rd_y():
    e(f"v_bfe_u32 v3, v{ENT+3}, 17, 11\nv_lshl_add_u32 v3, v3, 3, s{sYI}\nds_read_b64 {vr(ENT,2)}, v3")
def loop():
    e(f"""{rd_ent()}
ds_read_b32 v{EFAD}, v{vEfA} offset:{EO}
ds_read_b32 v2, v{vEfA} offset:{BST+EO}
s_mov_b32 s{sYI}, {L_YI}
s_waitcnt lgkmcnt({2 if SLIM else 0})""")
    if SLIM: mk_meta()
    e(f"v_cndmask_b32 v{META}, v4, v{ENT+2}, vcc")
    if SLIM: e("s_nop 0")
    else: mk_efad(EFAD)
    for q in range(DIST): e(f"v_readlane_b32 s{ring(q)}, v{META}, {lane_of(q)}")
    def dst():
        e(f"s_lshl_b32 s58, s2, 3\ns_add_u32 s58, s58, s{sW}\ns_lshl_b32 s58, s58, 10\ns_add_u32 s58, s58, 0x1100000\nv_lshlrev_b32 v3, 2, v{vL}")
        if DST & 4: e(f"buffer_store_dwordx4 {vr(ENT,4)}, v{vL16}, {S(WS)}, s58 offen")
        else:
            for k in range(3): e(f"buffer_store_dword v{META}, v3, {S(WS)}, s58 offen offset:{256*k}")
    nD = 0 if not DST & 3 else 1 if DST & 4 else 3
    if DST & 3 == 1: dst()
    for q in range(PRE): e(f"s_and_b32 s{sOFF+q%4}, s{ring(q)}, s{sMASK}\n{xload(q, sOFF+q%4)}")
    if SLIM: e("s_waitcnt lgkmcnt(0)"); mk_efad(EFAD); rd_y()
    if DST & 3 == 2: dst()
    e(f"s_waitcnt vmcnt({PRE + (1 if XP else 0) + (nD if DST & 3 in (1, 2) else 0)})\ns_barrier")
    if DST & 3 == 3: dst()
    stamp((5, 1), (5, 5))
    if STAMP: e("s_memtime s[60:61]")
    rd_efa((0, 1))
    mk_efad(2)
    for q in range(PRE, 4): e(f"s_and_b32 s{sOFF+q%4}, s{ring(q)}, s{sMASK}\n{xload(q, sOFF+q%4)}")
    e("s_waitcnt lgkmcnt(0)")
    for j in range(4): e(rmfma(0, j))
    def rest_loads():
        for q in range(max(PRE, 4), DIST): e(f"s_and_b32 s{sOFF+q%4}, s{ring(q)}, s{sMASK}\n{xload(q, sOFF+q%4)}")
    if not WMP: rest_loads()
    else: e("s_nop 7")
    rd_efa((0,))
    if not PD & 4:
        e(f"s_cmp_lg_u32 s{sW0}, 0\ns_cbranch_scc1 L_wdone")
        build_wm()
    e(f"L_wdone:\ns_mov_b32 s{sYI}, {L_YI}")
    if WMP: rest_loads()
    e(f"s_cmp_eq_u32 s{sW}, 7\ns_cselect_b32 s3, 64, 0x80000000\ns_mov_b32 s{sFIN}, 1\ns_mov_b32 s{sRem}, s{sN}\ns_waitcnt lgkmcnt(0)")
    if AL >= 0:
        e("s_branch L_sb\n.p2align 6")
        for _ in range(AL): e("s_nop 0")
    e("L_sb:")
    if STAMP == 5: e("s_mov_b32 s86, s88\ns_mov_b32 s88, s90\ns_memrealtime s[90:91]")
    e(f"s_cmp_gt_i32 s{sRem}, s3\ns_cbranch_scc1 L_nofl\ns_load_dword s{sFIN}, s[54:55], 0\nL_nofl:")
    for i in range(4): e(f"v_mfma_f32_4x4x4_16b_bf16 {vr(TP+4*i,4)}, {vr(ENT,2)}, {vr(CG+2*i,2)}, 0")
    e(f"v_add_u32 v{vEntA}, {4*BST}, v{vEntA}\ns_sub_u32 s{sT}, s{sRem}, 64\nv_cmp_gt_i32 s[34:35], s{sT}, v{vQ}\ns_cmp_le_i32 s{sRem}, 0\ns_nop 0")
    for r in range(4):
        e(f"v_cvt_pk_bf16_f32 v{AE+2*r}, v{TP+r}, v{TP+4+r}\nv_cvt_pk_bf16_f32 v{AE+2*r+1}, v{TP+8+r}, v{TP+12+r}")
    e(f"{rd_ent()}\nds_read_b32 v{vCNT}, v{vCA}")
    for q in range(0, 64, 4):
        b, p = q // 16, (q % 16) // 4
        cur = b % 2
        te, to = T[cur] + q % 16, T[cur] + 16 + q % 16
        e(f"; ---- edges {q}..{q+3}")
        mf = lambda d, x, qq: f"v_mfma_f32_4x4x4_16b_bf16 {vr(d,4)}, {vr(AE+2*b,2)}, {vr(x,2)}, 0 cbsz:4 abid:{qq%16}"
        e("s_cbranch_scc1 L_exit")
        if STAMP == 5 and q == SQ: e(f"s_cmp_eq_u32 s{sRem}, s{sN}\ns_cbranch_scc0 L_nst\ns_memrealtime s[92:93]\nL_nst:")
        if PRIO == 2 and p == 0: e(f"s_setprio {3-b}")
        lp = LP.split(","); ps = PS.split(",")
        def at(tag):
            if PRIO == 3 and tag in ps: e(f"s_setprio {3 - ((q // 4) * len(ps) + ps.index(tag)) % 4}")
            for j, t in enumerate(lp):
                if t == tag and SA == 2: e(f"s_and_b32 s{sOFF+j}, s{ring(q+DIST+j)}, s{sMASK}")
            for j, t in enumerate(lp):
                if t == tag:
                    if SA == 1: e(f"s_and_b32 s{sOFF+j}, s{ring(q+DIST+j)}, s{sMASK}")
                    e(xload(q + DIST + j, sOFF + j))
        at("Q")
        if PRIO == 5: e(f"s_setprio {1 - p % 2}")
        if PRIO == 4 and p % 2 == 0: e(f"s_setprio {3 - (q // 8) % 4}")
        if q + DIST == 64: e(f"v_cndmask_b32 v{META}, v4, v{ENT+2}, s[34:35]")
        RL = [f"v_readlane_b32 s{ring(q+DIST+j)}, v{META}, {lane_of(q+DIST+j)}" for j in range(4)]
        EX = [f"v_exp_f32 v{TMP+j}, v{te+j}" for j in range(4)] + [f"v_exp_f32 v{TMP+4+j}, v{to+j}" for j in range(4)]
        AD = [f"v_pk_fma_f32 {vr(TMP+2*j,2)}, {vr(TMP+2*j,2)}, {P(sK)}, {P(sK)}" for j in range(4)]
        RC = [f"v_rcp_f32 v{TMP+j}, v{TMP+j}" for j in range(8)]
        MF = []
        for j in range(4):
            x = X + 4 * ((q + j) % D)
            MF += [mf(TP+8*j, x, q+j), mf(TP+8*j+4, x+2, q+j)]
        if SCH in (2, 3, 4):
            assert SA and not SLIM
            if SCH == 4:
                e(EX[0]); e(rmfma(1 - cur, p))
                for x in EX[1:]: e(x)
            else:
                e(rmfma(1 - cur, p))
                for x in EX: e(x)
            if SCH == 3:
                for x in RL[:3]: e(x)
            for x in AD: e(x)
            at("W")
            e(f"s_waitcnt vmcnt({DIST-(2 if W2 else 4)})")
            for j in range(8):
                if W2 and j == 4: e(f"s_waitcnt vmcnt({DIST-4})")
                e(MF[j]); e(RC[j])
            for x in (RL[3:] if SCH == 3 else RL): e(x)
            if p == 2: mk_efad(2)
            at("R7")
        if SCH == 1:
            e(f"s_waitcnt vmcnt({DIST-(2 if W2 else 4)})")
            for j in range(4):
                x = X + 4 * ((q + j) % D)
                if W2 and j == 2: e(f"s_waitcnt vmcnt({DIST-4})")
                e(f"""{mf(TP+8*j, x, q+j)}
v_exp_f32 v{TMP+j}, v{te+j}
{mf(TP+8*j+4, x+2, q+j)}
v_exp_f32 v{TMP+4+j}, v{to+j}""")
            at("E")
            for j in range(4): e(f"v_readlane_b32 s{ring(q+DIST+j)}, v{META}, {lane_of(q+DIST+j)}")
            if p == 2: mk_efad(2)
            if SLIM and q == 16: mk_meta(); rd_y()
            for j in range(4):
                if SA == 0: e(f"s_and_b32 s{sOFF+j}, s{ring(q+DIST+j)}, s{sMASK}")
                e(f"v_pk_fma_f32 {vr(TMP+2*j,2)}, {vr(TMP+2*j,2)}, {P(sK)}, {P(sK)}")
                at(f"A{j}")
            e(rmfma(1 - cur, p))
            for j in range(8):
                e(f"v_rcp_f32 v{TMP+j}, v{TMP+j}")
                at(f"R{j}")
        def side():
            if q < 60: e(f"s_cmp_le_i32 s{sRem}, {q+4}")
            if p == 0: rd_efa((1,)); e(f"ds_read_b32 v2, v{vEfA} offset:{BST*(b+2)+EO}")
            if p == 2: rd_efa((0,))
            if p in (1, 3): e("s_waitcnt lgkmcnt(0)")
        if SP == 'R': side()
        for j in range(2): e(f"v_pk_mul_f32 {vr(TMP+2*j,2)}, {vr(TMP+2*j,2)}, {vr(te+2*j,2)}")
        for j in range(2): e(f"v_pk_mul_f32 {vr(TMP+4+2*j,2)}, {vr(TMP+4+2*j,2)}, {vr(to+2*j,2)}")
        for s in range(4):
            at(f"F{s}")
            e(f"s_set_gpr_idx_on s{ring(q+s)}, gpr_idx(SRC2,DST)" if s == 0 else f"s_set_gpr_idx_idx s{ring(q+s)}")
            for j in range(4):
                e(f"v_pk_fma_f32 {vr(ACC+2*j,2)}, {vr(TMP+4*(j//2)+2*(s//2),2)}, {vr(TP+8*s+2*j,2)}, {vr(ACC+2*j,2)} op_sel:[{s%2},0,0] op_sel_hi:[{s%2},1,1]")
        e("s_set_gpr_idx_off")
        at("F4")
        if SP == 'F': side()
    e(f"""v_add_u32 v{vEfA}, {4*BST}, v{vEfA}
s_sub_u32 s{sRem}, s{sRem}, 64
s_branch L_sb
L_exit:""")
    if PRIO: e("s_setprio 0")
    stamp((6, 1), (6, 5), (1, 6), (6, 8))
    if STAMP: e("s_memtime s[62:63]")
    e(f"""s_add_u32 s{sW0}, s{sW0}, {CAPW}
s_cmp_lt_u32 s{sW0}, s{sMAXC}
s_cbranch_scc0 L_epi
v_lshlrev_b32 v7, 3, v0
v_mov_b32 v2, 0
v_mov_b32 v3, 0
ds_write_b64 v7, v[2:3]
s_waitcnt vmcnt(0) lgkmcnt(0)
s_nop 15""")
    lane_helpers()
    list_fill()
    e(f"""s_barrier
v_and_b32 v2, 1, v0
v_max_u32 v3, s{sW0}, v{vPS}
v_add_u32 v3, v3, v2
s_add_u32 s{sT2}, s{sW0}, {CAPW}
v_min_u32 v4, s{sT2}, v{vPE}
v_add_u32 v5, v{vDL}, v3
s_lshl_b32 s{sT2}, s{sW0}, 2
s_sub_u32 s{sT2}, s{sLB}, s{sT2}
v_lshl_add_u32 v6, v3, 2, s{sT2}
v_sub_u32 v4, v4, v3
s_branch L_exp
L_exp_more:
v_add_u32 v6, {8*UNR}, v6
v_subrev_u32 v4, {2*UNR}, v4
s_branch L_exp
L_epi:""")

def epilogue():
    FB = EFA; FD = ACC; FO = TP + 16
    FA = lambda t: T0 + 16 * t
    assert CG + 8 == EFA + 32 and TP == T0 + 64
    def rdB():
        for ks in range(4):
            for par in range(2): e(f"ds_read_b128 {vr(FB+16*par+4*ks,4)}, v{vBA} offset:{8192*ks + 256*par}")
    e(f"""s_waitcnt lgkmcnt(0)
v_readfirstlane_b32 s38, v{vCNT}
v_lshlrev_b32 v2, 2, v{vL}""")
    for s in range(5):
        e(f"v_add_u32 v3, s{sROW+s}, v2")
        for o in range(4): e(f"v_cvt_pk_bf16_f32 v{ACC+8*s+o}, v{ACC+8*s+o}, v{ACC+8*s+4+o}")
        for o in range(0, 4, 2): e(f"ds_write2_b32 v3, v{ACC+8*s+o}, v{ACC+8*s+o+1} offset0:{o*TROW//4} offset1:{(o+1)*TROW//4}")
    e("s_cmp_eq_u32 s38, 8\ns_cbranch_scc0 L_nob")
    rdB()
    e("s_waitcnt lgkmcnt(8)")
    stamp((2, 6))
    e("s_barrier\ns_branch L_haveb\nL_nob:\ns_waitcnt lgkmcnt(0)\ns_barrier")
    rdB()
    e("L_haveb:")
    stamp((3, 6))
    def rdA(t):
        for ks in range(4): e(f"ds_read_b128 {vr(FA(t)+4*ks,4)}, v{vAA} offset:{L_TILE + t*16*TROW + 64*ks}")
    def fin(t):
        d = FD + 8 * t; o = FO + 4 * (t % 4)
        for j in range(4): e(f"v_cvt_pk_bf16_f32 v{o+j}, v{d+2*j}, v{d+2*j+1}")
        e(f"buffer_store_dwordx4 {vr(o,4)}, v{vOA}, {S(OS)}, 0 offen {OUTST}")
        if t < 4: e(f"v_add_u32 v{vOA}, {4*256*1024}, v{vOA}")
    rdA(0); rdA(1); rdA(2)
    issued = 12
    for t in range(5):
        d = FD + 8 * t
        for ks in range(4):
            e(f"s_waitcnt lgkmcnt({issued - 4*t - ks - 1})")
            for par in range(2):
                e(f"v_mfma_f32_16x16x32_bf16 {vr(d+4*par,4)}, {vr(FA(t)+4*ks,4)}, {vr(FB+16*par+4*ks,4)}, {'0' if ks == 0 else vr(d+4*par,4)}")
            if ks == 0 and t + 3 < 5: rdA(t + 3); issued += 4
            if ks == 2 and t >= 1: fin(t - 1)
    e("s_nop 7")
    fin(4)
    stamp((4, 6))
    e(f"s_cmp_eq_u32 s{sFIN}, 0\ns_cbranch_scc0 L_fin")
    allrows()
    e("L_fin:")
    if STAMP:
        e("s_waitcnt vmcnt(0)"); stamp((7, 0))
        e(f"""s_lshl_b32 s34, s2, 3
s_add_u32 s34, s34, s{sW}
s_add_u32 s34, s34, 4096
s_getreg_b32 s59, hwreg(HW_REG_HW_ID)
s_getreg_b32 s58, hwreg(HW_REG_XCC_ID)
s_mov_b64 exec, 1
s_lshl_b32 s34, s34, 6
s_add_u32 s34, s34, {WS_STAMP}
v_mov_b32 v2, 0""")
        for i, r in enumerate([84 + 2*i for i in range(8)] + [60, 62, sN, 59, 58]):
            e(f"v_mov_b32 v3, s{r}\nbuffer_store_dword v3, v2, {S(WS)}, s34 offen offset:{4*i}")
    e("L_end:\ns_endpgm")

ref = open("standalone__tensor_product_equiv_tfn__graph.s.ref").read().splitlines()
for l in ref:
    if l.startswith("; Override"): break
    out.append(l)
out.append("; Generated by gen/gen2.py " + " ".join(sys.argv[2:]))
out.append(f"; @launch grid=(256,1,1) block=(512,1,1) lds={M_LDS}")
e('.amdgcn_target "amdgcn-amd-amdhsa--gfx950"\n.text')
phase_a(); phase_b(); loop(); epilogue()
e(f""".section .rodata,"a"
.p2align 6
.amdhsa_kernel {KNAME}
.amdhsa_next_free_vgpr {NV}
.amdhsa_next_free_sgpr 100
.amdhsa_accum_offset {(NV+3)//4*4}
.amdhsa_group_segment_fixed_size 0
.amdhsa_kernarg_size 88
.amdhsa_user_sgpr_count 2
.amdhsa_user_sgpr_kernarg_segment_ptr 1
.amdhsa_system_sgpr_workgroup_id_x 1
.amdhsa_float_denorm_mode_32 3
.end_amdhsa_kernel""")
if NOLOAD or NOV:
    i0 = out.index("L_sb:"); i1 = out.index("L_exit:")
    rm = tuple((["buffer_load"] if NOLOAD else []) + (NOV.split(",") if NOV else []))
    out[i0:i1] = [l for l in out[i0:i1] if not l.strip().startswith(rm)]
if E64:
    i0 = out.index("L_sb:"); i1 = out.index("L_exit:")
    for i in range(i0, i1):
        l = out[i].strip()
        if (E64 & 1) and l.startswith("v_exp_f32"): out[i] = out[i].replace("v_exp_f32", "v_exp_f32_e64")
        if (E64 & 2) and l.startswith("v_rcp_f32"): out[i] = out[i].replace("v_rcp_f32", "v_rcp_f32_e64")
text = "\n".join(out) + "\n"
errs = hazard.check(text)
for x in errs: print("HAZARD", x)
open(sys.argv[1], "w").write(text)
print(f"wrote {sys.argv[1]}: NV={NV} LDS={M_LDS} hazards={len(errs)}")
```

```python
import re, sys
REG = re.compile(r"^-?\|?(v|s|a)(\d+)\|?$|^-?(v|s|a)\[(\d+):(\d+)\]$")
def regs(tok):
    tok = tok.strip()
    if tok in ("vcc",): return {("s", "vcc")}
    if tok in ("exec", "exec_hi", "exec_lo"): return {("s", "exec")}
    if tok == "m0": return {("s", "m0")}
    m = REG.match(tok)
    if not m: return set()
    if m.group(1): return {(m.group(1), int(m.group(2)))}
    return {(m.group(3), i) for i in range(int(m.group(4)), int(m.group(5)) + 1)}
TRANS = ("v_exp_", "v_log_", "v_rcp_", "v_rsq_", "v_sqrt_", "v_sin_", "v_cos_")
class I:
    def __init__(self, line, no):
        self.line = line; self.no = no
        p = line.split(None, 1)
        self.op = p[0]
        rest = p[1] if len(p) > 1 else ""
        ops = []; depth = 0; cur = ""
        for ch in rest:
            if ch in "[(": depth += 1
            if ch in "])": depth -= 1
            if ch == "," and depth == 0: ops.append(cur.strip()); cur = ""
            else: cur += ch
        if cur.strip(): ops.append(cur.strip())
        self.mods = ""
        if ops:
            q = ops[-1].split(None, 1)
            ops[-1] = q[0]; self.mods = q[1] if len(q) > 1 else ""
        self.ops = ops
        op = self.op
        self.valu = op.startswith("v_")
        self.mfma = op.startswith("v_mfma")
        self.trans = op.startswith(TRANS)
        self.dpp = "_dpp" in op or "row_" in self.mods or "quad_perm" in self.mods
        self.vmem = op.startswith(("buffer_", "global_"))
        self.ds = op.startswith("ds_")
        self.salu = op.startswith("s_")
        d, u = set(), set()
        R = [regs(o) for o in ops]
        if self.valu:
            if op.startswith("v_cmp"):
                d = R[0]; u = set().union(*R[1:])
                if op.startswith("v_cmpx"): d = d | {("s", "exec")}
            elif op.startswith(("v_add_co", "v_sub_co", "v_addc_co", "v_subb_co", "v_mad_u64")):
                d = R[0] | R[1]; u = set().union(*R[2:])
            elif op.startswith("v_permlane"):
                d = R[0] | R[1]; u = R[0] | R[1]
            elif op == "v_nop": pass
            else:
                d = R[0]; u = set().union(*R[1:]) if len(R) > 1 else set()
                if op.startswith(("v_fmac", "v_pk_fmac", "v_writelane")) or self.dpp: u |= R[0]
            if self.mfma:
                self.srcA, self.srcB, self.srcC = R[1], R[2], R[3]
                self.passes = 2 if "4x4x4" in op else 4 if "16x16" in op else 8
        elif self.vmem:
            lds = " lds" in (" " + self.mods)
            if "load" in op and not lds: d = R[0]; u = set().union(*R[1:])
            elif "atomic" in op and "sc0" in self.mods: d = R[0]; u = set().union(*R)
            else: u = set().union(*R) if R else set()
            if lds: u |= {("s", "m0")}
            self.ldsdma = lds
        elif self.ds:
            if "read" in op or "rtn" in op or "permute" in op or "swizzle" in op: d = R[0]; u = set().union(*R[1:])
            else: u = set().union(*R)
        elif self.salu:
            if op.startswith(("s_cmp", "s_cbranch", "s_branch", "s_waitcnt", "s_nop", "s_barrier", "s_endpgm", "s_setprio", "s_bitcmp", "s_sleep")):
                u = set().union(*R) if R else set()
            elif op.startswith("s_set_gpr_idx"):
                u = set().union(*R) if R else set(); d = {("s", "m0")}
            else:
                d = R[0] if R else set(); u = set().union(*R[1:]) if len(R) > 1 else set()
                if "saveexec" in op: d = d | {("s", "exec")}
        self.d, self.u = d, u
        self.ws = 1
        if op == "s_nop": self.ws = int(ops[0], 0) + 1
def need(a, b):
    n = 0
    vd = {r for r in a.d if r[0] in "va"}; sd = {r for r in a.d if r[0] == "s"}
    if a.valu and not a.mfma:
        if b.mfma and (vd & b.u): n = max(n, 2)
        if b.valu and b.dpp and (vd & b.u): n = max(n, 2)
        if b.op.startswith(("v_readlane", "v_readfirstlane")) and (vd & b.u): n = max(n, 1)
        if b.op.startswith("v_permlane") and (vd & b.u): n = max(n, 2)
        if a.trans and b.valu and not b.trans and (vd & b.u): n = max(n, 1)
        if sd:
            if b.vmem and (sd & b.u): n = max(n, 5)
            if b.valu and (sd & b.u):
                n = max(n, 4 if b.op.startswith(("v_readlane", "v_writelane")) else 2)
            if b.op.startswith("v_cndmask") and len(b.ops) == 4 and (sd & regs(b.ops[3])): n = max(n, 2)
            if ("s", "exec") in sd:
                if b.dpp: n = max(n, 5)
                if b.mfma or b.op.startswith(("v_readlane", "v_readfirstlane", "v_writelane", "v_permlane")): n = max(n, 4)
    if a.mfma:
        P = {2: 0, 4: 1, 8: 2, 16: 3}[a.passes]
        if b.mfma:
            if vd & (b.srcA | b.srcB): n = max(n, [5, 8, 12, 20][P])
            if vd & b.srcC:
                if vd == b.srcC and a.passes == b.passes: n = max(n, [2, 0, 0, 0][P])
                else: n = max(n, [4, 6, 10, 18][P])
            elif vd & b.d: n = max(n, [4, 6, 10, 18][P])
        elif (b.valu or b.vmem or b.ds) and (vd & (b.u | b.d)): n = max(n, [5, 8, 12, 20][P])
        if b.valu and not b.mfma and (a.srcC & b.d): n = max(n, [1, 3, 7, 15][P])
    if a.vmem and "store" in a.op and ("x3" in a.op or "x4" in a.op):
        data = regs(a.ops[0]) if a.op.startswith("buffer") else regs(a.ops[1])
        if data & b.d: n = max(n, 2 if b.valu else 1)
    if a.salu and ("s", "m0") in a.d and b.vmem and getattr(b, "ldsdma", False): n = max(n, 1)
    return n
def check(text, maxd=22):
    ins = []; labels = {}
    for no, l in enumerate(text.splitlines(), 1):
        l = l.split(";")[0].strip()
        if not l or l.startswith("."): continue
        if l.endswith(":"): labels[l[:-1]] = len(ins); continue
        ins.append(I(l, no))
    errs = []
    def succ(i):
        x = ins[i]
        if x.op == "s_endpgm": return []
        if x.op == "s_branch": return [labels[x.ops[0]]]
        if x.op.startswith("s_cbranch"): return [i + 1, labels[x.ops[0]]]
        return [i + 1]
    for i, a in enumerate(ins):
        if not (a.valu or a.vmem or (a.salu and ("s", "m0") in a.d)): continue
        stack = [(j, 0) for j in succ(i)]; seen = {}
        while stack:
            j, dist = stack.pop()
            if j >= len(ins) or dist >= maxd: continue
            if seen.get(j, 99) <= dist: continue
            seen[j] = dist
            b = ins[j]
            n = need(a, b)
            if n > dist: errs.append(f"line {a.no}: '{a.line}' -> line {b.no}: '{b.line}' needs {n} has {dist}")
            for k in succ(j): stack.append((k, dist + b.ws))
    return errs
def check_waits(text, maxstates=400000):
    ins = []; labels = {}
    for no, l in enumerate(text.splitlines(), 1):
        l = l.split(";")[0].strip()
        if not l or l.startswith("."): continue
        if l.endswith(":"): labels[l[:-1]] = len(ins); continue
        ins.append(I(l, no))
    errs = {}; seen = set(); stack = [(0, (), (), ())]
    while stack:
        pc, vm, ds, sm = stack.pop()
        while True:
            if pc >= len(ins): break
            x = ins[pc]
            if x.op.startswith(("s_cbranch", "s_branch")) or pc in labels.values():
                key = (pc, vm, ds, sm)
                if key in seen: break
                seen.add(key)
                if len(seen) > maxstates: return list(errs.values()) + ["check_waits: state limit"]
            if x.op == "s_endpgm": break
            if x.op == "s_waitcnt":
                m = re.search(r"vmcnt\((\d+)\)", x.line)
                if m: n = int(m.group(1)); vm = vm[len(vm) - n:] if n < len(vm) and n else (() if n == 0 else vm)
                m = re.search(r"lgkmcnt\((\d+)\)", x.line)
                if m:
                    n = int(m.group(1))
                    if n == 0: ds = (); sm = ()
                    elif n < len(ds): ds = ds[len(ds) - n:]
            else:
                smem = x.op.startswith(("s_load", "s_memtime", "s_memrealtime"))
                for q, own in ((vm, x.vmem), (ds, x.ds), (sm, smem)):
                    for src, d in q:
                        bad = (d & x.u) | (set() if own else (d & x.d))
                        if bad: errs[(src, x.no)] = f"line {src} may still write {sorted(bad)[:2]} when line {x.no} '{x.line}' runs"
                if x.vmem: vm = (vm + ((x.no, frozenset(x.d)),))[-63:]
                elif x.ds: ds = (ds + ((x.no, frozenset(x.d)),))[-16:]
                elif smem and (x.no, frozenset(x.d)) not in sm: sm = sm + ((x.no, frozenset(x.d)),)
            if x.op == "s_branch": pc = labels[x.ops[0]]; continue
            if x.op.startswith("s_cbranch"): stack.append((labels[x.ops[0]], vm, ds, sm))
            pc += 1
    return list(errs.values())
if __name__ == "__main__":
    e = check(open(sys.argv[1]).read()) + check_waits(open(sys.argv[1]).read())
    print("\n".join(e) if e else "hazards: clean")
```

```python
import sys, struct, math
sys.path.insert(0, "gen")
import hazard

OPT = dict(STAMP=0, SQ=16, SLOWT=0, NOLOAD=0, NOV="", R=12, EF1=2, PRE=4, YBAR=1, ROT=2, CPF=3, EARLY=0, UNR=6,
           OUTST="sc1", PRIO=3, XP=0, TBAR=1, RPOS=4, RTCH=0, GPOS=1, EW=-1, CPOS=2, SCAP=0, AL=-1, E64=0, BPOS=1, IPOS=3, SPR=1, NF=0, W1=300, PST='sc1', INT='', DLY=0, EWL=2, XPOS=0, WMP=0, TR=288, NOST=0, RSC='sc1', SLIM=0, WBE=0, PD=0, WMD=0, W2=0, LP='F4,F4,F4,F4', PS='Q', SA=2, SCH=2, SP='F', POLL2=0, DST=0, TLB=0, EFF=0, TH=1270, TS=1, TH2=0, TL=0, INS='', EG=4, EP=1, BP=0)
for a in sys.argv[2:]:
    k, v = a.split("=")
    assert k in OPT, k
    OPT[k] = int(v) if v.lstrip("-").isdigit() else v.replace("+", " ")
globals().update(OPT)

KNAME = "standalone__tensor_product_equiv_tfn__graph_kernel"
N, E, C = 10000, 320000, 128
CH = 1250; CHP = 1280
WS_EF = 0; WS_YM = 256 * CHP * 32; WS_TBL = WS_YM + 256 * CHP * 12
WS_STAMP = 0x1000000
WS_SIZE = 0x1000000 + (0x100000 if STAMP else 0) + (0x400000 if DST else 0)
assert WS_TBL + 256 * 1024 <= WS_STAMP
def f32(x): return "0x%08x" % struct.unpack("<I", struct.pack("<f", x))[0]
LOG2E = math.log2(math.e); LN2 = math.log(2.0)
RMUL, RSH = {4: (6711, 24), 8: (6711, 23), 12: (5033, 22)}[R]
assert (9999 * RMUL) >> RSH == R - 1
SPIN = 400000
OOB = 0x00ffffff

CAPW = 216; TROW = TR
L_HIST = 0; L_MAXC = 2048; A_HIST = 3072; L_ENTRY = 4096; L_TBL = 4608; L_CG = 6656
L_LIST = 8192; L_WR = 16384
L_TILE = 0
L_EF = 160 * TROW; L_ST = L_EF + 8 * CAPW * 32; L_WM = L_ST + 8 * CAPW * 16; L_CNT = L_WM + 32768
M_LDS = L_CNT + 16
L_YI = L_ST; L_SW = L_ST + 8 * CAPW * 8
ES = 2 if SLIM else 4
A_YM = L_EF; A_EF = A_YM + CHP * 12; A_INV = L_LIST; A_START = L_LIST + 2560
assert M_LDS <= 163840 and A_EF < 65536 and A_EF + CHP * 32 <= L_WM and 40 * R * 4 <= 2048 and 5 * R <= 64 and R % 4 == 0

D = 8; DIST = 8
ACC = 8; X = 48; T0 = 80; T = [T0, T0 + 32]; TP = T0 + 64; TMP = TP + 32; AE = TMP + 8; EFA = AE + 8; WB = EFA + 8
CG = WB + 16; ENT = CG + 8; META = ENT + 4; EFAD = META + 1
vEntA = EFAD + 1; vEfA = vEntA + 1; vL16 = vEfA + 1; vH16 = vL16 + 1; vQ = vH16 + 1
vPS = vQ + 1; vPE = vPS + 1; vDL = vPE + 1; vPOS = vDL + 1; vJUNK = vPOS + 1; vBA = vJUNK + 1; vAA = vBA + 1; vOA = vAA + 1; vCNT = vOA + 1; vCA = vCNT + 1; vRW = vCA + 1; vROW = vRW + 1; NV = vROW + 4
assert vROW % 2 == 0
vL = 1
assert NV <= 256
XS, WS, OS = 4, 8, 12
sW, sKB, sN, sCW, sW0, sMAXC, sT, sT2, sNT, sS0, sRem = 16, 17, 18, 19, 24, 25, 26, 27, 28, 29, 30
mU0, mU1 = 20, 22
sMASK, sDUM, sEFM = 31, 32, 33
mV = 36
DG = 44
sROW = 48
sFIN = 53
sYI = 59
sEW = 54
sK = 56
RING = 64; sOFF = 80
DUMMY = (N * 1024) | 40
MAP39 = [0, 5, 6, 3, 0, 7, 2, 4, 1, 0, 2, 7, 1, 0, 6, 3, 5, 4, 1, 7, 4, 6, 3, 2, 5, 4, 5, 7, 2, 1, 3, 6, 4, 1, 3, 2, 6, 7, 5, 0]
MAP40 = [7, 0, 5, 2, 4, 3, 1, 6, 4, 1, 6, 3, 7, 2, 0, 5, 5, 6, 3, 0, 7, 1, 2, 4, 2, 5, 3, 1, 4, 6, 0, 7, 6, 1, 4, 3, 2, 0, 5, 7]
def posmap(m):
    c = [0] * 8; o = []
    for w in m: o.append(c[w] * 8 + w); c[w] += 1
    assert sorted(o) == list(range(40))
    return o

out = []
def e(s=""):
    for l in s.split("\n"):
        l = l.strip()
        if not l: continue
        out.append(l if l.endswith(":") or l.startswith((".", ";")) else "    " + l)
def vr(a, n): return f"v[{a}:{a+n-1}]" if n > 1 else f"v{a}"
def S(a): return f"s[{a}:{a+3}]"
def P(a): return f"s[{a}:{a+1}]"
def srd(d, base, nbytes):
    e(f"s_mov_b32 s{d}, s{base}\ns_mov_b32 s{d+1}, s{base+1}\ns_mov_b32 s{d+2}, {nbytes}\ns_mov_b32 s{d+3}, 0x00020000")
DPPS = ("row_shr:1 row_mask:0xf", "row_shr:2 row_mask:0xf", "row_shr:4 row_mask:0xf", "row_shr:8 row_mask:0xf",
        "row_bcast:15 row_mask:0xa", "row_bcast:31 row_mask:0xc")
def scan(v, fill=()):
    fill = list(fill)
    for m in DPPS:
        k = 0
        while k < 2 and fill: e(fill.pop(0)); k += 1
        if k < 2: e(f"s_nop {1-k}")
        e(f"v_add_u32_dpp v{v}, v{v}, v{v} {m} bank_mask:0xf")
    for x in fill: e(x)
def scan2(v1, v2, fill=()):
    fill = list(fill)
    e(fill.pop(0) if fill else "s_nop 0")
    for m in DPPS:
        e(fill.pop(0) if fill else "s_nop 0")
        e(f"v_add_u32_dpp v{v1}, v{v1}, v{v1} {m} bank_mask:0xf\nv_add_u32_dpp v{v2}, v{v2}, v{v2} {m} bank_mask:0xf")
    for x in fill: e(x)
def stamp(*specs):
    for i, st in specs:
        if STAMP and (st == STAMP or st == 0):
            e(f"s_memrealtime s[{84+2*i}:{85+2*i}]")
            if (i, st) not in ((1, 2), (2, 2), (3, 2), (5, 2), (6, 8)): e("s_waitcnt lgkmcnt(0)")

tY = T0
tI = T0 + 16
tR = T0 + 28
vMAP, vNODE, vR4, vS, vXA = T0 + 32, T0 + 33, T0 + 34, T0 + 35, T0 + 40
vLY, vLE, vHP, vCH, vN48, vEN, vFA = T0 + 41, T0 + 42, T0 + 43, T0 + 44, T0 + 45, T0 + 46, T0 + 47
sLB, sEB = 81, 80
vREF, vTA, vP2 = X + 11, X + 10, X + 4

def lane_helpers():
    e(f"""s_mul_i32 s{sT}, s{sW}, 5
v_add_u32 v{vNODE}, s{sT}, v{vL}
v_subrev_u32 v3, 40, v{vNODE}
v_min_u32 v{vNODE}, v{vNODE}, v3
v_mul_u32_u24 v3, 205, v{vL}
v_lshrrev_b32 v3, 10, v3
v_mul_u32_u24 v2, 5, v3
v_sub_u32 v{vS}, v{vL}, v2""")
    if ROT == 1:
        e(f"""s_lshr_b32 s{sT}, s{sKB}, 5
s_mul_i32 s{sT}, s{sT}, {R}
s_lshr_b32 s{sT}, s{sT}, 3
v_add_u32 v3, s{sT}, v3
v_subrev_u32 v2, {R}, v3
v_min_u32 v3, v3, v2""")
    e(f"""v_lshlrev_b32 v{vR4}, 2, v3
s_lshl_b32 s{sLB}, s{sW}, 10
s_add_u32 s{sLB}, s{sLB}, {L_LIST}
s_mul_i32 s{sEB}, s{sW}, {CAPW*32}
v_lshl_add_u32 v{vLY}, v{vL}, 2, s{sLB}
v_lshrrev_b32 v3, 1, v{vL}
v_lshl_add_u32 v{vLE}, v3, 2, s{sLB}
v_and_b32 v2, 1, v{vL}
v_lshlrev_b32 v{vHP}, 4, v2
v_lshrrev_b32 v3, 1, v0
v_mul_u32_u24 v3, {CHP}, v3
v_add_u32 v{vCH}, v3, v2
v_mul_u32_u24 v{vN48}, {4*R}, v{vNODE}
s_lshl_b32 s{sT}, s{sW}, 2
v_lshl_add_u32 v{vEN}, v{vS}, 5, s{sT}
v_lshl_add_u32 v{vFA}, v{vL}, 5, s{sEB}
s_cmp_eq_u32 s{sW}, 7
s_cselect_b32 s{sEW}, 0, 1""")
    if XP:
        assert ROT == 2
        e(f"""s_lshr_b32 s{sT}, s{sKB}, 5
s_mul_i32 s{sT}, s{sT}, {1250 - 32}
s_add_u32 s{sT}, s{sT}, s{sKB}
s_lshl3_add_u32 s{sT}, s{sT}, s{sW}
s_lshl_b32 s{sT}, s{sT}, 7
v_lshl_add_u32 v{vXA}, v{vL}, 15, s{sT}""")

def list_fill():
    for i in range(4): e(f"v_mov_b32 v{tY+i}, {hex(OOB)}")
    e(f"v_add_u32 v2, s{sLB}, v{vL16}\nds_write_b128 v2, {vr(tY,4)}")

def common_init():
    e(f"""s_mov_b32 s{mU0}, 0x0f0f0f0f
s_mov_b32 s{mU0+1}, 0x0f0f0f0f
s_mov_b32 s{mU1}, 0xf0f0f0f0
s_mov_b32 s{mU1+1}, 0xf0f0f0f0
s_mov_b32 s{sMASK}, 0xfffffc00
s_mov_b32 s{sDUM}, {hex(DUMMY)}
s_mov_b32 s{sEFM}, 0xffe0
s_mov_b32 s{sW0}, 0
s_mov_b32 s{sMAXC}, 0""")
    for i in range(40): e(f"v_mov_b32 v{ACC+i}, 0")
    for i in range(8): e(f"v_mov_b32 v{EFA+i}, 0")
    e(f"v_mov_b32 v{vMAP}, 0\nv_mov_b32 v{vPOS}, 0\ns_cmp_lt_u32 s{2 if SPR else sKB}, {N - 39*256}\ns_cbranch_scc1 L_map40")
    for r, p in enumerate(posmap(MAP39)): e(f"v_writelane_b32 v{vMAP}, {p}, {r}")
    e("s_branch L_mapd\nL_map40:")
    for r, p in enumerate(posmap(MAP40)): e(f"v_writelane_b32 v{vMAP}, {p}, {r}")
    e("L_mapd:")
    e(f"""v_and_b32 v2, 3, v{vL}
v_lshrrev_b32 v3, 2, v{vL}
v_lshl_add_u32 v{vQ}, v2, 4, v3
v_lshrrev_b32 v2, 5, v{vL}
v_lshlrev_b32 v{vH16}, 4, v2""")

def epi_addr():
    e(f"""s_and_b32 s{sT}, s{sW}, 3
s_lshl_b32 s58, s{sT}, 9
s_add_u32 s58, s58, {L_WM}
v_lshrrev_b32 v3, 4, v{vL}
v_mul_u32_u24 v2, {2048 - 256}, v3
v_add3_u32 v{vBA}, v2, s58, v{vL16}
s_lshr_b32 s58, s{sW}, 2
v_and_b32 v2, 15, v{vL}
v_mul_u32_u24 v{vAA}, {TROW}, v2
v_lshl_add_u32 v{vAA}, v3, 4, v{vAA}
s_mul_i32 s59, s58, {80*TROW}
v_add_u32 v{vAA}, s59, v{vAA}
v_lshlrev_b32 v{vOA}, 18, v3
v_lshl_add_u32 v{vOA}, v2, 4, v{vOA}
s_mul_i32 s58, s58, {20*256*1024}
s_lshl_b32 s59, s{2 if SPR else sKB}, 10
s_add_u32 s58, s58, s59
s_lshl_b32 s59, s{sT}, 8
s_add_u32 s58, s58, s59
v_add_u32 v{vOA}, s58, v{vOA}
v_mov_b32 v{vCA}, {L_CNT}""")

def build_cg():
    e(f"""v_and_b32 v2, 0x30, v{vL}
v_and_b32 v3, 3, v{vL}
v_lshl_add_u32 v2, v3, 2, v2
v_bfe_u32 v7, v{vL}, 2, 2
v_add_lshl_u32 v2, v2, v7, 1
ds_write_b16 v2, v{X+9} offset:{L_CG}
v_lshlrev_b32 v3, 3, v3""")
    for k in range(4): e(f"ds_read_b64 {vr(CG+2*k,2)}, v3 offset:{L_CG + 32*k}")

def build_wm(fM=T0 + 32):
    wM = TP + 16
    e(f"""v_lshrrev_b32 v7, 5, v0
v_and_b32 v3, 31, v{vL}
v_lshlrev_b32 v7, 11, v7
v_add_u32 v7, {L_WM}, v7
v_lshl_add_u32 v2, v3, 3, v7""")
    for m in range(8): e(f"ds_read_b64 {vr(wM+2*m,2)}, v2 offset:{256*m}")
    e(f"""s_mov_b32 s58, 0x05040100
s_mov_b32 s59, 0x07060302
v_bfe_u32 v3, v0, 3, 2
v_lshl_add_u32 v7, v3, 9, v7
v_and_b32 v3, 7, v0
v_lshl_add_u32 v7, v3, 5, v7
v_mov_b32 v5, {L_CNT}
v_mov_b32 v6, 1
s_waitcnt lgkmcnt(0)""")
    for q in range(4):
        for mp in range(4):
            e(f"v_perm_b32 v{fM+4*q+mp}, v{wM+2*(2*mp+1)+q//2}, v{wM+2*(2*mp)+q//2}, s{58 + q%2}")
        e(f"ds_write_b128 v7, {vr(fM+4*q,4)} offset:{256*(q%2) + 16*(q//2)}")
    e("s_mov_b64 exec, 1\nds_add_u32 v5, v6\ns_mov_b64 exec, -1")

def build_wb(wR=TP, t2=TP + 16):
    e(f"""v_and_b32 v3, 31, v{vL}
v_lshlrev_b32 v2, 7, v{vH16}
v_lshl_add_u32 v2, v3, 2, v2
v_add_u32 v3, 128, v2""")
    for u in range(2):
        for m in range(0, 8, 2): e(f"ds_read2st64_b32 {vr(wR+8*u+m,2)}, v{2+u} offset0:{L_WR//256 + m} offset1:{L_WR//256 + m + 1}")
    e(f"s_mov_b32 s{sK}, {f32(-LOG2E)}\ns_mov_b32 s{sK+1}, {f32(-LOG2E)}")
    for u in range(2):
        for mp in range(4):
            a0, a1 = wR + 8*u + 2*mp, wR + 8*u + 2*mp + 1
            e(f"""s_waitcnt lgkmcnt({7 - 4*u - mp})
v_lshlrev_b32 v{t2}, 16, v{a0}
v_lshlrev_b32 v{t2+1}, 16, v{a1}
v_and_b32 v{t2+2}, 0xffff0000, v{a0}
v_and_b32 v{t2+3}, 0xffff0000, v{a1}
v_pk_mul_f32 {vr(t2,2)}, {vr(t2,2)}, {P(sK)}
v_pk_mul_f32 {vr(t2+2,2)}, {vr(t2+2,2)}, {P(sK)}
v_cvt_pk_bf16_f32 v{WB+4*(2*u)+mp}, v{t2}, v{t2+1}
v_cvt_pk_bf16_f32 v{WB+4*(2*u+1)+mp}, v{t2+2}, v{t2+3}""")

def poll():
    e(f"""L_pa:
buffer_load_dword v6, v{vTA}, {S(WS)}, 0 offen sc1
s_waitcnt vmcnt(0)
v_xor_b32 v{TP}, v6, v{vREF}
v_cmpx_gt_u32 vcc, 0x40000000, v{TP}
s_cbranch_execz L_pda
s_sub_u32 s{sRem}, s{sRem}, 1
s_cbranch_scc0 L_pa
s_endpgm
L_pda:
s_mov_b64 exec, -1""")

def second_row(tag):
    e(f"""s_cmp_eq_u32 s{sW0}, s{sEW}
s_cbranch_scc0 L_no2
buffer_store_dwordx4 {vr(vROW,4)}, v{vRW}, {S(WS)}, s{sFIN} offen sc1
L_no2:""")

def phase_a():
    SA, SB, SC, SD = 64, 68, 72, 76
    m2, mE = 60, 62; mT = 34; mY = 35
    aD, aS = TP, TP + 3
    aR = TP + 8
    aK, aB = TP + 20, TP + 23
    aC, aST = TP + 28, X
    aE, aO, aE1 = X + 12, X + 16, X + 20
    vE4, vE8, vY16, vP16 = X + 5, X + 6, X + 7, X + 8
    e(f""".globl {KNAME}
.p2align 8
.type {KNAME},@function
{KNAME}:
s_cmp_ge_u32 s2, 256
s_cbranch_scc1 L_end""")
    if STAMP: e("s_memrealtime s[84:85]")
    if SLOWT:
        e(f"s_and_b32 s58, s2, 15\ns_cmp_eq_u32 s58, {SLOWT-1}\ns_cbranch_scc0 L_slt\ns_sleep 127\ns_sleep 127\ns_lshr_b32 s58, s2, 7\ns_cbranch_scc0 L_slt\ns_sleep 127\ns_sleep 127\nL_slt:")
    e(f"""s_load_dwordx16 s[36:51], s[0:1], 0
s_load_dwordx2 s[52:53], s[0:1], 64
s_load_dwordx2 s[56:57], s[0:1], 80
v_lshrrev_b32 v2, 6, v0
v_and_b32 v{vL}, 63, v0
v_readfirstlane_b32 s{sW}, v2
s_and_b32 s{sKB}, s2, 7
s_lshl_b32 s{sKB}, s{sKB}, 5
s_lshr_b32 s{sT}, s2, 3
s_or_b32 s{sKB}, s{sKB}, s{sT}
v_lshlrev_b32 v7, 3, v0
v_mov_b32 v2, 0
v_mov_b32 v3, 0
v_mov_b32 v4, {L_CNT}
ds_write_b64 v7, v[2:3]
ds_write_b32 v4, v2
v_lshlrev_b32 v{vL16}, 4, v{vL}
s_mul_i32 s{sT}, s{sW}, 160
v_add_u32 v6, s{sT}, v{vL}
v_lshlrev_b32 v{vE4}, 2, v6
v_lshlrev_b32 v{vE8}, 3, v6
s_mul_i32 s{sT}, s{sW}, {120*16}
v_add_u32 v{vY16}, s{sT}, v{vL16}
s_mul_i32 s{sT}, s{sW}, {320*16}
v_add_u32 v{vP16}, s{sT}, v{vL16}
s_cmp_lt_u32 s{sW}, 7
s_cselect_b32 s{m2}, -1, 3
s_mov_b32 s{m2+1}, 0
s_cselect_b64 {P(mE)}, -1, 15
s_cselect_b32 s{mT}, -1, 0xff
s_cselect_b32 s{mY}, 0xffffff, s{mT}
s_mul_i32 s58, s{sKB}, {CH*4}
s_mul_i32 s59, s{sKB}, {CH*8}
s_lshl_b32 s{sS0}, s{sKB}, 6
s_add_u32 s{sS0}, s{sS0}, {WS_TBL}
s_waitcnt lgkmcnt(0)""")
    def ld3(op, d, n, va, Sd, so, step):
        for k in range(3):
            if k == 2: e(f"s_mov_b64 exec, {P(m2)}")
            e(f"{op} {vr(d[k], n)}, v{va}, {S(Sd)}, s{so} offen offset:{step*k} {INS}")
        e("s_mov_b64 exec, -1")
    def cpf():
        e(f"""s_getpc_b64 s[82:83]
L_pc:
s_lshr_b32 s80, s2, 3
s_lshl_b32 s80, s80, 3
s_add_u32 s80, s80, s{sW}
s_lshl_b32 s81, s80, 6
s_min_u32 s81, s81, L_end-L_pc
s_load_dword s3, s[82:83], s81""")
        if RTCH: e(f"""s_and_b32 s81, s2, 7
s_lshl_b32 s81, s81, 8
s_add_u32 s81, s81, s80
s_lshl_b32 s81, s81, 7
s_add_u32 s81, s81, {WS_TBL}
s_load_dword s3, s[56:57], s81
s_add_u32 s81, s81, 64
s_load_dword s3, s[56:57], s81""")
        if CPF & 2: e(f"""s_lshl_b32 s81, s80, 7
s_load_dword s3, s[50:51], s81
s_add_u32 s81, s81, 64
s_load_dword s3, s[50:51], s81""")
        if RPOS >= 3 and not WBE and CPF & 4: e("""s_lshl_b32 s81, s80, 4
s_load_dword s3, s[46:47], s81
s_and_b32 s81, s80, 64
s_load_dword s3, s[48:49], s81""")
    if TLB & 1:
        e(f"""s_mul_i32 s80, s{sKB}, {CH*32}
s_load_dword s3, s[44:45], s80
s_load_dword s3, s[42:43], s59
s_load_dword s3, s[38:39], s58""")
    if TLB & 2:
        e(f"""s_mul_i32 s80, s{sKB}, {CHP*32}
s_load_dword s3, s[56:57], s80
s_load_dword s3, s[56:57], s{sS0}""")
    srd(SA, 40, E * 4)
    ld3("buffer_load_dword", [aD, aD+1, aD+2], 1, vE4, SA, 58, 256)
    if CPF and CPOS == 2: cpf()
    srd(SB, 38, E * 4)
    ld3("buffer_load_dword", [aS, aS+1, aS+2], 1, vE4, SB, 58, 256)
    srd(SC, 42, E * 8)
    ld3("buffer_load_dwordx2", [aR, aR+4, aR+8], 2, vE8, SC, 59, 512)
    if CPF and CPOS == 0: cpf()
    srd(WS, 56, WS_SIZE)
    TA = [f"v_lshrrev_b32 v5, 1, v0", f"s_lshr_b32 s59, s{sKB}, 4", f"s_mul_i32 s59, s59, {16384 - 64}", f"s_lshl2_add_u32 s59, s{sKB}, s59",
          f"s_add_u32 s59, s59, {WS_TBL}", f"v_lshl_add_u32 v{vTA}, v5, 6, s59"]
    def side_a():
        if GPOS == 2:
            for x in TA: e(x)
            e(f"buffer_load_dword v{vREF}, v{vTA}, {S(WS)}, 0 offen {RSC}")
        e(f"""v_lshrrev_b32 v7, 2, v{vL}
v_mul_u32_u24 v7, {16384 - 64}, v7
v_add_u32 v{vRW}, v7, v{vL16}
s_cmp_eq_u32 s{sW}, 7
s_cselect_b32 s59, s{sS0}, 0x40000000
v_add_u32 v7, s59, v{vRW}
buffer_load_dwordx4 {vr(aO,4)}, v7, {S(WS)}, 0 offen {RSC}""")
    def side_b():
        srd(SB, 46, 16 * C * 2); srd(SA, 48, 128)
        e(f"""v_lshlrev_b32 v7, 1, v{vL}
s_lshl_b32 s58, s{sW}, 9
s_add_u32 m0, s58, {L_WR}
s_mov_b32 exec_hi, 0
buffer_load_dwordx4 v{vL16}, {S(SB)}, s58 offen lds
s_mov_b32 exec_hi, -1
buffer_load_ushort v{X+9}, v7, {S(SA)}, 0 offen""")
    def side_loads(): side_a(); side_b()
    nS = 0 if RPOS == 3 else 1 if RPOS >= 4 else 3 + (GPOS == 2)
    if WBE: assert RPOS == 4 and GPOS == 1; nS = 3
    if RPOS == 0: side_loads()
    if RPOS == 5: side_a()
    srd(SD, 44, E * 32)
    if not EFF: e("s_barrier")
    if RPOS == 1: side_loads()
    if WBE: side_b()
    e(f"s_add_u32 m0, s{sT}, {A_EF}\ns_mul_i32 s58, s{sKB}, {CH*32}")
    for k in range(4):
        if EFF and k == EFF: e("s_barrier")
        e(f"buffer_load_dwordx4 v{vP16}, {S(SD)}, s58 offen offset:{1024*k} {INT} lds")
    e(f"""s_add_u32 m0, s{sT}, {A_EF + 4096}
s_add_u32 s58, s58, 4096
s_mov_b64 exec, {P(mE)}
buffer_load_dwordx4 v{vP16}, {S(SD)}, s58 offen {INT} lds
s_mov_b64 exec, -1
v_mov_b32 v6, 1""")
    if RPOS == 2: side_loads()
    if RPOS == 4: side_a()
    if CPF and CPOS == 1: cpf()
    stamp((1, 2))
    e(f"s_waitcnt vmcnt({11+nS})")
    stamp((2, 2))
    for k in range(3):
        if k == 2: e(f"s_mov_b64 exec, {P(m2)}")
        e((f"v_bfe_u32 v2, v{aD+k}, 3, 5\nv_and_b32 v3, 7, v{aD+k}\nv_lshl_or_b32 v2, v3, 5, v2" if SPR else f"v_and_b32 v2, 255, v{aD+k}") + f"\nv_lshlrev_b32 v{aB+k}, 2, v2\nds_add_rtn_u32 v{aK+k}, v{aB+k}, v6 offset:{A_HIST}")
    e(f"s_mov_b64 exec, -1\ns_movk_i32 s{sT2}, {RMUL}\ns_waitcnt vmcnt({8+nS})")
    if NF:
        k1 = (1 << 22) // W1; k2 = int((1 << 22) * (R - NF) / (N - NF * W1)); c2 = NF * (1 << 22) - NF * W1 * k2
        assert min(9999 * k1, 9999 * k2 + c2) >> 22 == R - 1 and c2 > 0
        e(f"s_movk_i32 s{sT2}, {k2}\nv_mov_b32 v5, {c2}")
    e("s_movk_i32 s59, -1250")
    for k in range(3):
        t = aS + k
        if ROT == 2:
            e(f"v_lshrrev_b32 v3, 7, v{aB+k}\nv_mad_i32_i24 v2, v3, s59, v{aS+k}\nv_add_u32 v3, {N}, v2\nv_min_u32 v2, v2, v3")
            t = 2
        if NF: e(f"v_mul_u32_u24 v3, {k1}, v{t}\nv_mad_u32_u24 v2, v{t}, s{sT2}, v5\nv_min_u32 v2, v2, v3\nv_lshrrev_b32 v2, 22, v2")
        else: e(f"v_mul_u32_u24 v2, s{sT2}, v{t}\nv_lshrrev_b32 v2, {RSH}, v2")
        e(f"""v_lshrrev_b32 v3, 8, v{aD+k}
v_mad_u32_u24 v2, v3, {R}, v2
v_lshl_or_b32 v{aR+4*k+2}, v{aS+k}, 10, v2""")
    e(f"""s_waitcnt lgkmcnt(0)
s_barrier
ds_read_b128 {vr(aC,4)}, v{vL16} offset:{A_HIST}
s_waitcnt lgkmcnt(0)
v_add_u32 v{aST+2}, v{aC}, v{aC+1}
v_add_u32 v{aST+3}, v{aST+2}, v{aC+2}
v_add_u32 v2, v{aST+3}, v{aC+3}
v_mov_b32 v3, v2""")
    scan(3, [f"v_lshlrev_b32 v4, 2, v{vE8}"] + (TA if GPOS != 2 else []))
    e(f"""v_sub_u32 v{aST}, v3, v2
v_add_u32 v{aST+1}, v{aST}, v{aC}
v_add_u32 v{aST+2}, v{aST}, v{aST+2}
v_add_u32 v{aST+3}, v{aST}, v{aST+3}
ds_write_b128 v{vL16}, {vr(aST,4)} offset:{A_START}""")
    for k in range(3):
        if k == 2: e(f"s_mov_b64 exec, {P(m2)}")
        e(f"ds_read_b32 v{aB+k}, v{aB+k} offset:{A_START}")
    e("s_mov_b64 exec, -1")
    if GPOS == 0: e(f"buffer_load_dword v{vREF}, v{vTA}, {S(WS)}, 0 offen {RSC}")
    for k in range(4): e(f"v_lshl_or_b32 v{aE+k}, v{aC+k}, 16, v{aST+k}")
    e(f"s_mov_b32 s{sT2}, {A_YM}\ns_waitcnt vmcnt({6 if WBE else 5 + nS + (GPOS == 0)}) lgkmcnt(0)")
    for k in range(3):
        if k == 2: e(f"s_mov_b64 exec, {P(m2)}")
        e(f"""v_add_lshl_u32 v2, v{aB+k}, v{aK+k}, 1
v_add_u32 v3, {2048*k}, v4
ds_write_b16 v2, v3 offset:{A_INV}
v_mad_u32_u24 v2, v2, 6, s{sT2}
ds_write2_b32 v2, v{aR+4*k}, v{aR+4*k+1} offset0:0 offset1:1
ds_write_b32 v2, v{aR+4*k+2} offset:8""")
    e(f"""s_mov_b64 exec, -1
v_lshrrev_b32 v2, 4, v{vP16}
v_and_b32 v2, 0xffe, v2
v_and_b32 v5, 1, v{vL}
v_lshlrev_b32 v5, 4, v5
s_waitcnt lgkmcnt(0)
s_barrier""")
    stamp((1, 1), (3, 2))
    aI = TP + 20
    if GPOS == 1: e(f"buffer_load_dword v{vREF}, v{vTA}, {S(WS)}, 0 offen {RSC}")
    if RPOS == 3: side_a()
    if RPOS >= 3 and BPOS == 1 and not WBE: side_b()
    for k in range(2): e(f"ds_read_b128 {vr(aR+4*k,4)}, v{vY16} offset:{A_YM + 1024*k}")
    for k in range(5): e(f"ds_read_u16 v{aI+k}, v2 offset:{A_INV + 64*k}")
    srd(XS, 36, N * 1024); srd(OS, 52, 0 if NOST else N * 1024)
    common_init()
    if IPOS & 1 and not DLY & 1: lane_helpers()
    if IPOS & 2 and not DLY & 2: epi_addr()
    if RPOS >= 3 and BPOS == 0: side_b()
    srd(SC, 50, C * C * 2)
    e("s_waitcnt lgkmcnt(0)")
    for k in range(5): e(f"v_or_b32 v{aI+k}, v{aI+k}, v5")
    if WBE: build_wb(T0, T0 + 16); build_cg()
    e(f"""s_mul_i32 s{sT2}, s{sKB}, {CHP*12}
s_add_u32 s{sT2}, s{sT2}, {WS_YM}
s_mul_i32 s58, s{sKB}, {CHP*32}
s_add_u32 s59, s58, 4096
s_waitcnt vmcnt({EW if EW >= 0 else 2 if WBE else 3 if RPOS == 5 else 4 if RPOS >= 2 else int(GPOS != 2)})
s_barrier""")
    stamp((4, 2))
    aF = T0
    for k in range(5):
        if k == 4: e(f"s_mov_b64 exec, {P(mE)}")
        e(f"ds_read_b128 {vr(aF+4*k,4)}, v{aI+k} offset:{A_EF}")
    e("s_mov_b64 exec, -1")
    if DLY & 1: lane_helpers()
    if DLY & 2: epi_addr(); e(f"s_mul_i32 s58, s{sKB}, {CHP*32}\ns_add_u32 s59, s58, 4096")
    if EWL >= 0: e(f"s_waitcnt vmcnt({0 if WBE else EWL})")
    e(f"""buffer_store_dwordx4 {vr(aR,4)}, v{vY16}, {S(WS)}, s{sT2} offen {PST}
s_mov_b32 exec_hi, s{mY}
{"s_waitcnt vmcnt(0)" if SCAP == 1 else ""}
buffer_store_dwordx4 {vr(aR+4,4)}, v{vY16}, {S(WS)}, s{sT2} offen offset:1024 {PST}
s_mov_b32 exec_hi, -1""")
    for k in range(5):
        if k == 4: e(f"s_mov_b32 exec_lo, s{mT}\ns_mov_b32 exec_hi, s{mE+1}")
        if SCAP and k + 2 >= SCAP: e(f"s_waitcnt vmcnt({SCAP-1})")
        e(f"s_waitcnt lgkmcnt({4-k})\nbuffer_store_dwordx4 {vr(aF+4*k,4)}, v{vP16}, {S(WS)}, s{58 + k//4} offen offset:{1024*(k%4)} {PST}")
    e("s_mov_b64 exec, -1")
    stamp((5, 2))
    e(f"s_mov_b32 s{sRem}, {SPIN}\ns_mov_b32 s{sFIN}, s{sS0}\ns_mov_b32 s59, 0xc0000000\ns_waitcnt vmcnt(7)")
    for k in range(4):
        e(f"v_and_or_b32 v{aE+k}, v{aO+k}, s59, v{aE+k}\nv_xor_b32 v{vROW+k}, 0x40000000, v{aE+k}\nv_xor_b32 v{aE+k}, 0x80000000, v{aE+k}")
    if not WBE: build_cg()
    if not IPOS & 1 and not PD & 1 and not POLL2 & 2: lane_helpers()
    if not IPOS & 2 and not PD & 2 and not POLL2 & 4: epi_addr()
    e(f"s_lshl_b32 s58, s{sW}, 12\ns_add_u32 m0, s58, {L_WM}\ns_cmp_eq_u32 s{sW}, 7\ns_waitcnt vmcnt(0) lgkmcnt(0)")
    stamp((6, 2))
    e(f"""s_barrier
s_cbranch_scc0 L_nrow2
buffer_store_dwordx4 {vr(aE,4)}, v{vRW}, {S(WS)}, s{sS0} offen sc1
L_nrow2:""")
    if TBAR: e("s_barrier")
    stamp((2, 1))
    def wdma_m():
        for k in range(4): e(f"buffer_load_dwordx4 v{vL16}, {S(SC)}, s58 offen offset:{1024*k} lds")
    if WMD == 0: wdma_m()
    if not WBE: build_wb()
    if WMD == 1: wdma_m()
    if PD & 1: lane_helpers()
    if PD & 2: epi_addr()
    if PD & 4: e("s_waitcnt vmcnt(0)"); build_wm(T0)
    list_fill()
    e(f"v_and_b32 v7, 1, v{vL}")
    poll()
    stamp((1, 3), (2, 8), (3, 1))
    e(f"v_bfe_u32 v{vPE}, v6, 16, 11\nv_and_b32 v5, 0xffff, v6\nv_sub_u32 v2, v{vPE}, v7")
    fill = [[], [f"v_add_u32 v5, v5, v{vCH}"], [], [], []]
    for m, f in zip(DPPS[1:], fill):
        if m is not DPPS[1]:
            for x in f: e(x)
            e(f"s_nop {1 - len(f)}")
        e(f"v_add_u32_dpp v{vPE}, v{vPE}, v{vPE} {m} bank_mask:0xf")
    e(f"""v_sub_u32 v3, v{vPE}, v2
v_min_u32 v4, {CAPW}, v{vPE}
v_lshl_add_u32 v6, v3, 2, s{sLB}
v_sub_u32 v4, v4, v3
v_sub_u32 v{vDL}, v5, v3
v_sub_u32 v{vPS}, v3, v7""")

NEF = (CAPW + 31) // 32
def phase_b():
    e("L_exp:")
    for k in range(UNR):
        e(f"v_cmpx_lt_i32 vcc, {2*k}, v4\nds_write_b32 v6, v5 offset:{8*k}\nv_add_u32 v5, 2, v5")
    e(f"""v_cmpx_lt_i32 vcc, {2*UNR}, v4
s_cbranch_execnz L_exp_more
L_exp_done:
s_mov_b64 exec, -1""")
    for k in (3, 2, 1, 0): e(f"ds_read_b32 v{tI+k}, v{vLY} offset:{256*k}")
    e(f"""v_readlane_b32 s{sCW}, v{vPE}, 63
s_mov_b32 s{sT}, {WS_YM}
s_sub_i32 s{sNT}, s{sCW}, s{sW0}
s_cmp_le_i32 s{sNT}, 192""")
    stamp((2, 3))
    for i, k in enumerate((3, 2, 1, 0)):
        if k == 3: e("s_cbranch_scc1 L_sk3")
        e(f"s_waitcnt lgkmcnt({3-i})\nv_mul_u32_u24 v{tI+k}, 12, v{tI+k}\nbuffer_load_dwordx3 {vr(tY+4*k,3)}, v{tI+k}, {S(WS)}, s{sT} offen sc1")
        if k == 3: e("L_sk3:")
    if YBAR == 2: e("s_barrier")
    for k in range(NEF): e(f"ds_read_b32 v{tI+4+k}, v{vLE} offset:{128*k}")
    e(f"s_max_i32 s{sNT}, s{sNT}, 0\ns_min_i32 s{sNT}, s{sNT}, {CAPW}")
    if YBAR == 1: e("s_barrier")
    assert YBAR == 1
    def ef_dma(k):
        part = k == NEF - 1 and CAPW % 32
        e(f"s_add_u32 m0, s{sEB}, {L_EF + 1024*k}\ns_cmp_le_u32 s{sNT}, {32*(k+1)}")
        if part:
            assert CAPW % 32 > 16
            e(f"s_mov_b32 exec_hi, {hex((1 << (2 * (CAPW % 32) - 32)) - 1)}")
        e(f"buffer_load_dwordx4 v{tI+4+k}, {S(WS)}, 0 offen sc1 lds")
        if part: e("s_mov_b32 exec_hi, -1")
    for k in range(EF1):
        e(f"s_waitcnt lgkmcnt({NEF-1-k})\nv_lshl_or_b32 v{tI+4+k}, v{tI+4+k}, 5, v{vHP}")
        ef_dma(k)
    e("s_waitcnt lgkmcnt(0)")
    for k in range(EF1, NEF): e(f"v_lshl_or_b32 v{tI+4+k}, v{tI+4+k}, 5, v{vHP}")
    for k in range(4):
        e(f"s_sub_i32 s{sT2}, s{sNT}, {64*k}\nv_cmp_gt_i32 {P(mV+2*k)}, s{sT2}, v{vL}")
    e(f"v_mov_b32 v3, s{sCW}\nv_mov_b32 v4, {L_MAXC}\nds_max_u32 v4, v3\nv_mov_b32 v6, 1")
    if TH: e("s_mov_b64 exec, 1\nds_add_u32 v4, v3 offset:4\ns_mov_b64 exec, -1")
    if SLIM: e(f"v_lshrrev_b32 v5, 2, v{vFA}\nv_add_u32 v5, {L_YI}, v5")
    for i, k in enumerate((3, 2, 1, 0)):
        e(f"""s_waitcnt vmcnt({EF1 + 3 - i})
s_mov_b64 exec, {P(mV+2*k)}
v_and_b32 v2, 0x3ff, v{tY+4*k+2}
v_lshlrev_b32 v{tY+4*k+3}, 2, v2
ds_add_rtn_u32 v{tR+k}, v{tY+4*k+3}, v6 offset:{L_HIST}""")
        if SLIM: e(f"ds_write_b64 v5, {vr(tY+4*k,2)} offset:{512*k}")
    e("s_mov_b64 exec, -1")
    if SLIM:
        for k in range(4): e(f"v_lshrrev_b32 v2, 7, v{tY+4*k+2}\nv_add_u32 v3, {2048*k}, v{vFA}\nv_lshl_or_b32 v{tY+4*k+2}, v3, 12, v2")
    e("s_waitcnt lgkmcnt(0)\ns_barrier")
    stamp((3, 3))
    dg = TP + 4
    for j in range(R // 4): e(f"ds_read_b128 {vr(dg+4*j,4)}, v{vN48} offset:{L_HIST + 16*j}")
    e("ds_read_b64 v[4:5], v4" if TH else "ds_read_b32 v4, v4")
    if BP == 0: second_row("a")
    e(f"s_cmp_le_u32 s{sNT}, {32*EF1}")
    for k in range(EF1, NEF):
        e("s_cbranch_scc1 L_efd")
        ef_dma(k)
    e("L_efd:")
    def xpf(pos):
        if XP and XPOS == pos:
            e(f"""s_mov_b32 exec_lo, {hex((1 << min(XP, 32)) - 1)}
s_mov_b32 exec_hi, {hex((1 << max(XP - 32, 0)) - 1)}
buffer_load_dword v{vJUNK}, v{vXA}, {S(XS)}, 0 offen
s_mov_b64 exec, -1""")
    xpf(0)
    e(f"v_cmp_gt_u32 vcc, 40, v{vL}\ns_waitcnt lgkmcnt(0)\nv_readfirstlane_b32 s{sT}, v4")
    if TH: e(f"v_readfirstlane_b32 s{sT2}, v5")
    e(f"v_add_u32 v3, v{dg}, v{dg+1}")
    for j in range(2, R, 2): e(f"v_add3_u32 v3, v3, v{dg+j}, v{dg+j+1}")
    e(f"""v_lshl_or_b32 v3, v3, 6, v{vNODE}
v_cndmask_b32 v3, 0, v3, vcc
s_max_u32 s{sMAXC}, s{sMAXC}, s{sT}
s_cmp_lg_u32 s{sW0}, 0
s_cbranch_scc1 L_havepos""")
    for j in range(5): e(f"v_readlane_b32 s{64+j}, v3, {j}")
    for j in range(5): e(f"v_cmp_lt_u32 {P(70+2*j)}, s{64+j}, v3")
    for j in range(5): e(f"s_bcnt1_i32_b64 s{64+j}, {P(70+2*j)}")
    for j in range(5): e(f"v_readlane_b32 s{70+j}, v{vMAP}, s{64+j}")
    for j in range(5): e(f"v_writelane_b32 v{vPOS}, s{70+j}, {j}")
    e(f"""v_lshlrev_b32 v{vPOS}, 2, v{vPOS}
L_havepos:
s_mov_b64 exec, 31
ds_write_b32 v{vPOS}, v3 offset:{L_ENTRY}
s_mov_b64 exec, -1
v_lshlrev_b32 v4, 2, v{vL}
v_and_b32 v6, 7, v{vL}
v_cmp_gt_u32 s[34:35], s{sW}, v6
s_and_b64 s[34:35], s[34:35], vcc
v_cmp_gt_u32 vcc, {5*R}, v{vL}""")
    if TH:
        e(f"s_cmp_gt_u32 s{sT2}, {TH}\ns_cselect_b32 s{sT}, {4*(R-TS)}, 0")
        if TH2: e(f"s_cmp_gt_u32 s{sT2}, {TH2}\ns_cselect_b32 s{sT}, {4*(R-TS-1)}, s{sT}")
        if TL: e(f"s_cmp_lt_u32 s{sT2}, {TL}\ns_cselect_b32 s{sT}, 4, s{sT}")
        e(f"v_add_u32 v{vR4}, s{sT}, v{vR4}\nv_subrev_u32 v2, {4*R}, v{vR4}\nv_min_u32 v{vR4}, v{vR4}, v2")
    xpf(1)
    e("s_waitcnt lgkmcnt(0)\ns_barrier")
    stamp((4, 3), (1, 7))
    if STAMP == 7: e("s_waitcnt vmcnt(0)")
    stamp((2, 7))
    c0, c1, c2, c3 = T0 + 36, T0 + 37, T0 + 38, T0 + 39
    e(f"""ds_read_b32 v{c3}, v{vEN} offset:{L_ENTRY}
ds_read_b32 v4, v4 offset:{L_ENTRY}
s_waitcnt lgkmcnt(1)
v_and_b32 v{c3}, 63, v{c3}
v_mad_u32_u24 v3, v{c3}, {4*R}, v{vR4}
ds_read_b32 v{c0}, v3 offset:{L_HIST}
s_waitcnt lgkmcnt(1)
v_lshrrev_b32 v4, 6, v4
v_cndmask_b32 v{c2}, 0, v4, s[34:35]
v_mul_u32_u24 v{c3}, {4*TROW}, v{c3}
s_waitcnt lgkmcnt(0)
v_cndmask_b32 v{c0}, 0, v{c0}, vcc
v_mov_b32 v{c1}, v{c0}""")
    scan2(c1, c2, [f"v_readlane_b32 s{sROW+j}, v{c3}, {j}" for j in range(5)] + [f"v_lshlrev_b32 v4, {0 if SLIM else 3}, v{vS}", f"s_min_u32 s{sMAXC}, s{sMAXC}, {32*CH}"])
    e(f"""v_sub_u32 v{c0}, v{c1}, v{c0}
v_readlane_b32 s{sS0}, v{c2}, 63
v_readlane_b32 s{sN}, v{c1}, 63
s_lshl_b32 s{sT}, s{sS0}, {ES}
s_add_u32 s{sT}, s{sT}, {L_SW if SLIM else L_ST}
v_lshl_add_u32 v{c0}, v{c0}, {ES}, s{sT}
v_lshl_or_b32 v{c0}, v{c0}, 10, v4
s_mov_b64 exec, vcc
ds_write_b32 v3, v{c0} offset:{L_TBL}
s_mov_b64 exec, -1
s_min_u32 s{sN}, s{sN}, {8*CAPW}
v_lshl_add_u32 v{vEntA}, v{vQ}, {ES}, s{sT}
v_and_b32 v2, 3, v{vL}
v_bfe_u32 v3, v{vL}, 3, 2
v_lshl_add_u32 v2, v3, 2, v2
v_lshl_add_u32 v{vEfA}, v2, {ES}, s{sT}
s_movk_i32 s{sT2}, {7 if SLIM else 0x3ff}""")
    xpf(2)
    e("s_waitcnt lgkmcnt(0)\ns_barrier")
    stamp((5, 3))
    for k in range(4): e(f"s_mov_b64 exec, {P(mV+2*k)}\nds_read_b32 v{tI+k}, v{tY+4*k+3} offset:{L_TBL}")
    e("s_mov_b64 exec, -1")
    for k in range(0 if SLIM else 4): e(f"v_add_u32 v{tY+4*k+3}, {2048*k}, v{vFA}")
    e("s_waitcnt lgkmcnt(0)")
    for k in range(4):
        e(f"""s_mov_b64 exec, {P(mV+2*k)}
v_bfi_b32 v{tY+4*k+2}, s{sT2}, v{tI+k}, v{tY+4*k+2}
v_lshrrev_b32 v{tI+k}, 10, v{tI+k}
v_lshl_add_u32 v{tI+k}, v{tR+k}, {ES}, v{tI+k}""")
        e(f"ds_write_b32 v{tI+k}, v{tY+4*k+2}" if SLIM else f"ds_write_b128 v{tI+k}, {vr(tY+4*k,4)}")
    e(f"""s_mov_b64 exec, -1
v_cmp_gt_i32 vcc, s{sN}, v{vQ}
v_mov_b32 v4, s{sDUM}
s_waitcnt lgkmcnt(0)
s_barrier""")
    if BP == 2: second_row("c")
    stamp((4, 1), (6, 3), (5, 8))

lane_of = lambda q: 4 * (q % 16) + (q % 64) // 16
ring = lambda q: RING + q % 16
def xload(q, so): return f"buffer_load_dwordx4 {vr(X+4*(q%D),4)}, v{vL16}, {S(XS)}, s{so} offen"
def rd_efa(us):
    for u in us: e(f"s_mov_b64 exec, {P((mU0,mU1)[u])}\nds_read_b128 {vr(EFA+4*u,4)}, v{EFAD} offset:{L_EF}")
    e("s_mov_b64 exec, -1")
def rmfma(buf, j):
    u, par = j // 2, j % 2
    d = T[buf] + 16 * par
    return f"v_mfma_f32_32x32x16_bf16 {vr(d,16)}, {vr(EFA+4*u,4)}, {vr(WB+4*(2*u+par),4)}, {'0' if u == 0 else vr(d,16)}"
BST = 16 << ES; EO = 0 if SLIM else 12
rd_ent = lambda: f"ds_read_b32 v{ENT+3}, v{vEntA}" if SLIM else f"ds_read_b128 {vr(ENT,4)}, v{vEntA}"
def mk_efad(src):
    if SLIM: e(f"v_lshrrev_b32 v{src}, 12, v{src}")
    e(f"v_and_or_b32 v{EFAD}, v{src}, s{sEFM}, v{vH16}")
def mk_meta():
    e(f"v_bfe_u32 v3, v{ENT+3}, 3, 14\nv_and_b32 v{ENT+2}, 7, v{ENT+3}\nv_lshlrev_b32 v{ENT+2}, 3, v{ENT+2}\nv_lshl_or_b32 v{ENT+2}, v3, 10, v{ENT+2}")
def rd_y():
    e(f"v_bfe_u32 v3, v{ENT+3}, 17, 11\nv_lshl_add_u32 v3, v3, 3, s{sYI}\nds_read_b64 {vr(ENT,2)}, v3")
def loop():
    e(f"""{rd_ent()}
ds_read_b32 v{EFAD}, v{vEfA} offset:{EO}
ds_read_b32 v2, v{vEfA} offset:{BST+EO}
s_mov_b32 s{sYI}, {L_YI}
s_waitcnt lgkmcnt({2 if SLIM else 0})""")
    if SLIM: mk_meta()
    e(f"v_cndmask_b32 v{META}, v4, v{ENT+2}, vcc")
    if SLIM: e("s_nop 0")
    else: mk_efad(EFAD)
    for q in range(DIST): e(f"v_readlane_b32 s{ring(q)}, v{META}, {lane_of(q)}")
    def dst():
        e(f"s_lshl_b32 s58, s2, 3\ns_add_u32 s58, s58, s{sW}\ns_lshl_b32 s58, s58, 10\ns_add_u32 s58, s58, 0x1100000\nv_lshlrev_b32 v3, 2, v{vL}")
        if DST & 4: e(f"buffer_store_dwordx4 {vr(ENT,4)}, v{vL16}, {S(WS)}, s58 offen")
        else:
            for k in range(3): e(f"buffer_store_dword v{META}, v3, {S(WS)}, s58 offen offset:{256*k}")
    nD = 0 if not DST & 3 else 1 if DST & 4 else 3
    if DST & 3 == 1: dst()
    for q in range(PRE): e(f"s_and_b32 s{sOFF+q%4}, s{ring(q)}, s{sMASK}\n{xload(q, sOFF+q%4)}")
    if SLIM: e("s_waitcnt lgkmcnt(0)"); mk_efad(EFAD); rd_y()
    if DST & 3 == 2: dst()
    e(f"s_waitcnt vmcnt({PRE + (1 if XP else 0) + (nD if DST & 3 in (1, 2) else 0)})\ns_barrier")
    if DST & 3 == 3: dst()
    if BP == 1: second_row("b")
    stamp((5, 1), (5, 5))
    if STAMP: e("s_memtime s[60:61]")
    rd_efa((0, 1))
    mk_efad(2)
    for q in range(PRE, 4): e(f"s_and_b32 s{sOFF+q%4}, s{ring(q)}, s{sMASK}\n{xload(q, sOFF+q%4)}")
    e("s_waitcnt lgkmcnt(0)")
    for j in range(4): e(rmfma(0, j))
    def rest_loads():
        for q in range(max(PRE, 4), DIST): e(f"s_and_b32 s{sOFF+q%4}, s{ring(q)}, s{sMASK}\n{xload(q, sOFF+q%4)}")
    if not WMP: rest_loads()
    else: e("s_nop 7")
    rd_efa((0,))
    if not PD & 4:
        e(f"s_cmp_lg_u32 s{sW0}, 0\ns_cbranch_scc1 L_wdone")
        build_wm()
    e(f"L_wdone:\ns_mov_b32 s{sYI}, {L_YI}")
    if WMP: rest_loads()
    e(f"s_mov_b32 s{sRem}, s{sN}\ns_waitcnt lgkmcnt(0)")
    if AL >= 0:
        e("s_branch L_sb\n.p2align 6")
        for _ in range(AL): e("s_nop 0")
    e("L_sb:")
    if STAMP == 5: e("s_mov_b32 s86, s88\ns_mov_b32 s88, s90\ns_memrealtime s[90:91]")
    for i in range(4): e(f"v_mfma_f32_4x4x4_16b_bf16 {vr(TP+4*i,4)}, {vr(ENT,2)}, {vr(CG+2*i,2)}, 0")
    e(f"v_add_u32 v{vEntA}, {4*BST}, v{vEntA}\ns_sub_u32 s{sT}, s{sRem}, 64\nv_cmp_gt_i32 s[34:35], s{sT}, v{vQ}\ns_cmp_le_i32 s{sRem}, 0\ns_nop 0")
    for r in range(4):
        e(f"v_cvt_pk_bf16_f32 v{AE+2*r}, v{TP+r}, v{TP+4+r}\nv_cvt_pk_bf16_f32 v{AE+2*r+1}, v{TP+8+r}, v{TP+12+r}")
    e(f"{rd_ent()}\nds_read_b32 v{vCNT}, v{vCA}")
    for q in range(0, 64, 4):
        b, p = q // 16, (q % 16) // 4
        cur = b % 2
        te, to = T[cur] + q % 16, T[cur] + 16 + q % 16
        e(f"; ---- edges {q}..{q+3}")
        mf = lambda d, x, qq: f"v_mfma_f32_4x4x4_16b_bf16 {vr(d,4)}, {vr(AE+2*b,2)}, {vr(x,2)}, 0 cbsz:4 abid:{qq%16}"
        e("s_cbranch_scc1 L_exit")
        if STAMP == 5 and q == SQ: e(f"s_cmp_eq_u32 s{sRem}, s{sN}\ns_cbranch_scc0 L_nst\ns_memrealtime s[92:93]\nL_nst:")
        if PRIO == 2 and p == 0: e(f"s_setprio {3-b}")
        lp = LP.split(","); ps = PS.split(",")
        def at(tag):
            if PRIO == 3 and tag in ps: e(f"s_setprio {3 - ((q // 4) * len(ps) + ps.index(tag)) % 4}")
            for j, t in enumerate(lp):
                if t == tag and SA == 2: e(f"s_and_b32 s{sOFF+j}, s{ring(q+DIST+j)}, s{sMASK}")
            for j, t in enumerate(lp):
                if t == tag:
                    if SA == 1: e(f"s_and_b32 s{sOFF+j}, s{ring(q+DIST+j)}, s{sMASK}")
                    e(xload(q + DIST + j, sOFF + j))
        at("Q")
        if PRIO == 5: e(f"s_setprio {1 - p % 2}")
        if PRIO == 4 and p % 2 == 0: e(f"s_setprio {3 - (q // 8) % 4}")
        if q + DIST == 64: e(f"v_cndmask_b32 v{META}, v4, v{ENT+2}, s[34:35]")
        RL = [f"v_readlane_b32 s{ring(q+DIST+j)}, v{META}, {lane_of(q+DIST+j)}" for j in range(4)]
        EX = [f"v_exp_f32 v{TMP+j}, v{te+j}" for j in range(4)] + [f"v_exp_f32 v{TMP+4+j}, v{to+j}" for j in range(4)]
        AD = [f"v_pk_fma_f32 {vr(TMP+2*j,2)}, {vr(TMP+2*j,2)}, {P(sK)}, {P(sK)}" for j in range(4)]
        RC = [f"v_rcp_f32 v{TMP+j}, v{TMP+j}" for j in range(8)]
        MF = []
        for j in range(4):
            x = X + 4 * ((q + j) % D)
            MF += [mf(TP+8*j, x, q+j), mf(TP+8*j+4, x+2, q+j)]
        if SCH in (2, 3, 4):
            assert SA and not SLIM
            if SCH == 4:
                e(EX[0]); e(rmfma(1 - cur, p))
                for x in EX[1:]: e(x)
            else:
                e(rmfma(1 - cur, p))
                for x in EX: e(x)
            if SCH == 3:
                for x in RL[:3]: e(x)
            for x in AD: e(x)
            at("W")
            e(f"s_waitcnt vmcnt({DIST-(2 if W2 else 4)})")
            for j in range(8):
                if W2 and j == 4: e(f"s_waitcnt vmcnt({DIST-4})")
                e(MF[j]); e(RC[j])
            for x in (RL[3:] if SCH == 3 else RL): e(x)
            if p == 2: mk_efad(2)
            at("R7")
        if SCH == 1:
            e(f"s_waitcnt vmcnt({DIST-(2 if W2 else 4)})")
            for j in range(4):
                x = X + 4 * ((q + j) % D)
                if W2 and j == 2: e(f"s_waitcnt vmcnt({DIST-4})")
                e(f"""{mf(TP+8*j, x, q+j)}
v_exp_f32 v{TMP+j}, v{te+j}
{mf(TP+8*j+4, x+2, q+j)}
v_exp_f32 v{TMP+4+j}, v{to+j}""")
            at("E")
            for j in range(4): e(f"v_readlane_b32 s{ring(q+DIST+j)}, v{META}, {lane_of(q+DIST+j)}")
            if p == 2: mk_efad(2)
            if SLIM and q == 16: mk_meta(); rd_y()
            for j in range(4):
                if SA == 0: e(f"s_and_b32 s{sOFF+j}, s{ring(q+DIST+j)}, s{sMASK}")
                e(f"v_pk_fma_f32 {vr(TMP+2*j,2)}, {vr(TMP+2*j,2)}, {P(sK)}, {P(sK)}")
                at(f"A{j}")
            e(rmfma(1 - cur, p))
            for j in range(8):
                e(f"v_rcp_f32 v{TMP+j}, v{TMP+j}")
                at(f"R{j}")
        def side():
            if q < 60: e(f"s_cmp_le_i32 s{sRem}, {q+4}")
            if p == 0: rd_efa((1,)); e(f"ds_read_b32 v2, v{vEfA} offset:{BST*(b+2)+EO}")
            if p == 2: rd_efa((0,))
            if p in (1, 3): e("s_waitcnt lgkmcnt(0)")
        if SP == 'R': side()
        for j in range(2): e(f"v_pk_mul_f32 {vr(TMP+2*j,2)}, {vr(TMP+2*j,2)}, {vr(te+2*j,2)}")
        for j in range(2): e(f"v_pk_mul_f32 {vr(TMP+4+2*j,2)}, {vr(TMP+4+2*j,2)}, {vr(to+2*j,2)}")
        for s in range(4):
            at(f"F{s}")
            e(f"s_set_gpr_idx_on s{ring(q+s)}, gpr_idx(SRC2,DST)" if s == 0 else f"s_set_gpr_idx_idx s{ring(q+s)}")
            for j in range(4):
                e(f"v_pk_fma_f32 {vr(ACC+2*j,2)}, {vr(TMP+4*(j//2)+2*(s//2),2)}, {vr(TP+8*s+2*j,2)}, {vr(ACC+2*j,2)} op_sel:[{s%2},0,0] op_sel_hi:[{s%2},1,1]")
        e("s_set_gpr_idx_off")
        at("F4")
        if SP == 'F': side()
    e(f"""v_add_u32 v{vEfA}, {4*BST}, v{vEfA}
s_sub_u32 s{sRem}, s{sRem}, 64
s_branch L_sb
L_exit:""")
    if PRIO: e("s_setprio 0")
    stamp((6, 1), (6, 5), (1, 6), (6, 8))
    if STAMP: e("s_memtime s[62:63]")
    e(f"""s_add_u32 s{sW0}, s{sW0}, {CAPW}
s_cmp_lt_u32 s{sW0}, s{sMAXC}
s_cbranch_scc0 L_epi
s_waitcnt vmcnt(0) lgkmcnt(0)
v_lshlrev_b32 v7, 3, v0
v_mov_b32 v2, 0
v_mov_b32 v3, 0
ds_write_b64 v7, v[2:3]
s_nop 15""")
    lane_helpers()
    list_fill()
    e(f"""s_waitcnt lgkmcnt(0)
s_barrier
v_and_b32 v2, 1, v0
v_max_u32 v3, s{sW0}, v{vPS}
v_add_u32 v3, v3, v2
s_add_u32 s{sT2}, s{sW0}, {CAPW}
v_min_u32 v4, s{sT2}, v{vPE}
v_add_u32 v5, v{vDL}, v3
s_lshl_b32 s{sT2}, s{sW0}, 2
s_sub_u32 s{sT2}, s{sLB}, s{sT2}
v_lshl_add_u32 v6, v3, 2, s{sT2}
v_sub_u32 v4, v4, v3
s_branch L_exp
L_exp_more:
v_add_u32 v6, {8*UNR}, v6
v_subrev_u32 v4, {2*UNR}, v4
s_branch L_exp
L_epi:""")

def epilogue():
    FB = EFA; FD = ACC; FO = TP + 16
    FA = lambda t: T0 + 16 * t
    assert CG + 8 == EFA + 32 and TP == T0 + 64
    def rdB():
        for ks in range(4):
            for par in range(2): e(f"ds_read_b128 {vr(FB+16*par+4*ks,4)}, v{vBA} offset:{8192*ks + 256*par}")
    if not EP: e(f"s_waitcnt lgkmcnt(0)\nv_readfirstlane_b32 s38, v{vCNT}")
    e(f"v_lshlrev_b32 v5, 2, v{vL}")
    for s in range(5):
        e(f"v_add_u32 v3, s{sROW+s}, v5")
        for o in range(4): e(f"v_cvt_pk_bf16_f32 v{ACC+8*s+o}, v{ACC+8*s+o}, v{ACC+8*s+4+o}")
        for o in range(0, 4, 2): e(f"ds_write2_b32 v3, v{ACC+8*s+o}, v{ACC+8*s+o+1} offset0:{o*TROW//4} offset1:{(o+1)*TROW//4}")
    if EP: e(f"s_waitcnt lgkmcnt(10)\nv_readfirstlane_b32 s38, v{vCNT}")
    e("s_cmp_eq_u32 s38, 8\ns_cbranch_scc0 L_nob")
    rdB()
    e("s_waitcnt lgkmcnt(8)")
    stamp((2, 6))
    e("s_barrier\ns_branch L_haveb\nL_nob:\ns_waitcnt lgkmcnt(0)\ns_barrier")
    rdB()
    e("L_haveb:")
    stamp((3, 6))
    def rdA(t):
        for ks in range(4): e(f"ds_read_b128 {vr(FA(t)+4*ks,4)}, v{vAA} offset:{L_TILE + t*16*TROW + 64*ks}")
    def fin(t):
        d = FD + 8 * t; o = FO + 4 * (t % 4)
        for j in range(4): e(f"v_cvt_pk_bf16_f32 v{o+j}, v{d+2*j}, v{d+2*j+1}")
        e(f"buffer_store_dwordx4 {vr(o,4)}, v{vOA}, {S(OS)}, 0 offen {OUTST}")
        if t < 4: e(f"v_add_u32 v{vOA}, {4*256*1024}, v{vOA}")
    def rd1(i): e(f"ds_read_b128 {vr(FA(i//4)+4*(i%4),4)}, v{vAA} offset:{L_TILE + (i//4)*16*TROW + 64*(i%4)}")
    if EG:
        for i in range(EG): rd1(i)
        issued = EG
        for t in range(5):
            d = FD + 8 * t
            for ks in range(4):
                e(f"s_waitcnt lgkmcnt({issued - 4*t - ks - 1})")
                for par in range(2):
                    e(f"v_mfma_f32_16x16x32_bf16 {vr(d+4*par,4)}, {vr(FA(t)+4*ks,4)}, {vr(FB+16*par+4*ks,4)}, {'0' if ks == 0 else vr(d+4*par,4)}")
                    if par == 0 and issued < 20: rd1(issued); issued += 1
                if ks == (1 if 4*t + 1 + EG < 20 else 2) and t >= 1: fin(t - 1)
    else:
        rdA(0); rdA(1); rdA(2)
        issued = 12
        for t in range(5):
            d = FD + 8 * t
            for ks in range(4):
                e(f"s_waitcnt lgkmcnt({issued - 4*t - ks - 1})")
                for par in range(2):
                    e(f"v_mfma_f32_16x16x32_bf16 {vr(d+4*par,4)}, {vr(FA(t)+4*ks,4)}, {vr(FB+16*par+4*ks,4)}, {'0' if ks == 0 else vr(d+4*par,4)}")
                if ks == 0 and t + 3 < 5: rdA(t + 3); issued += 4
                if ks == 2 and t >= 1: fin(t - 1)
    e("s_nop 7")
    fin(4)
    stamp((4, 6))
    if BP == 3: e(f"s_mov_b32 s{sW0}, 0"); second_row("d")
    if STAMP:
        e("s_waitcnt vmcnt(0)"); stamp((7, 0))
        e(f"""s_lshl_b32 s34, s2, 3
s_add_u32 s34, s34, s{sW}
s_add_u32 s34, s34, 4096
s_getreg_b32 s59, hwreg(HW_REG_HW_ID)
s_getreg_b32 s58, hwreg(HW_REG_XCC_ID)
s_mov_b64 exec, 1
s_lshl_b32 s34, s34, 6
s_add_u32 s34, s34, {WS_STAMP}
v_mov_b32 v2, 0""")
        for i, r in enumerate([84 + 2*i for i in range(8)] + [60, 62, sN, 59, 58]):
            e(f"v_mov_b32 v3, s{r}\nbuffer_store_dword v3, v2, {S(WS)}, s34 offen offset:{4*i}")
    e("L_end:\ns_endpgm")

ref = open("standalone__tensor_product_equiv_tfn__graph.s.ref").read().splitlines()
for l in ref:
    if l.startswith("; Override"): break
    out.append(l)
out.append("; Generated by gen/gen2.py " + " ".join(sys.argv[2:]))
out.append(f"; @launch grid=(256,1,1) block=(512,1,1) lds={M_LDS}")
e('.amdgcn_target "amdgcn-amd-amdhsa--gfx950"\n.text')
phase_a(); phase_b(); loop(); epilogue()
e(f""".section .rodata,"a"
.p2align 6
.amdhsa_kernel {KNAME}
.amdhsa_next_free_vgpr {NV}
.amdhsa_next_free_sgpr 100
.amdhsa_accum_offset {(NV+3)//4*4}
.amdhsa_group_segment_fixed_size 0
.amdhsa_kernarg_size 88
.amdhsa_user_sgpr_count 2
.amdhsa_user_sgpr_kernarg_segment_ptr 1
.amdhsa_system_sgpr_workgroup_id_x 1
.amdhsa_float_denorm_mode_32 3
.end_amdhsa_kernel""")
if NOLOAD or NOV:
    i0 = out.index("L_sb:"); i1 = out.index("L_exit:")
    rm = tuple((["buffer_load"] if NOLOAD else []) + (NOV.split(",") if NOV else []))
    out[i0:i1] = [l for l in out[i0:i1] if not l.strip().startswith(rm)]
if E64:
    i0 = out.index("L_sb:"); i1 = out.index("L_exit:")
    for i in range(i0, i1):
        l = out[i].strip()
        if (E64 & 1) and l.startswith("v_exp_f32"): out[i] = out[i].replace("v_exp_f32", "v_exp_f32_e64")
        if (E64 & 2) and l.startswith("v_rcp_f32"): out[i] = out[i].replace("v_rcp_f32", "v_rcp_f32_e64")
text = "\n".join(out) + "\n"
errs = hazard.check(text) + hazard.check_waits(text)
for x in errs: print("HAZARD", x)
open(sys.argv[1], "w").write(text)
print(f"wrote {sys.argv[1]}: NV={NV} LDS={M_LDS} hazards={len(errs)}")
```

```python
import sys, struct, math
sys.path.insert(0, "gen")
import hazard

OPT = dict(STAMP=0, SQ=16, SLOWT=0, NOLOAD=0, NOV="", R=12, EF1=2, PRE=4, YBAR=1, ROT=2, CPF=3, EARLY=0, UNR=6,
           OUTST="sc1", PRIO=3, XP=12, TBAR=1, RPOS=4, RTCH=0, GPOS=1, EW=-1, CPOS=2, SCAP=0, AL=-1, E64=0, BPOS=1, IPOS=3, SPR=1, NF=1, W1=384, PST='sc1', INT='', DLY=0, EWL=2, XPOS=2, WMP=0, TR=288, NOST=0, RSC='sc1', SLIM=0, WBE=0, PD=0, WMD=0, W2=0, LP='F4,F4,F4,F4', PS='Q', SA=2, SCH=2, SP='F', POLL2=0, DST=0, TLB=0, EFF=0, TH=1250, TS=1, TH2=0, TL=0, INS='', EG=4, EP=1, BP=0, XSC='', PSC='sc1', DEF=0, RG='7,3', RSTEP=1250, XL=0, XG=0, XGP=0, XOFF=0, WL=0)
for a in sys.argv[2:]:
    k, v = a.split("=")
    assert k in OPT, k
    OPT[k] = int(v) if v.lstrip("-").isdigit() else v.replace("+", " ")
globals().update(OPT)

KNAME = "standalone__tensor_product_equiv_tfn__graph_kernel"
N, E, C = 10000, 320000, 128
CH = 1250; CHP = 1280
WS_EF = 0; WS_YM = 256 * CHP * 32; WS_TBL = WS_YM + 256 * CHP * 12
WS_STAMP = 0x1000000
WS_SIZE = 0x1000000 + (0x100000 if STAMP else 0) + (0x400000 if DST else 0)
assert WS_TBL + 256 * 1024 <= WS_STAMP
def f32(x): return "0x%08x" % struct.unpack("<I", struct.pack("<f", x))[0]
LOG2E = math.log2(math.e); LN2 = math.log(2.0)
RMUL, RSH = {4: (6711, 24), 8: (6711, 23), 12: (5033, 22)}[R]
assert (9999 * RMUL) >> RSH == R - 1
SPIN = 400000
OOB = 0x00ffffff

CAPW = 216; TROW = TR
L_HIST = 0; L_MAXC = 2048; A_HIST = 3072; L_ENTRY = 4096; L_TBL = 4608; L_CG = 6656
L_LIST = 8192; L_WR = 16384
L_TILE = 0
L_EF = 160 * TROW; L_ST = L_EF + 8 * CAPW * 32; L_WM = L_ST + 8 * CAPW * 16; L_CNT = L_WM + 32768
M_LDS = L_CNT + 16
L_YI = L_ST; L_SW = L_ST + 8 * CAPW * 8
ES = 2 if SLIM else 4
A_YM = L_EF; A_EF = A_YM + CHP * 12; A_INV = L_LIST; A_START = L_LIST + 2560
assert M_LDS <= 163840 and A_EF < 65536 and A_EF + CHP * 32 <= L_WM and 40 * R * 4 <= 2048 and 5 * R <= 64 and R % 4 == 0

D = 8; DIST = 8
ACC = 8; X = 48; T0 = 80; T = [T0, T0 + 32]; TP = T0 + 64; TMP = TP + 32; AE = TMP + 8; EFA = AE + 8; WB = EFA + 8
CG = WB + 16; ENT = CG + 8; META = ENT + 4; EFAD = META + 1
vEntA = EFAD + 1; vEfA = vEntA + 1; vL16 = vEfA + 1; vH16 = vL16 + 1; vQ = vH16 + 1
vPS = vQ + 1; vPE = vPS + 1; vDL = vPE + 1; vPOS = vDL + 1; vJUNK = vPOS + 1; vBA = vJUNK + 1; vAA = vBA + 1; vOA = vAA + 1; vCNT = vOA + 1; vCA = vCNT + 1; vRW = vCA + 1; vROW = vRW + 1; NV = vROW + 4
assert vROW % 2 == 0
vL = 1
assert NV <= 256
XS, WS, OS = 4, 8, 12
sW, sKB, sN, sCW, sW0, sMAXC, sT, sT2, sNT, sS0, sRem = 16, 17, 18, 19, 24, 25, 26, 27, 28, 29, 30
mU0, mU1 = 20, 22
sMASK, sDUM, sEFM = 31, 32, 33
mV = 36
DG = 44
sROW = 48
sFIN = 53
sYI = 59
sEW = 54
sK = 56
RING = 64; sOFF = 80
DUMMY = (N * 1024) | 40
MAP39 = [0, 5, 6, 3, 0, 7, 2, 4, 1, 0, 2, 7, 1, 0, 6, 3, 5, 4, 1, 7, 4, 6, 3, 2, 5, 4, 5, 7, 2, 1, 3, 6, 4, 1, 3, 2, 6, 7, 5, 0]
MAP40 = [7, 0, 5, 2, 4, 3, 1, 6, 4, 1, 6, 3, 7, 2, 0, 5, 5, 6, 3, 0, 7, 1, 2, 4, 2, 5, 3, 1, 4, 6, 0, 7, 6, 1, 4, 3, 2, 0, 5, 7]
def posmap(m):
    c = [0] * 8; o = []
    for w in m: o.append(c[w] * 8 + w); c[w] += 1
    assert sorted(o) == list(range(40))
    return o

out = []
def e(s=""):
    for l in s.split("\n"):
        l = l.strip()
        if not l: continue
        out.append(l if l.endswith(":") or l.startswith((".", ";")) else "    " + l)
def vr(a, n): return f"v[{a}:{a+n-1}]" if n > 1 else f"v{a}"
def S(a): return f"s[{a}:{a+3}]"
def P(a): return f"s[{a}:{a+1}]"
def srd(d, base, nbytes):
    e(f"s_mov_b32 s{d}, s{base}\ns_mov_b32 s{d+1}, s{base+1}\ns_mov_b32 s{d+2}, {nbytes}\ns_mov_b32 s{d+3}, 0x00020000")
DPPS = ("row_shr:1 row_mask:0xf", "row_shr:2 row_mask:0xf", "row_shr:4 row_mask:0xf", "row_shr:8 row_mask:0xf",
        "row_bcast:15 row_mask:0xa", "row_bcast:31 row_mask:0xc")
def scan(v, fill=()):
    fill = list(fill)
    for m in DPPS:
        k = 0
        while k < 2 and fill: e(fill.pop(0)); k += 1
        if k < 2: e(f"s_nop {1-k}")
        e(f"v_add_u32_dpp v{v}, v{v}, v{v} {m} bank_mask:0xf")
    for x in fill: e(x)
def scan2(v1, v2, fill=()):
    fill = list(fill)
    e(fill.pop(0) if fill else "s_nop 0")
    for m in DPPS:
        e(fill.pop(0) if fill else "s_nop 0")
        e(f"v_add_u32_dpp v{v1}, v{v1}, v{v1} {m} bank_mask:0xf\nv_add_u32_dpp v{v2}, v{v2}, v{v2} {m} bank_mask:0xf")
    for x in fill: e(x)
def stamp(*specs):
    for i, st in specs:
        if STAMP and (st == STAMP or st == 0):
            e(f"s_memrealtime s[{84+2*i}:{85+2*i}]")
            if (i, st) not in ((1, 2), (2, 2), (3, 2), (5, 2), (6, 8)): e("s_waitcnt lgkmcnt(0)")

tY = T0
tI = T0 + 16
tR = T0 + 28
vMAP, vNODE, vR4, vS, vXA = T0 + 32, T0 + 33, T0 + 34, T0 + 35, T0 + 40
vLY, vLE, vHP, vCH, vN48, vEN, vFA = T0 + 41, T0 + 42, T0 + 43, T0 + 44, T0 + 45, T0 + 46, T0 + 47
sLB, sEB = 81, 80
vREF, vTA, vP2 = X + 11, X + 10, X + 4

def lane_helpers():
    e(f"""s_mul_i32 s{sT}, s{sW}, 5
v_add_u32 v{vNODE}, s{sT}, v{vL}
v_subrev_u32 v3, 40, v{vNODE}
v_min_u32 v{vNODE}, v{vNODE}, v3
v_mul_u32_u24 v3, 205, v{vL}
v_lshrrev_b32 v3, 10, v3
v_mul_u32_u24 v2, 5, v3
v_sub_u32 v{vS}, v{vL}, v2""")
    if ROT == 1:
        e(f"""s_lshr_b32 s{sT}, s{sKB}, 5
s_mul_i32 s{sT}, s{sT}, {R}
s_lshr_b32 s{sT}, s{sT}, 3
v_add_u32 v3, s{sT}, v3
v_subrev_u32 v2, {R}, v3
v_min_u32 v3, v3, v2""")
    e(f"""v_lshlrev_b32 v{vR4}, 2, v3
s_lshl_b32 s{sLB}, s{sW}, 10
s_add_u32 s{sLB}, s{sLB}, {L_LIST}
s_mul_i32 s{sEB}, s{sW}, {CAPW*32}
v_lshl_add_u32 v{vLY}, v{vL}, 2, s{sLB}
v_lshrrev_b32 v3, 1, v{vL}
v_lshl_add_u32 v{vLE}, v3, 2, s{sLB}
v_and_b32 v2, 1, v{vL}
v_lshlrev_b32 v{vHP}, 4, v2
v_lshrrev_b32 v3, 1, v0
v_mul_u32_u24 v3, {CHP}, v3
v_add_u32 v{vCH}, v3, v2
v_mul_u32_u24 v{vN48}, {4*R}, v{vNODE}
s_lshl_b32 s{sT}, s{sW}, 2
v_lshl_add_u32 v{vEN}, v{vS}, 5, s{sT}
v_lshl_add_u32 v{vFA}, v{vL}, 5, s{sEB}
s_cmp_eq_u32 s{sW}, 7
s_cselect_b32 s{sEW}, 0, 1""")
    if XP:
        assert ROT == 2
        e(f"""s_lshr_b32 s{sT}, s{sKB}, 5
s_mul_i32 s{sT}, s{sT}, {1250 - 32}
s_add_u32 s{sT}, s{sT}, s{sKB}
s_lshl3_add_u32 s{sT}, s{sT}, s{sW}
s_lshl_b32 s{sT}, s{sT}, 7
v_lshl_add_u32 v{vXA}, v{vL}, 15, s{sT}""")
        if XOFF: e(f"v_subrev_u32 v{vXA}, {XOFF*1024}, v{vXA}\nv_add_u32 v2, {N*1024}, v{vXA}\nv_min_u32 v{vXA}, v{vXA}, v2")

def list_fill():
    for i in range(4): e(f"v_mov_b32 v{tY+i}, {hex(OOB)}")
    e(f"v_add_u32 v2, s{sLB}, v{vL16}\nds_write_b128 v2, {vr(tY,4)}")

def common_init():
    e(f"""s_mov_b32 s{mU0}, 0x0f0f0f0f
s_mov_b32 s{mU0+1}, 0x0f0f0f0f
s_mov_b32 s{mU1}, 0xf0f0f0f0
s_mov_b32 s{mU1+1}, 0xf0f0f0f0
s_mov_b32 s{sMASK}, 0xfffffc00
s_mov_b32 s{sDUM}, {hex(DUMMY)}
s_mov_b32 s{sEFM}, 0xffe0
s_mov_b32 s{sW0}, 0
s_mov_b32 s{sMAXC}, 0""")
    for i in range(40): e(f"v_mov_b32 v{ACC+i}, 0")
    for i in range(8): e(f"v_mov_b32 v{EFA+i}, 0")
    e(f"v_mov_b32 v{vMAP}, 0\nv_mov_b32 v{vPOS}, 0\ns_cmp_lt_u32 s{2 if SPR else sKB}, {N - 39*256}\ns_cbranch_scc1 L_map40")
    for r, p in enumerate(posmap(MAP39)): e(f"v_writelane_b32 v{vMAP}, {p}, {r}")
    e("s_branch L_mapd\nL_map40:")
    for r, p in enumerate(posmap(MAP40)): e(f"v_writelane_b32 v{vMAP}, {p}, {r}")
    e("L_mapd:")
    e(f"""v_and_b32 v2, 3, v{vL}
v_lshrrev_b32 v3, 2, v{vL}
v_lshl_add_u32 v{vQ}, v2, 4, v3
v_lshrrev_b32 v2, 5, v{vL}
v_lshlrev_b32 v{vH16}, 4, v2""")

def epi_addr():
    e(f"""s_and_b32 s{sT}, s{sW}, 3
s_lshl_b32 s58, s{sT}, 9
s_add_u32 s58, s58, {L_WM}
v_lshrrev_b32 v3, 4, v{vL}
v_mul_u32_u24 v2, {2048 - 256}, v3
v_add3_u32 v{vBA}, v2, s58, v{vL16}
s_lshr_b32 s58, s{sW}, 2
v_and_b32 v2, 15, v{vL}
v_mul_u32_u24 v{vAA}, {TROW}, v2
v_lshl_add_u32 v{vAA}, v3, 4, v{vAA}
s_mul_i32 s59, s58, {80*TROW}
v_add_u32 v{vAA}, s59, v{vAA}
v_lshlrev_b32 v{vOA}, 18, v3
v_lshl_add_u32 v{vOA}, v2, 4, v{vOA}
s_mul_i32 s58, s58, {20*256*1024}
s_lshl_b32 s59, s{2 if SPR else sKB}, 10
s_add_u32 s58, s58, s59
s_lshl_b32 s59, s{sT}, 8
s_add_u32 s58, s58, s59
v_add_u32 v{vOA}, s58, v{vOA}
v_mov_b32 v{vCA}, {L_CNT}""")

def build_cg():
    e(f"""v_and_b32 v2, 0x30, v{vL}
v_and_b32 v3, 3, v{vL}
v_lshl_add_u32 v2, v3, 2, v2
v_bfe_u32 v7, v{vL}, 2, 2
v_add_lshl_u32 v2, v2, v7, 1
ds_write_b16 v2, v{X+9} offset:{L_CG}
v_lshlrev_b32 v3, 3, v3""")
    for k in range(4): e(f"ds_read_b64 {vr(CG+2*k,2)}, v3 offset:{L_CG + 32*k}")

def build_wm(fM=T0 + 32):
    wM = TP + 16
    e(f"""v_lshrrev_b32 v7, 5, v0
v_and_b32 v3, 31, v{vL}
v_lshlrev_b32 v7, 11, v7
v_add_u32 v7, {L_WM}, v7
v_lshl_add_u32 v2, v3, 3, v7""")
    for m in range(8): e(f"ds_read_b64 {vr(wM+2*m,2)}, v2 offset:{256*m}")
    e(f"""s_mov_b32 s58, 0x05040100
s_mov_b32 s59, 0x07060302
v_bfe_u32 v3, v0, 3, 2
v_lshl_add_u32 v7, v3, 9, v7
v_and_b32 v3, 7, v0
v_lshl_add_u32 v7, v3, 5, v7
v_mov_b32 v5, {L_CNT}
v_mov_b32 v6, 1
s_waitcnt lgkmcnt(0)""")
    for q in range(4):
        for mp in range(4):
            e(f"v_perm_b32 v{fM+4*q+mp}, v{wM+2*(2*mp+1)+q//2}, v{wM+2*(2*mp)+q//2}, s{58 + q%2}")
        e(f"ds_write_b128 v7, {vr(fM+4*q,4)} offset:{256*(q%2) + 16*(q//2)}")
    e("s_mov_b64 exec, 1\nds_add_u32 v5, v6\ns_mov_b64 exec, -1")

def build_wb(wR=TP, t2=TP + 16):
    e(f"""v_and_b32 v3, 31, v{vL}
v_lshlrev_b32 v2, 7, v{vH16}
v_lshl_add_u32 v2, v3, 2, v2
v_add_u32 v3, 128, v2""")
    for u in range(2):
        for m in range(0, 8, 2): e(f"ds_read2st64_b32 {vr(wR+8*u+m,2)}, v{2+u} offset0:{L_WR//256 + m} offset1:{L_WR//256 + m + 1}")
    e(f"s_mov_b32 s{sK}, {f32(-LOG2E)}\ns_mov_b32 s{sK+1}, {f32(-LOG2E)}")
    for u in range(2):
        for mp in range(4):
            a0, a1 = wR + 8*u + 2*mp, wR + 8*u + 2*mp + 1
            e(f"""s_waitcnt lgkmcnt({7 - 4*u - mp})
v_lshlrev_b32 v{t2}, 16, v{a0}
v_lshlrev_b32 v{t2+1}, 16, v{a1}
v_and_b32 v{t2+2}, 0xffff0000, v{a0}
v_and_b32 v{t2+3}, 0xffff0000, v{a1}
v_pk_mul_f32 {vr(t2,2)}, {vr(t2,2)}, {P(sK)}
v_pk_mul_f32 {vr(t2+2,2)}, {vr(t2+2,2)}, {P(sK)}
v_cvt_pk_bf16_f32 v{WB+4*(2*u)+mp}, v{t2}, v{t2+1}
v_cvt_pk_bf16_f32 v{WB+4*(2*u+1)+mp}, v{t2+2}, v{t2+3}""")

def poll():
    e(f"""L_pa:
buffer_load_dword v6, v{vTA}, {S(WS)}, 0 offen sc1
s_waitcnt vmcnt(0)
v_xor_b32 v{TP}, v6, v{vREF}
v_cmpx_gt_u32 vcc, 0x40000000, v{TP}
s_cbranch_execz L_pda
s_sub_u32 s{sRem}, s{sRem}, 1
s_cbranch_scc0 L_pa
s_endpgm
L_pda:
s_mov_b64 exec, -1""")

def second_row(tag):
    e(f"""s_cmp_eq_u32 s{sW0}, s{sEW}
s_cbranch_scc0 L_no2
buffer_store_dwordx4 {vr(vROW,4)}, v{vRW}, {S(WS)}, s{sFIN} offen sc1
L_no2:""")

def phase_a():
    SA, SB, SC, SD = 64, 68, 72, 76
    m2, mE = 60, 62; mT = 34; mY = 35
    aD, aS = TP, TP + 3
    aR = TP + 8
    aK, aB = TP + 20, TP + 23
    aC, aST = TP + 28, X
    aE, aO, aE1 = X + 12, X + 16, X + 20
    vE4, vE8, vY16, vP16 = X + 5, X + 6, X + 7, X + 8
    e(f""".globl {KNAME}
.p2align 8
.type {KNAME},@function
{KNAME}:
s_cmp_ge_u32 s2, 256
s_cbranch_scc1 L_end""")
    if STAMP: e("s_memrealtime s[84:85]")
    if SLOWT:
        e(f"s_and_b32 s58, s2, 15\ns_cmp_eq_u32 s58, {SLOWT-1}\ns_cbranch_scc0 L_slt\ns_sleep 127\ns_sleep 127\ns_lshr_b32 s58, s2, 7\ns_cbranch_scc0 L_slt\ns_sleep 127\ns_sleep 127\nL_slt:")
    e(f"""s_load_dwordx16 s[36:51], s[0:1], 0
s_load_dwordx2 s[52:53], s[0:1], 64
s_load_dwordx2 s[56:57], s[0:1], 80
v_lshrrev_b32 v2, 6, v0
v_and_b32 v{vL}, 63, v0
v_readfirstlane_b32 s{sW}, v2
s_and_b32 s{sKB}, s2, 7
s_lshl_b32 s{sKB}, s{sKB}, 5
s_lshr_b32 s{sT}, s2, 3
s_or_b32 s{sKB}, s{sKB}, s{sT}
v_lshlrev_b32 v7, 3, v0
v_mov_b32 v2, 0
v_mov_b32 v3, 0
v_mov_b32 v4, {L_CNT}
ds_write_b64 v7, v[2:3]
ds_write_b32 v4, v2
v_lshlrev_b32 v{vL16}, 4, v{vL}
s_mul_i32 s{sT}, s{sW}, 160
v_add_u32 v6, s{sT}, v{vL}
v_lshlrev_b32 v{vE4}, 2, v6
v_lshlrev_b32 v{vE8}, 3, v6
s_mul_i32 s{sT}, s{sW}, {120*16}
v_add_u32 v{vY16}, s{sT}, v{vL16}
s_mul_i32 s{sT}, s{sW}, {320*16}
v_add_u32 v{vP16}, s{sT}, v{vL16}
s_cmp_lt_u32 s{sW}, 7
s_cselect_b32 s{m2}, -1, 3
s_mov_b32 s{m2+1}, 0
s_cselect_b64 {P(mE)}, -1, 15
s_cselect_b32 s{mT}, -1, 0xff
s_cselect_b32 s{mY}, 0xffffff, s{mT}
s_mul_i32 s58, s{sKB}, {CH*4}
s_mul_i32 s59, s{sKB}, {CH*8}
s_lshl_b32 s{sS0}, s{sKB}, 6
s_add_u32 s{sS0}, s{sS0}, {WS_TBL}
s_waitcnt lgkmcnt(0)""")
    def ld3(op, d, n, va, Sd, so, step):
        for k in range(3):
            if k == 2: e(f"s_mov_b64 exec, {P(m2)}")
            e(f"{op} {vr(d[k], n)}, v{va}, {S(Sd)}, s{so} offen offset:{step*k} {INS}")
        e("s_mov_b64 exec, -1")
    def cpf():
        e(f"""s_getpc_b64 s[82:83]
L_pc:
s_lshr_b32 s80, s2, 3
s_lshl_b32 s80, s80, 3
s_add_u32 s80, s80, s{sW}
s_lshl_b32 s81, s80, 6
s_min_u32 s81, s81, L_end-L_pc
s_load_dword s3, s[82:83], s81""")
        if RTCH: e(f"""s_and_b32 s81, s2, 7
s_lshl_b32 s81, s81, 8
s_add_u32 s81, s81, s80
s_lshl_b32 s81, s81, 7
s_add_u32 s81, s81, {WS_TBL}
s_load_dword s3, s[56:57], s81
s_add_u32 s81, s81, 64
s_load_dword s3, s[56:57], s81""")
        if CPF & 2: e(f"""s_lshl_b32 s81, s80, 7
s_load_dword s3, s[50:51], s81
s_add_u32 s81, s81, 64
s_load_dword s3, s[50:51], s81""")
        if RPOS >= 3 and not WBE and CPF & 4: e("""s_lshl_b32 s81, s80, 4
s_load_dword s3, s[46:47], s81
s_and_b32 s81, s80, 64
s_load_dword s3, s[48:49], s81""")
    if TLB & 1:
        e(f"""s_mul_i32 s80, s{sKB}, {CH*32}
s_load_dword s3, s[44:45], s80
s_load_dword s3, s[42:43], s59
s_load_dword s3, s[38:39], s58""")
    if TLB & 2:
        e(f"""s_mul_i32 s80, s{sKB}, {CHP*32}
s_load_dword s3, s[56:57], s80
s_load_dword s3, s[56:57], s{sS0}""")
    srd(SA, 40, E * 4)
    ld3("buffer_load_dword", [aD, aD+1, aD+2], 1, vE4, SA, 58, 256)
    if CPF and CPOS == 2: cpf()
    srd(SB, 38, E * 4)
    ld3("buffer_load_dword", [aS, aS+1, aS+2], 1, vE4, SB, 58, 256)
    srd(SC, 42, E * 8)
    ld3("buffer_load_dwordx2", [aR, aR+4, aR+8], 2, vE8, SC, 59, 512)
    if CPF and CPOS == 0: cpf()
    srd(WS, 56, WS_SIZE)
    TA = [f"v_lshrrev_b32 v5, 1, v0", f"s_lshr_b32 s59, s{sKB}, 4", f"s_mul_i32 s59, s59, {16384 - 64}", f"s_lshl2_add_u32 s59, s{sKB}, s59",
          f"s_add_u32 s59, s59, {WS_TBL}", f"v_lshl_add_u32 v{vTA}, v5, 6, s59"]
    def side_a():
        if GPOS == 2:
            for x in TA: e(x)
            e(f"buffer_load_dword v{vREF}, v{vTA}, {S(WS)}, 0 offen {RSC}")
        e(f"""v_lshrrev_b32 v7, 2, v{vL}
v_mul_u32_u24 v7, {16384 - 64}, v7
v_add_u32 v{vRW}, v7, v{vL16}
s_cmp_eq_u32 s{sW}, 7
s_cselect_b32 s59, s{sS0}, 0x40000000
v_add_u32 v7, s59, v{vRW}
buffer_load_dwordx4 {vr(aO,4)}, v7, {S(WS)}, 0 offen {RSC}""")
    def side_b():
        srd(SB, 46, 16 * C * 2); srd(SA, 48, 128)
        e(f"""v_lshlrev_b32 v7, 1, v{vL}
s_lshl_b32 s58, s{sW}, 9
s_add_u32 m0, s58, {L_WR}
s_mov_b32 exec_hi, 0
buffer_load_dwordx4 v{vL16}, {S(SB)}, s58 offen lds
s_mov_b32 exec_hi, -1
buffer_load_ushort v{X+9}, v7, {S(SA)}, 0 offen""")
    def side_loads(): side_a(); side_b()
    nS = 0 if RPOS == 3 else 1 if RPOS >= 4 else 3 + (GPOS == 2)
    if WBE: assert RPOS == 4 and GPOS == 1; nS = 3
    if RPOS == 0: side_loads()
    if RPOS == 5: side_a()
    srd(SD, 44, E * 32)
    if not EFF: e("s_barrier")
    if RPOS == 1: side_loads()
    if WBE: side_b()
    e(f"s_add_u32 m0, s{sT}, {A_EF}\ns_mul_i32 s58, s{sKB}, {CH*32}")
    for k in range(4):
        if EFF and k == EFF: e("s_barrier")
        e(f"buffer_load_dwordx4 v{vP16}, {S(SD)}, s58 offen offset:{1024*k} {INT} lds")
    e(f"""s_add_u32 m0, s{sT}, {A_EF + 4096}
s_add_u32 s58, s58, 4096
s_mov_b64 exec, {P(mE)}
buffer_load_dwordx4 v{vP16}, {S(SD)}, s58 offen {INT} lds
s_mov_b64 exec, -1
v_mov_b32 v6, 1""")
    if RPOS == 2: side_loads()
    if RPOS == 4: side_a()
    if CPF and CPOS == 1: cpf()
    stamp((1, 2))
    e(f"s_waitcnt vmcnt({11+nS})")
    stamp((2, 2))
    for k in range(3):
        if k == 2: e(f"s_mov_b64 exec, {P(m2)}")
        e((f"v_bfe_u32 v2, v{aD+k}, 3, 5\nv_and_b32 v3, 7, v{aD+k}\nv_lshl_or_b32 v2, v3, 5, v2" if SPR else f"v_and_b32 v2, 255, v{aD+k}") + f"\nv_lshlrev_b32 v{aB+k}, 2, v2\nds_add_rtn_u32 v{aK+k}, v{aB+k}, v6 offset:{A_HIST}")
    e(f"s_mov_b64 exec, -1\ns_movk_i32 s{sT2}, {RMUL}\ns_waitcnt vmcnt({8+nS})")
    if NF:
        k1 = (1 << 22) // W1; k2 = int((1 << 22) * (R - NF) / (N - NF * W1)) if not WL else int((1 << 22) * (R - NF - 1) / (N - NF * W1 - WL)); c2 = NF * (1 << 22) - NF * W1 * k2
        assert min(9999 * k1, 9999 * k2 + c2) >> 22 == R - 1 and c2 > 0
        e(f"s_movk_i32 s{sT2}, {k2}\nv_mov_b32 v5, {c2}")
    e(f"s_movk_i32 s59, {-RSTEP}")
    for k in range(3):
        t = aS + k
        if ROT == 2:
            e(f"v_bfe_u32 v3, v{aB+k}, {RG}\nv_mad_i32_i24 v2, v3, s59, v{aS+k}\nv_add_u32 v3, {N}, v2\nv_min_u32 v2, v2, v3")
            t = 2
        if NF: e(f"v_mul_u32_u24 v3, {k1}, v{t}\nv_mad_u32_u24 v2, v{t}, s{sT2}, v5\nv_min_u32 v2, v2, v3\nv_lshrrev_b32 v2, 22, v2")
        else: e(f"v_mul_u32_u24 v2, s{sT2}, v{t}\nv_lshrrev_b32 v2, {RSH}, v2")
        e(f"""v_lshrrev_b32 v3, 8, v{aD+k}
v_mad_u32_u24 v2, v3, {R}, v2
v_lshl_or_b32 v{aR+4*k+2}, v{aS+k}, 10, v2""")
    e(f"""s_waitcnt lgkmcnt(0)
s_barrier
ds_read_b128 {vr(aC,4)}, v{vL16} offset:{A_HIST}
s_waitcnt lgkmcnt(0)
v_add_u32 v{aST+2}, v{aC}, v{aC+1}
v_add_u32 v{aST+3}, v{aST+2}, v{aC+2}
v_add_u32 v2, v{aST+3}, v{aC+3}
v_mov_b32 v3, v2""")
    scan(3, [f"v_lshlrev_b32 v4, 2, v{vE8}"] + (TA if GPOS != 2 else []))
    e(f"""v_sub_u32 v{aST}, v3, v2
v_add_u32 v{aST+1}, v{aST}, v{aC}
v_add_u32 v{aST+2}, v{aST}, v{aST+2}
v_add_u32 v{aST+3}, v{aST}, v{aST+3}
ds_write_b128 v{vL16}, {vr(aST,4)} offset:{A_START}""")
    for k in range(3):
        if k == 2: e(f"s_mov_b64 exec, {P(m2)}")
        e(f"ds_read_b32 v{aB+k}, v{aB+k} offset:{A_START}")
    e("s_mov_b64 exec, -1")
    if GPOS == 0: e(f"buffer_load_dword v{vREF}, v{vTA}, {S(WS)}, 0 offen {RSC}")
    for k in range(4): e(f"v_lshl_or_b32 v{aE+k}, v{aC+k}, 16, v{aST+k}")
    e(f"s_mov_b32 s{sT2}, {A_YM}\ns_waitcnt vmcnt({6 if WBE else 5 + nS + (GPOS == 0)}) lgkmcnt(0)")
    for k in range(3):
        if k == 2: e(f"s_mov_b64 exec, {P(m2)}")
        e(f"""v_add_lshl_u32 v2, v{aB+k}, v{aK+k}, 1
v_add_u32 v3, {2048*k}, v4
ds_write_b16 v2, v3 offset:{A_INV}
v_mad_u32_u24 v2, v2, 6, s{sT2}
ds_write2_b32 v2, v{aR+4*k}, v{aR+4*k+1} offset0:0 offset1:1
ds_write_b32 v2, v{aR+4*k+2} offset:8""")
    e(f"""s_mov_b64 exec, -1
v_lshrrev_b32 v2, 4, v{vP16}
v_and_b32 v2, 0xffe, v2
v_and_b32 v5, 1, v{vL}
v_lshlrev_b32 v5, 4, v5
s_waitcnt lgkmcnt(0)
s_barrier""")
    stamp((1, 1), (3, 2))
    aI = TP + 20
    if GPOS == 1: e(f"buffer_load_dword v{vREF}, v{vTA}, {S(WS)}, 0 offen {RSC}")
    if RPOS == 3: side_a()
    if RPOS >= 3 and BPOS == 1 and not WBE: side_b()
    for k in range(2): e(f"ds_read_b128 {vr(aR+4*k,4)}, v{vY16} offset:{A_YM + 1024*k}")
    for k in range(5): e(f"ds_read_u16 v{aI+k}, v2 offset:{A_INV + 64*k}")
    srd(XS, 36, N * 1024); srd(OS, 52, 0 if NOST else N * 1024)
    common_init()
    if IPOS & 1 and not DLY & 1: lane_helpers()
    if IPOS & 2 and not DLY & 2: epi_addr()
    if RPOS >= 3 and BPOS == 0: side_b()
    srd(SC, 50, C * C * 2)
    e("s_waitcnt lgkmcnt(0)")
    for k in range(5): e(f"v_or_b32 v{aI+k}, v{aI+k}, v5")
    if WBE: build_wb(T0, T0 + 16); build_cg()
    e(f"""s_mul_i32 s{sT2}, s{sKB}, {CHP*12}
s_add_u32 s{sT2}, s{sT2}, {WS_YM}
s_mul_i32 s58, s{sKB}, {CHP*32}
s_add_u32 s59, s58, 4096
s_waitcnt vmcnt({EW if EW >= 0 else 2 if WBE else 3 if RPOS == 5 else 4 if RPOS >= 2 else int(GPOS != 2)})
s_barrier""")
    stamp((4, 2))
    aF = T0
    for k in range(5):
        if k == 4: e(f"s_mov_b64 exec, {P(mE)}")
        e(f"ds_read_b128 {vr(aF+4*k,4)}, v{aI+k} offset:{A_EF}")
    e("s_mov_b64 exec, -1")
    if DLY & 1: lane_helpers()
    if DLY & 2: epi_addr(); e(f"s_mul_i32 s58, s{sKB}, {CHP*32}\ns_add_u32 s59, s58, 4096")
    if EWL >= 0: e(f"s_waitcnt vmcnt({0 if WBE else EWL})")
    e(f"""buffer_store_dwordx4 {vr(aR,4)}, v{vY16}, {S(WS)}, s{sT2} offen {PST}
s_mov_b32 exec_hi, s{mY}
{"s_waitcnt vmcnt(0)" if SCAP == 1 else ""}
buffer_store_dwordx4 {vr(aR+4,4)}, v{vY16}, {S(WS)}, s{sT2} offen offset:1024 {PST}
s_mov_b32 exec_hi, -1""")
    for k in range(5):
        if k == 4: e(f"s_mov_b32 exec_lo, s{mT}\ns_mov_b32 exec_hi, s{mE+1}")
        if SCAP and k + 2 >= SCAP: e(f"s_waitcnt vmcnt({SCAP-1})")
        e(f"s_waitcnt lgkmcnt({4-k})\nbuffer_store_dwordx4 {vr(aF+4*k,4)}, v{vP16}, {S(WS)}, s{58 + k//4} offen offset:{1024*(k%4)} {PST}")
    e("s_mov_b64 exec, -1")
    stamp((5, 2))
    e(f"s_mov_b32 s{sRem}, {SPIN}\ns_mov_b32 s{sFIN}, s{sS0}\ns_mov_b32 s59, 0xc0000000\ns_waitcnt vmcnt(7)")
    for k in range(4):
        e(f"v_and_or_b32 v{aE+k}, v{aO+k}, s59, v{aE+k}\nv_xor_b32 v{vROW+k}, 0x40000000, v{aE+k}\nv_xor_b32 v{aE+k}, 0x80000000, v{aE+k}")
    if not WBE: build_cg()
    if not IPOS & 1 and not PD & 1 and not POLL2 & 2: lane_helpers()
    if not IPOS & 2 and not PD & 2 and not POLL2 & 4: epi_addr()
    e(f"s_lshl_b32 s58, s{sW}, 12\ns_add_u32 m0, s58, {L_WM}\ns_cmp_eq_u32 s{sW}, 7\ns_waitcnt vmcnt(0) lgkmcnt(0)")
    stamp((6, 2))
    e(f"""s_barrier
s_cbranch_scc0 L_nrow2
buffer_store_dwordx4 {vr(aE,4)}, v{vRW}, {S(WS)}, s{sS0} offen sc1
L_nrow2:""")
    if TBAR: e("s_barrier")
    stamp((2, 1))
    def wdma_m():
        for k in range(4): e(f"buffer_load_dwordx4 v{vL16}, {S(SC)}, s58 offen offset:{1024*k} lds")
    def xgap():
        m = ((1 << XG) - 1) << XP
        e(f"s_mov_b32 exec_lo, {hex(m & 0xffffffff)}\ns_mov_b32 exec_hi, {hex(m >> 32)}\nbuffer_load_dword v{vJUNK}, v{vXA}, {S(XS)}, 0 offen\ns_mov_b64 exec, -1")
    if XG and XGP == 0: xgap()
    if WMD == 0: wdma_m()
    if XG and XGP == 1: xgap()
    if not WBE: build_wb()
    if WMD == 1: wdma_m()
    if PD & 1: lane_helpers()
    if PD & 2: epi_addr()
    if PD & 4: e("s_waitcnt vmcnt(0)"); build_wm(T0)
    list_fill()
    e(f"v_and_b32 v7, 1, v{vL}")
    poll()
    stamp((1, 3), (2, 8), (3, 1))
    e(f"v_bfe_u32 v{vPE}, v6, 16, 11\nv_and_b32 v5, 0xffff, v6\nv_sub_u32 v2, v{vPE}, v7")
    fill = [[], [f"v_add_u32 v5, v5, v{vCH}"], [], [], []]
    for m, f in zip(DPPS[1:], fill):
        if m is not DPPS[1]:
            for x in f: e(x)
            e(f"s_nop {1 - len(f)}")
        e(f"v_add_u32_dpp v{vPE}, v{vPE}, v{vPE} {m} bank_mask:0xf")
    e(f"""v_sub_u32 v3, v{vPE}, v2
v_min_u32 v4, {CAPW}, v{vPE}
v_lshl_add_u32 v6, v3, 2, s{sLB}
v_sub_u32 v4, v4, v3
v_sub_u32 v{vDL}, v5, v3
v_sub_u32 v{vPS}, v3, v7""")

NEF = (CAPW + 31) // 32
def phase_b():
    e("L_exp:")
    for k in range(UNR):
        e(f"v_cmpx_lt_i32 vcc, {2*k}, v4\nds_write_b32 v6, v5 offset:{8*k}\nv_add_u32 v5, 2, v5")
    e(f"""v_cmpx_lt_i32 vcc, {2*UNR}, v4
s_cbranch_execnz L_exp_more
L_exp_done:
s_mov_b64 exec, -1""")
    for k in (3, 2, 1, 0): e(f"ds_read_b32 v{tI+k}, v{vLY} offset:{256*k}")
    e(f"""v_readlane_b32 s{sCW}, v{vPE}, 63
s_mov_b32 s{sT}, {WS_YM}
s_sub_i32 s{sNT}, s{sCW}, s{sW0}
s_cmp_le_i32 s{sNT}, 192""")
    stamp((2, 3))
    for i, k in enumerate((3, 2, 1, 0)):
        if k == 3: e("s_cbranch_scc1 L_sk3")
        e(f"s_waitcnt lgkmcnt({3-i})\nv_mul_u32_u24 v{tI+k}, 12, v{tI+k}\nbuffer_load_dwordx3 {vr(tY+4*k,3)}, v{tI+k}, {S(WS)}, s{sT} offen {PSC}")
        if k == 3: e("L_sk3:")
    if YBAR == 2: e("s_barrier")
    for k in range(NEF): e(f"ds_read_b32 v{tI+4+k}, v{vLE} offset:{128*k}")
    e(f"s_max_i32 s{sNT}, s{sNT}, 0\ns_min_i32 s{sNT}, s{sNT}, {CAPW}")
    if YBAR == 1: e("s_barrier")
    assert YBAR == 1
    def ef_dma(k):
        part = k == NEF - 1 and CAPW % 32
        e(f"s_add_u32 m0, s{sEB}, {L_EF + 1024*k}\ns_cmp_le_u32 s{sNT}, {32*(k+1)}")
        if part:
            assert CAPW % 32 > 16
            e(f"s_mov_b32 exec_hi, {hex((1 << (2 * (CAPW % 32) - 32)) - 1)}")
        e(f"buffer_load_dwordx4 v{tI+4+k}, {S(WS)}, 0 offen {PSC} lds")
        if part: e("s_mov_b32 exec_hi, -1")
    for k in range(EF1):
        e(f"s_waitcnt lgkmcnt({NEF-1-k})\nv_lshl_or_b32 v{tI+4+k}, v{tI+4+k}, 5, v{vHP}")
        ef_dma(k)
    e("s_waitcnt lgkmcnt(0)")
    for k in range(EF1, NEF): e(f"v_lshl_or_b32 v{tI+4+k}, v{tI+4+k}, 5, v{vHP}")
    for k in range(4):
        e(f"s_sub_i32 s{sT2}, s{sNT}, {64*k}\nv_cmp_gt_i32 {P(mV+2*k)}, s{sT2}, v{vL}")
    e(f"v_mov_b32 v3, s{sCW}\nv_mov_b32 v4, {L_MAXC}\nds_max_u32 v4, v3\nv_mov_b32 v6, 1")
    if TH: e("s_mov_b64 exec, 1\nds_add_u32 v4, v3 offset:4\ns_mov_b64 exec, -1")
    if SLIM: e(f"v_lshrrev_b32 v5, 2, v{vFA}\nv_add_u32 v5, {L_YI}, v5")
    for i, k in enumerate((3, 2, 1, 0)):
        e(f"""s_waitcnt vmcnt({EF1 + 3 - i})
s_mov_b64 exec, {P(mV+2*k)}
v_and_b32 v2, 0x3ff, v{tY+4*k+2}
v_lshlrev_b32 v{tY+4*k+3}, 2, v2
ds_add_rtn_u32 v{tR+k}, v{tY+4*k+3}, v6 offset:{L_HIST}""")
        if SLIM: e(f"ds_write_b64 v5, {vr(tY+4*k,2)} offset:{512*k}")
    e("s_mov_b64 exec, -1")
    if SLIM:
        for k in range(4): e(f"v_lshrrev_b32 v2, 7, v{tY+4*k+2}\nv_add_u32 v3, {2048*k}, v{vFA}\nv_lshl_or_b32 v{tY+4*k+2}, v3, 12, v2")
    e("s_waitcnt lgkmcnt(0)\ns_barrier")
    stamp((3, 3))
    dg = TP + 4
    for j in range(R // 4): e(f"ds_read_b128 {vr(dg+4*j,4)}, v{vN48} offset:{L_HIST + 16*j}")
    e("ds_read_b64 v[4:5], v4" if TH else "ds_read_b32 v4, v4")
    if BP == 0: second_row("a")
    e(f"s_cmp_le_u32 s{sNT}, {32*EF1}")
    global ef_late
    def ef_late():
        e(f"s_mul_i32 s58, s{sW}, {CAPW*32}")
        for k in range(EF1, 5): e(f"s_add_u32 m0, s58, {L_EF + 1024*k}\ns_nop 0\nbuffer_load_dwordx4 v{vROW + k - EF1}, {S(WS)}, 0 offen {PSC} lds")
    if DEF:
        e("s_nop 1")
        for k in range(EF1, 5): e(f"v_mov_b32 v{vROW + k - EF1}, v{tI+4+k}")
    for k in range(5 if DEF else EF1, NEF):
        if DEF and k == 5: e(f"s_cmp_le_u32 s{sNT}, 160")
        e("s_cbranch_scc1 L_efd")
        ef_dma(k)
    e("L_efd:")
    def xpf(pos):
        if XP and XPOS == pos:
            if XL:
                assert pos == 1 and TH
                e(f"s_cmp_lt_u32 s{sT2}, {XL}\ns_cselect_b32 s{sT}, 0, 0x40000000\nv_add_u32 v{vXA}, s{sT}, v{vXA}")
            e(f"""s_mov_b32 exec_lo, {hex((1 << min(XP, 32)) - 1)}
s_mov_b32 exec_hi, {hex((1 << max(XP - 32, 0)) - 1)}
buffer_load_dword v{vJUNK}, v{vXA}, {S(XS)}, 0 offen
s_mov_b64 exec, -1""")
    xpf(0)
    e(f"v_cmp_gt_u32 vcc, 40, v{vL}\ns_waitcnt lgkmcnt(0)\nv_readfirstlane_b32 s{sT}, v4")
    if TH: e(f"v_readfirstlane_b32 s{sT2}, v5")
    e(f"v_add_u32 v3, v{dg}, v{dg+1}")
    for j in range(2, R, 2): e(f"v_add3_u32 v3, v3, v{dg+j}, v{dg+j+1}")
    e(f"""v_lshl_or_b32 v3, v3, 6, v{vNODE}
v_cndmask_b32 v3, 0, v3, vcc
s_max_u32 s{sMAXC}, s{sMAXC}, s{sT}
s_cmp_lg_u32 s{sW0}, 0
s_cbranch_scc1 L_havepos""")
    for j in range(5): e(f"v_readlane_b32 s{64+j}, v3, {j}")
    for j in range(5): e(f"v_cmp_lt_u32 {P(70+2*j)}, s{64+j}, v3")
    for j in range(5): e(f"s_bcnt1_i32_b64 s{64+j}, {P(70+2*j)}")
    for j in range(5): e(f"v_readlane_b32 s{70+j}, v{vMAP}, s{64+j}")
    for j in range(5): e(f"v_writelane_b32 v{vPOS}, s{70+j}, {j}")
    e(f"""v_lshlrev_b32 v{vPOS}, 2, v{vPOS}
L_havepos:
s_mov_b64 exec, 31
ds_write_b32 v{vPOS}, v3 offset:{L_ENTRY}
s_mov_b64 exec, -1
v_lshlrev_b32 v4, 2, v{vL}
v_and_b32 v6, 7, v{vL}
v_cmp_gt_u32 s[34:35], s{sW}, v6
s_and_b64 s[34:35], s[34:35], vcc
v_cmp_gt_u32 vcc, {5*R}, v{vL}""")
    if TH:
        e(f"s_cmp_gt_u32 s{sT2}, {TH}\ns_cselect_b32 s{sT}, {4*(R-TS)}, 0")
        if TH2: e(f"s_cmp_gt_u32 s{sT2}, {TH2}\ns_cselect_b32 s{sT}, {4*(R-TS-1)}, s{sT}")
        if TL: e(f"s_cmp_lt_u32 s{sT2}, {TL}\ns_cselect_b32 s{sT}, 4, s{sT}")
        e(f"v_add_u32 v{vR4}, s{sT}, v{vR4}\nv_subrev_u32 v2, {4*R}, v{vR4}\nv_min_u32 v{vR4}, v{vR4}, v2")
    xpf(1)
    e("s_waitcnt lgkmcnt(0)\ns_barrier")
    stamp((4, 3), (1, 7))
    if STAMP == 7: e("s_waitcnt vmcnt(0)")
    stamp((2, 7))
    xpf(4)
    c0, c1, c2, c3 = T0 + 36, T0 + 37, T0 + 38, T0 + 39
    e(f"""ds_read_b32 v{c3}, v{vEN} offset:{L_ENTRY}
ds_read_b32 v4, v4 offset:{L_ENTRY}
s_waitcnt lgkmcnt(1)
v_and_b32 v{c3}, 63, v{c3}
v_mad_u32_u24 v3, v{c3}, {4*R}, v{vR4}
ds_read_b32 v{c0}, v3 offset:{L_HIST}
s_waitcnt lgkmcnt(1)
v_lshrrev_b32 v4, 6, v4
v_cndmask_b32 v{c2}, 0, v4, s[34:35]
v_mul_u32_u24 v{c3}, {4*TROW}, v{c3}
s_waitcnt lgkmcnt(0)
v_cndmask_b32 v{c0}, 0, v{c0}, vcc
v_mov_b32 v{c1}, v{c0}""")
    scan2(c1, c2, [f"v_readlane_b32 s{sROW+j}, v{c3}, {j}" for j in range(5)] + [f"v_lshlrev_b32 v4, {0 if SLIM else 3}, v{vS}", f"s_min_u32 s{sMAXC}, s{sMAXC}, {32*CH}"])
    e(f"""v_sub_u32 v{c0}, v{c1}, v{c0}
v_readlane_b32 s{sS0}, v{c2}, 63
v_readlane_b32 s{sN}, v{c1}, 63
s_lshl_b32 s{sT}, s{sS0}, {ES}
s_add_u32 s{sT}, s{sT}, {L_SW if SLIM else L_ST}
v_lshl_add_u32 v{c0}, v{c0}, {ES}, s{sT}
v_lshl_or_b32 v{c0}, v{c0}, 10, v4
s_mov_b64 exec, vcc
ds_write_b32 v3, v{c0} offset:{L_TBL}
s_mov_b64 exec, -1
s_min_u32 s{sN}, s{sN}, {8*CAPW}
v_lshl_add_u32 v{vEntA}, v{vQ}, {ES}, s{sT}
v_and_b32 v2, 3, v{vL}
v_bfe_u32 v3, v{vL}, 3, 2
v_lshl_add_u32 v2, v3, 2, v2
v_lshl_add_u32 v{vEfA}, v2, {ES}, s{sT}
s_movk_i32 s{sT2}, {7 if SLIM else 0x3ff}""")
    xpf(2)
    e("s_waitcnt lgkmcnt(0)\ns_barrier")
    stamp((5, 3))
    xpf(3)
    for k in range(4): e(f"s_mov_b64 exec, {P(mV+2*k)}\nds_read_b32 v{tI+k}, v{tY+4*k+3} offset:{L_TBL}")
    e("s_mov_b64 exec, -1")
    for k in range(0 if SLIM else 4): e(f"v_add_u32 v{tY+4*k+3}, {2048*k}, v{vFA}")
    e("s_waitcnt lgkmcnt(0)")
    for k in range(4):
        e(f"""s_mov_b64 exec, {P(mV+2*k)}
v_bfi_b32 v{tY+4*k+2}, s{sT2}, v{tI+k}, v{tY+4*k+2}
v_lshrrev_b32 v{tI+k}, 10, v{tI+k}
v_lshl_add_u32 v{tI+k}, v{tR+k}, {ES}, v{tI+k}""")
        e(f"ds_write_b32 v{tI+k}, v{tY+4*k+2}" if SLIM else f"ds_write_b128 v{tI+k}, {vr(tY+4*k,4)}")
    e(f"""s_mov_b64 exec, -1
v_cmp_gt_i32 vcc, s{sN}, v{vQ}
v_mov_b32 v4, s{sDUM}
s_waitcnt lgkmcnt(0)
s_barrier""")
    if BP == 2: second_row("c")
    stamp((4, 1), (6, 3), (5, 8))

lane_of = lambda q: 4 * (q % 16) + (q % 64) // 16
ring = lambda q: RING + q % 16
def xload(q, so): return f"buffer_load_dwordx4 {vr(X+4*(q%D),4)}, v{vL16}, {S(XS)}, s{so} offen {XSC}"
def rd_efa(us):
    for u in us: e(f"s_mov_b64 exec, {P((mU0,mU1)[u])}\nds_read_b128 {vr(EFA+4*u,4)}, v{EFAD} offset:{L_EF}")
    e("s_mov_b64 exec, -1")
def rmfma(buf, j):
    u, par = j // 2, j % 2
    d = T[buf] + 16 * par
    return f"v_mfma_f32_32x32x16_bf16 {vr(d,16)}, {vr(EFA+4*u,4)}, {vr(WB+4*(2*u+par),4)}, {'0' if u == 0 else vr(d,16)}"
BST = 16 << ES; EO = 0 if SLIM else 12
rd_ent = lambda: f"ds_read_b32 v{ENT+3}, v{vEntA}" if SLIM else f"ds_read_b128 {vr(ENT,4)}, v{vEntA}"
def mk_efad(src):
    if SLIM: e(f"v_lshrrev_b32 v{src}, 12, v{src}")
    e(f"v_and_or_b32 v{EFAD}, v{src}, s{sEFM}, v{vH16}")
def mk_meta():
    e(f"v_bfe_u32 v3, v{ENT+3}, 3, 14\nv_and_b32 v{ENT+2}, 7, v{ENT+3}\nv_lshlrev_b32 v{ENT+2}, 3, v{ENT+2}\nv_lshl_or_b32 v{ENT+2}, v3, 10, v{ENT+2}")
def rd_y():
    e(f"v_bfe_u32 v3, v{ENT+3}, 17, 11\nv_lshl_add_u32 v3, v3, 3, s{sYI}\nds_read_b64 {vr(ENT,2)}, v3")
def loop():
    e(f"""{rd_ent()}
ds_read_b32 v{EFAD}, v{vEfA} offset:{EO}
ds_read_b32 v2, v{vEfA} offset:{BST+EO}
s_mov_b32 s{sYI}, {L_YI}
s_waitcnt lgkmcnt({2 if SLIM else 0})""")
    if SLIM: mk_meta()
    e(f"v_cndmask_b32 v{META}, v4, v{ENT+2}, vcc")
    if SLIM: e("s_nop 0")
    else: mk_efad(EFAD)
    for q in range(DIST): e(f"v_readlane_b32 s{ring(q)}, v{META}, {lane_of(q)}")
    def dst():
        e(f"s_lshl_b32 s58, s2, 3\ns_add_u32 s58, s58, s{sW}\ns_lshl_b32 s58, s58, 10\ns_add_u32 s58, s58, 0x1100000\nv_lshlrev_b32 v3, 2, v{vL}")
        if DST & 4: e(f"buffer_store_dwordx4 {vr(ENT,4)}, v{vL16}, {S(WS)}, s58 offen")
        else:
            for k in range(3): e(f"buffer_store_dword v{META}, v3, {S(WS)}, s58 offen offset:{256*k}")
    nD = 0 if not DST & 3 else 1 if DST & 4 else 3
    if DST & 3 == 1: dst()
    for q in range(PRE): e(f"s_and_b32 s{sOFF+q%4}, s{ring(q)}, s{sMASK}\n{xload(q, sOFF+q%4)}")
    if SLIM: e("s_waitcnt lgkmcnt(0)"); mk_efad(EFAD); rd_y()
    if DST & 3 == 2: dst()
    e(f"s_waitcnt vmcnt({PRE + (1 if XP else 0) + (nD if DST & 3 in (1, 2) else 0)})\ns_barrier")
    if DST & 3 == 3: dst()
    if BP == 1: second_row("b")
    stamp((5, 1), (5, 5))
    if STAMP: e("s_memtime s[60:61]")
    rd_efa((0, 1))
    mk_efad(2)
    for q in range(PRE, 4): e(f"s_and_b32 s{sOFF+q%4}, s{ring(q)}, s{sMASK}\n{xload(q, sOFF+q%4)}")
    e("s_waitcnt lgkmcnt(0)")
    for j in range(4): e(rmfma(0, j))
    if DEF == 1: ef_late()
    def rest_loads():
        for q in range(max(PRE, 4), DIST): e(f"s_and_b32 s{sOFF+q%4}, s{ring(q)}, s{sMASK}\n{xload(q, sOFF+q%4)}")
    if not WMP: rest_loads()
    else: e("s_nop 7")
    rd_efa((0,))
    if not PD & 4:
        e(f"s_cmp_lg_u32 s{sW0}, 0\ns_cbranch_scc1 L_wdone")
        build_wm()
    e(f"L_wdone:\ns_mov_b32 s{sYI}, {L_YI}")
    if WMP: rest_loads()
    e(f"s_mov_b32 s{sRem}, s{sN}\ns_waitcnt lgkmcnt(0)")
    if AL >= 0:
        e("s_branch L_sb\n.p2align 6")
        for _ in range(AL): e("s_nop 0")
    e("L_sb:")
    if STAMP == 5: e("s_mov_b32 s86, s88\ns_mov_b32 s88, s90\ns_memrealtime s[90:91]")
    for i in range(4): e(f"v_mfma_f32_4x4x4_16b_bf16 {vr(TP+4*i,4)}, {vr(ENT,2)}, {vr(CG+2*i,2)}, 0")
    e(f"v_add_u32 v{vEntA}, {4*BST}, v{vEntA}\ns_sub_u32 s{sT}, s{sRem}, 64\nv_cmp_gt_i32 s[34:35], s{sT}, v{vQ}\ns_cmp_le_i32 s{sRem}, 0\ns_nop 0")
    for r in range(4):
        e(f"v_cvt_pk_bf16_f32 v{AE+2*r}, v{TP+r}, v{TP+4+r}\nv_cvt_pk_bf16_f32 v{AE+2*r+1}, v{TP+8+r}, v{TP+12+r}")
    e(f"{rd_ent()}\nds_read_b32 v{vCNT}, v{vCA}")
    for q in range(0, 64, 4):
        b, p = q // 16, (q % 16) // 4
        cur = b % 2
        te, to = T[cur] + q % 16, T[cur] + 16 + q % 16
        e(f"; ---- edges {q}..{q+3}")
        mf = lambda d, x, qq: f"v_mfma_f32_4x4x4_16b_bf16 {vr(d,4)}, {vr(AE+2*b,2)}, {vr(x,2)}, 0 cbsz:4 abid:{qq%16}"
        e("s_cbranch_scc1 L_exit")
        if STAMP == 5 and q == SQ: e(f"s_cmp_eq_u32 s{sRem}, s{sN}\ns_cbranch_scc0 L_nst\ns_memrealtime s[92:93]\nL_nst:")
        if PRIO == 2 and p == 0: e(f"s_setprio {3-b}")
        lp = LP.split(","); ps = PS.split(",")
        def at(tag):
            if PRIO == 3 and tag in ps: e(f"s_setprio {3 - ((q // 4) * len(ps) + ps.index(tag)) % 4}")
            for j, t in enumerate(lp):
                if t == tag and SA == 2: e(f"s_and_b32 s{sOFF+j}, s{ring(q+DIST+j)}, s{sMASK}")
            for j, t in enumerate(lp):
                if t == tag:
                    if SA == 1: e(f"s_and_b32 s{sOFF+j}, s{ring(q+DIST+j)}, s{sMASK}")
                    e(xload(q + DIST + j, sOFF + j))
        at("Q")
        if PRIO == 5: e(f"s_setprio {1 - p % 2}")
        if PRIO == 4 and p % 2 == 0: e(f"s_setprio {3 - (q // 8) % 4}")
        if q + DIST == 64: e(f"v_cndmask_b32 v{META}, v4, v{ENT+2}, s[34:35]")
        RL = [f"v_readlane_b32 s{ring(q+DIST+j)}, v{META}, {lane_of(q+DIST+j)}" for j in range(4)]
        EX = [f"v_exp_f32 v{TMP+j}, v{te+j}" for j in range(4)] + [f"v_exp_f32 v{TMP+4+j}, v{to+j}" for j in range(4)]
        AD = [f"v_pk_fma_f32 {vr(TMP+2*j,2)}, {vr(TMP+2*j,2)}, {P(sK)}, {P(sK)}" for j in range(4)]
        RC = [f"v_rcp_f32 v{TMP+j}, v{TMP+j}" for j in range(8)]
        MF = []
        for j in range(4):
            x = X + 4 * ((q + j) % D)
            MF += [mf(TP+8*j, x, q+j), mf(TP+8*j+4, x+2, q+j)]
        if SCH in (2, 3, 4):
            assert SA
            if SCH == 4:
                e(EX[0]); e(rmfma(1 - cur, p))
                for x in EX[1:]: e(x)
            else:
                e(rmfma(1 - cur, p))
                for x in EX: e(x)
            if SCH == 3:
                for x in RL[:3]: e(x)
            for x in AD: e(x)
            at("W")
            e(f"s_waitcnt vmcnt({DIST-(2 if W2 else 4)})")
            for j in range(8):
                if W2 and j == 4: e(f"s_waitcnt vmcnt({DIST-4})")
                e(MF[j]); e(RC[j])
            for x in (RL[3:] if SCH == 3 else RL): e(x)
            if p == 2: mk_efad(2)
            if SLIM and q == 16: mk_meta(); rd_y()
            at("R7")
        if SCH == 1:
            e(f"s_waitcnt vmcnt({DIST-(2 if W2 else 4)})")
            for j in range(4):
                x = X + 4 * ((q + j) % D)
                if W2 and j == 2: e(f"s_waitcnt vmcnt({DIST-4})")
                e(f"""{mf(TP+8*j, x, q+j)}
v_exp_f32 v{TMP+j}, v{te+j}
{mf(TP+8*j+4, x+2, q+j)}
v_exp_f32 v{TMP+4+j}, v{to+j}""")
            at("E")
            for j in range(4): e(f"v_readlane_b32 s{ring(q+DIST+j)}, v{META}, {lane_of(q+DIST+j)}")
            if p == 2: mk_efad(2)
            if SLIM and q == 16: mk_meta(); rd_y()
            for j in range(4):
                if SA == 0: e(f"s_and_b32 s{sOFF+j}, s{ring(q+DIST+j)}, s{sMASK}")
                e(f"v_pk_fma_f32 {vr(TMP+2*j,2)}, {vr(TMP+2*j,2)}, {P(sK)}, {P(sK)}")
                at(f"A{j}")
            e(rmfma(1 - cur, p))
            for j in range(8):
                e(f"v_rcp_f32 v{TMP+j}, v{TMP+j}")
                at(f"R{j}")
        def side():
            if q < 60: e(f"s_cmp_le_i32 s{sRem}, {q+4}")
            if p == 0: rd_efa((1,)); e(f"ds_read_b32 v2, v{vEfA} offset:{BST*(b+2)+EO}")
            if p == 2: rd_efa((0,))
            if p in (1, 3): e("s_waitcnt lgkmcnt(0)")
        if SP == 'R': side()
        for j in range(2): e(f"v_pk_mul_f32 {vr(TMP+2*j,2)}, {vr(TMP+2*j,2)}, {vr(te+2*j,2)}")
        for j in range(2): e(f"v_pk_mul_f32 {vr(TMP+4+2*j,2)}, {vr(TMP+4+2*j,2)}, {vr(to+2*j,2)}")
        for s in range(4):
            at(f"F{s}")
            e(f"s_set_gpr_idx_on s{ring(q+s)}, gpr_idx(SRC2,DST)" if s == 0 else f"s_set_gpr_idx_idx s{ring(q+s)}")
            for j in range(4):
                e(f"v_pk_fma_f32 {vr(ACC+2*j,2)}, {vr(TMP+4*(j//2)+2*(s//2),2)}, {vr(TP+8*s+2*j,2)}, {vr(ACC+2*j,2)} op_sel:[{s%2},0,0] op_sel_hi:[{s%2},1,1]")
        e("s_set_gpr_idx_off")
        if DEF > 1 and q == DEF:
            e(f"s_cmp_eq_u32 s{sRem}, s{sN}\ns_cbranch_scc0 L_nodef"); ef_late(); e("L_nodef:")
        at("F4")
        if SP == 'F': side()
    e(f"""v_add_u32 v{vEfA}, {4*BST}, v{vEfA}
s_sub_u32 s{sRem}, s{sRem}, 64
s_branch L_sb
L_exit:""")
    if PRIO: e("s_setprio 0")
    stamp((6, 1), (6, 5), (1, 6), (6, 8))
    if STAMP: e("s_memtime s[62:63]")
    e(f"""s_add_u32 s{sW0}, s{sW0}, {CAPW}
s_cmp_lt_u32 s{sW0}, s{sMAXC}
s_cbranch_scc0 L_epi
s_waitcnt vmcnt(0) lgkmcnt(0)
v_lshlrev_b32 v7, 3, v0
v_mov_b32 v2, 0
v_mov_b32 v3, 0
ds_write_b64 v7, v[2:3]
s_nop 15""")
    lane_helpers()
    list_fill()
    e(f"""s_waitcnt lgkmcnt(0)
s_barrier
v_and_b32 v2, 1, v0
v_max_u32 v3, s{sW0}, v{vPS}
v_add_u32 v3, v3, v2
s_add_u32 s{sT2}, s{sW0}, {CAPW}
v_min_u32 v4, s{sT2}, v{vPE}
v_add_u32 v5, v{vDL}, v3
s_lshl_b32 s{sT2}, s{sW0}, 2
s_sub_u32 s{sT2}, s{sLB}, s{sT2}
v_lshl_add_u32 v6, v3, 2, s{sT2}
v_sub_u32 v4, v4, v3
s_branch L_exp
L_exp_more:
v_add_u32 v6, {8*UNR}, v6
v_subrev_u32 v4, {2*UNR}, v4
s_branch L_exp
L_epi:""")

def epilogue():
    FB = EFA; FD = ACC; FO = TP + 16
    FA = lambda t: T0 + 16 * t
    assert CG + 8 == EFA + 32 and TP == T0 + 64
    def rdB():
        for ks in range(4):
            for par in range(2): e(f"ds_read_b128 {vr(FB+16*par+4*ks,4)}, v{vBA} offset:{8192*ks + 256*par}")
    if not EP: e(f"s_waitcnt lgkmcnt(0)\nv_readfirstlane_b32 s38, v{vCNT}")
    e(f"v_lshlrev_b32 v5, 2, v{vL}")
    for s in range(5):
        e(f"v_add_u32 v3, s{sROW+s}, v5")
        for o in range(4): e(f"v_cvt_pk_bf16_f32 v{ACC+8*s+o}, v{ACC+8*s+o}, v{ACC+8*s+4+o}")
        for o in range(0, 4, 2): e(f"ds_write2_b32 v3, v{ACC+8*s+o}, v{ACC+8*s+o+1} offset0:{o*TROW//4} offset1:{(o+1)*TROW//4}")
    if EP: e(f"s_waitcnt lgkmcnt(10)\nv_readfirstlane_b32 s38, v{vCNT}")
    e("s_cmp_eq_u32 s38, 8\ns_cbranch_scc0 L_nob")
    rdB()
    e("s_waitcnt lgkmcnt(8)")
    stamp((2, 6))
    e("s_barrier\ns_branch L_haveb\nL_nob:\ns_waitcnt lgkmcnt(0)\ns_barrier")
    rdB()
    e("L_haveb:")
    stamp((3, 6))
    def rdA(t):
        for ks in range(4): e(f"ds_read_b128 {vr(FA(t)+4*ks,4)}, v{vAA} offset:{L_TILE + t*16*TROW + 64*ks}")
    def fin(t):
        d = FD + 8 * t; o = FO + 4 * (t % 4)
        for j in range(4): e(f"v_cvt_pk_bf16_f32 v{o+j}, v{d+2*j}, v{d+2*j+1}")
        e(f"buffer_store_dwordx4 {vr(o,4)}, v{vOA}, {S(OS)}, 0 offen {OUTST}")
        if t < 4: e(f"v_add_u32 v{vOA}, {4*256*1024}, v{vOA}")
    def rd1(i): e(f"ds_read_b128 {vr(FA(i//4)+4*(i%4),4)}, v{vAA} offset:{L_TILE + (i//4)*16*TROW + 64*(i%4)}")
    if EG:
        for i in range(EG): rd1(i)
        issued = EG
        for t in range(5):
            d = FD + 8 * t
            for ks in range(4):
                e(f"s_waitcnt lgkmcnt({issued - 4*t - ks - 1})")
                for par in range(2):
                    e(f"v_mfma_f32_16x16x32_bf16 {vr(d+4*par,4)}, {vr(FA(t)+4*ks,4)}, {vr(FB+16*par+4*ks,4)}, {'0' if ks == 0 else vr(d+4*par,4)}")
                    if par == 0 and issued < 20: rd1(issued); issued += 1
                if ks == (1 if 4*t + 1 + EG < 20 else 2) and t >= 1: fin(t - 1)
    else:
        rdA(0); rdA(1); rdA(2)
        issued = 12
        for t in range(5):
            d = FD + 8 * t
            for ks in range(4):
                e(f"s_waitcnt lgkmcnt({issued - 4*t - ks - 1})")
                for par in range(2):
                    e(f"v_mfma_f32_16x16x32_bf16 {vr(d+4*par,4)}, {vr(FA(t)+4*ks,4)}, {vr(FB+16*par+4*ks,4)}, {'0' if ks == 0 else vr(d+4*par,4)}")
                if ks == 0 and t + 3 < 5: rdA(t + 3); issued += 4
                if ks == 2 and t >= 1: fin(t - 1)
    e("s_nop 7")
    fin(4)
    stamp((4, 6))
    if BP == 3: e(f"s_mov_b32 s{sW0}, 0"); second_row("d")
    if STAMP:
        e("s_waitcnt vmcnt(0)"); stamp((7, 0))
        e(f"""s_lshl_b32 s34, s2, 3
s_add_u32 s34, s34, s{sW}
s_add_u32 s34, s34, 4096
s_getreg_b32 s59, hwreg(HW_REG_HW_ID)
s_getreg_b32 s58, hwreg(HW_REG_XCC_ID)
s_mov_b64 exec, 1
s_lshl_b32 s34, s34, 6
s_add_u32 s34, s34, {WS_STAMP}
v_mov_b32 v2, 0""")
        for i, r in enumerate([84 + 2*i for i in range(8)] + [60, 62, sN, 59, 58]):
            e(f"v_mov_b32 v3, s{r}\nbuffer_store_dword v3, v2, {S(WS)}, s34 offen offset:{4*i}")
    e("L_end:\ns_endpgm")

ref = open("standalone__tensor_product_equiv_tfn__graph.s.ref").read().splitlines()
for l in ref:
    if l.startswith("; Override"): break
    out.append(l)
out.append("; Generated by gen/gen2.py " + " ".join(sys.argv[2:]))
out.append(f"; @launch grid=(256,1,1) block=(512,1,1) lds={M_LDS}")
e('.amdgcn_target "amdgcn-amd-amdhsa--gfx950"\n.text')
phase_a(); phase_b(); loop(); epilogue()
e(f""".section .rodata,"a"
.p2align 6
.amdhsa_kernel {KNAME}
.amdhsa_next_free_vgpr {NV}
.amdhsa_next_free_sgpr 100
.amdhsa_accum_offset {(NV+3)//4*4}
.amdhsa_group_segment_fixed_size 0
.amdhsa_kernarg_size 88
.amdhsa_user_sgpr_count 2
.amdhsa_user_sgpr_kernarg_segment_ptr 1
.amdhsa_system_sgpr_workgroup_id_x 1
.amdhsa_float_denorm_mode_32 3
.end_amdhsa_kernel""")
if NOLOAD or NOV:
    i0 = out.index("L_sb:"); i1 = out.index("L_exit:")
    rm = tuple((["buffer_load"] if NOLOAD else []) + (NOV.split(",") if NOV else []))
    out[i0:i1] = [l for l in out[i0:i1] if not l.strip().startswith(rm)]
if E64:
    i0 = out.index("L_sb:"); i1 = out.index("L_exit:")
    for i in range(i0, i1):
        l = out[i].strip()
        if (E64 & 1) and l.startswith("v_exp_f32"): out[i] = out[i].replace("v_exp_f32", "v_exp_f32_e64")
        if (E64 & 2) and l.startswith("v_rcp_f32"): out[i] = out[i].replace("v_rcp_f32", "v_rcp_f32_e64")
text = "\n".join(out) + "\n"
errs = hazard.check(text) + hazard.check_waits(text)
for x in errs: print("HAZARD", x)
open(sys.argv[1], "w").write(text)
print(f"wrote {sys.argv[1]}: NV={NV} LDS={M_LDS} hazards={len(errs)}")
```

```python
import sys, struct, math
sys.path.insert(0, "gen")
import hazard

OPT = dict(STAMP=0, SQ=16, SLOWT=0, NOLOAD=0, NOV="", R=12, EF1=2, PRE=4, YBAR=1, ROT=2, CPF=3, EARLY=0, UNR=6,
           OUTST="sc1", PRIO=3, XP=12, TBAR=1, RPOS=4, RTCH=0, GPOS=1, EW=-1, CPOS=2, SCAP=0, AL=-1, E64=0, BPOS=1, IPOS=3, SPR=1, NF=1, W1=384, PST='sc1', INT='', DLY=0, EWL=2, XPOS=2, WMP=0, TR=288, NOST=0, RSC='sc1', SLIM=0, WBE=0, PD=0, WMD=0, W2=0, LP='F4,F4,F4,F4', PS='Q', SA=2, SCH=2, SP='F', POLL2=0, DST=0, TLB=0, EFF=0, TH=1250, TS=1, TH2=0, TL=0, INS='', EG=4, EP=1, BP=0, XSC='', PSC='sc1', DEF=0, RG='7,3', RSTEP=1250, XL=0, XG=0, XGP=0, XOFF=0, WL=0, DX=0, E2=-1, Y2=1, PSL=0, PSF=0)
for a in sys.argv[2:]:
    k, v = a.split("=")
    assert k in OPT, k
    OPT[k] = int(v) if v.lstrip("-").isdigit() else v.replace("+", " ")
globals().update(OPT)

KNAME = "standalone__tensor_product_equiv_tfn__graph_kernel"
N, E, C = 10000, 320000, 128
CH = 1250; CHP = 1280
WS_EF = 0; WS_YM = 256 * CHP * 32; WS_TBL = WS_YM + 256 * CHP * 12
WS_STAMP = 0x1000000
WS_SIZE = 0x1000000 + (0x100000 if STAMP else 0) + (0x400000 if DST else 0)
assert WS_TBL + 256 * 1024 <= WS_STAMP
def f32(x): return "0x%08x" % struct.unpack("<I", struct.pack("<f", x))[0]
LOG2E = math.log2(math.e); LN2 = math.log(2.0)
RMUL, RSH = {4: (6711, 24), 8: (6711, 23), 12: (5033, 22)}[R]
assert (9999 * RMUL) >> RSH == R - 1
SPIN = 400000
OOB = 0x00ffffff

CAPW = 216; TROW = TR
L_HIST = 0; L_MAXC = 2048; A_HIST = 3072; L_ENTRY = 4096; L_TBL = 4608; L_CG = 6656
L_LIST = 8192; L_WR = 16384
L_TILE = 0
L_EF = 160 * TROW; L_ST = L_EF + 8 * CAPW * 32; L_WM = L_ST + 8 * CAPW * 16; L_CNT = L_WM + 32768
M_LDS = L_CNT + 16
L_YI = L_ST; L_SW = L_ST + 8 * CAPW * 8
ES = 2 if SLIM else 4
A_YM = L_EF; A_EF = A_YM + CHP * 12; A_INV = L_LIST; A_START = L_LIST + 2560
assert M_LDS <= 163840 and A_EF < 65536 and A_EF + CHP * 32 <= L_WM and 40 * R * 4 <= 2048 and 5 * R <= 64 and R % 4 == 0

D = 8; DIST = 8
if DX: D = 16; DIST = DX
ACC = 8; X = 48; T0 = 80; T = [T0, T0 + 32]; TP = T0 + 64; TMP = TP + 32; AE = TMP + 8; EFA = AE + 8; WB = EFA + 8
CG = WB + 16; ENT = CG + 8; META = ENT + 4; EFAD = META + 1
vEntA = EFAD + 1; vEfA = vEntA + 1; vL16 = vEfA + 1; vH16 = vL16 + 1; vQ = vH16 + 1
vPS = vQ + 1; vPE = vPS + 1; vDL = vPE + 1; vPOS = vDL + 1; vJUNK = vPOS + 1; vBA = vJUNK + 1; vAA = vBA + 1; vOA = vAA + 1; vCNT = vOA + 1; vCA = vCNT + 1; vRW = vCA + 1; vROW = vRW + 1; NV = vROW + 4
assert vROW % 2 == 0
vL = 1
assert NV <= 256
XS, WS, OS = 4, 8, 12
sW, sKB, sN, sCW, sW0, sMAXC, sT, sT2, sNT, sS0, sRem = 16, 17, 18, 19, 24, 25, 26, 27, 28, 29, 30
mU0, mU1 = 20, 22
sMASK, sDUM, sEFM = 31, 32, 33
mV = 36
DG = 44
sROW = 48
sFIN = 53
sYI = 59
sEW = 54
sK = 56
RING = 64; sOFF = 80
DUMMY = (N * 1024) | 40
MAP39 = [0, 5, 6, 3, 0, 7, 2, 4, 1, 0, 2, 7, 1, 0, 6, 3, 5, 4, 1, 7, 4, 6, 3, 2, 5, 4, 5, 7, 2, 1, 3, 6, 4, 1, 3, 2, 6, 7, 5, 0]
MAP40 = [7, 0, 5, 2, 4, 3, 1, 6, 4, 1, 6, 3, 7, 2, 0, 5, 5, 6, 3, 0, 7, 1, 2, 4, 2, 5, 3, 1, 4, 6, 0, 7, 6, 1, 4, 3, 2, 0, 5, 7]
def posmap(m):
    c = [0] * 8; o = []
    for w in m: o.append(c[w] * 8 + w); c[w] += 1
    assert sorted(o) == list(range(40))
    return o

out = []
def e(s=""):
    for l in s.split("\n"):
        l = l.strip()
        if not l: continue
        out.append(l if l.endswith(":") or l.startswith((".", ";")) else "    " + l)
def vr(a, n): return f"v[{a}:{a+n-1}]" if n > 1 else f"v{a}"
def S(a): return f"s[{a}:{a+3}]"
def P(a): return f"s[{a}:{a+1}]"
def srd(d, base, nbytes):
    e(f"s_mov_b32 s{d}, s{base}\ns_mov_b32 s{d+1}, s{base+1}\ns_mov_b32 s{d+2}, {nbytes}\ns_mov_b32 s{d+3}, 0x00020000")
DPPS = ("row_shr:1 row_mask:0xf", "row_shr:2 row_mask:0xf", "row_shr:4 row_mask:0xf", "row_shr:8 row_mask:0xf",
        "row_bcast:15 row_mask:0xa", "row_bcast:31 row_mask:0xc")
def scan(v, fill=()):
    fill = list(fill)
    for m in DPPS:
        k = 0
        while k < 2 and fill: e(fill.pop(0)); k += 1
        if k < 2: e(f"s_nop {1-k}")
        e(f"v_add_u32_dpp v{v}, v{v}, v{v} {m} bank_mask:0xf")
    for x in fill: e(x)
def scan2(v1, v2, fill=()):
    fill = list(fill)
    e(fill.pop(0) if fill else "s_nop 0")
    for m in DPPS:
        e(fill.pop(0) if fill else "s_nop 0")
        e(f"v_add_u32_dpp v{v1}, v{v1}, v{v1} {m} bank_mask:0xf\nv_add_u32_dpp v{v2}, v{v2}, v{v2} {m} bank_mask:0xf")
    for x in fill: e(x)
def stamp(*specs):
    for i, st in specs:
        if STAMP and (st == STAMP or st == 0):
            e(f"s_memrealtime s[{84+2*i}:{85+2*i}]")
            if (i, st) not in ((1, 2), (2, 2), (3, 2), (5, 2), (6, 8)): e("s_waitcnt lgkmcnt(0)")

tY = T0
tI = T0 + 16
tR = T0 + 28
vMAP, vNODE, vR4, vS, vXA = T0 + 32, T0 + 33, T0 + 34, T0 + 35, T0 + 40
vLY, vLE, vHP, vCH, vN48, vEN, vFA = T0 + 41, T0 + 42, T0 + 43, T0 + 44, T0 + 45, T0 + 46, T0 + 47
sLB, sEB = 81, 80
vREF, vTA, vP2 = X + 11, X + 10, X + 4

def lane_helpers():
    e(f"""s_mul_i32 s{sT}, s{sW}, 5
v_add_u32 v{vNODE}, s{sT}, v{vL}
v_subrev_u32 v3, 40, v{vNODE}
v_min_u32 v{vNODE}, v{vNODE}, v3
v_mul_u32_u24 v3, 205, v{vL}
v_lshrrev_b32 v3, 10, v3
v_mul_u32_u24 v2, 5, v3
v_sub_u32 v{vS}, v{vL}, v2""")
    if ROT == 1:
        e(f"""s_lshr_b32 s{sT}, s{sKB}, 5
s_mul_i32 s{sT}, s{sT}, {R}
s_lshr_b32 s{sT}, s{sT}, 3
v_add_u32 v3, s{sT}, v3
v_subrev_u32 v2, {R}, v3
v_min_u32 v3, v3, v2""")
    e(f"""v_lshlrev_b32 v{vR4}, 2, v3
s_lshl_b32 s{sLB}, s{sW}, 10
s_add_u32 s{sLB}, s{sLB}, {L_LIST}
s_mul_i32 s{sEB}, s{sW}, {CAPW*32}
v_lshl_add_u32 v{vLY}, v{vL}, 2, s{sLB}
v_lshrrev_b32 v3, 1, v{vL}
v_lshl_add_u32 v{vLE}, v3, 2, s{sLB}
v_and_b32 v2, 1, v{vL}
v_lshlrev_b32 v{vHP}, 4, v2
v_lshrrev_b32 v3, 1, v0
v_mul_u32_u24 v3, {CHP}, v3
v_add_u32 v{vCH}, v3, v2
v_mul_u32_u24 v{vN48}, {4*R}, v{vNODE}
s_lshl_b32 s{sT}, s{sW}, 2
v_lshl_add_u32 v{vEN}, v{vS}, 5, s{sT}
v_lshl_add_u32 v{vFA}, v{vL}, 5, s{sEB}
s_cmp_eq_u32 s{sW}, 7
s_cselect_b32 s{sEW}, 0, 1""")
    if XP:
        assert ROT == 2
        e(f"""s_lshr_b32 s{sT}, s{sKB}, 5
s_mul_i32 s{sT}, s{sT}, {1250 - 32}
s_add_u32 s{sT}, s{sT}, s{sKB}
s_lshl3_add_u32 s{sT}, s{sT}, s{sW}
s_lshl_b32 s{sT}, s{sT}, 7
v_lshl_add_u32 v{vXA}, v{vL}, 15, s{sT}""")
        if XOFF: e(f"v_subrev_u32 v{vXA}, {XOFF*1024}, v{vXA}\nv_add_u32 v2, {N*1024}, v{vXA}\nv_min_u32 v{vXA}, v{vXA}, v2")

def list_fill():
    for i in range(4): e(f"v_mov_b32 v{tY+i}, {hex(OOB)}")
    e(f"v_add_u32 v2, s{sLB}, v{vL16}\nds_write_b128 v2, {vr(tY,4)}")

def common_init():
    e(f"""s_mov_b32 s{mU0}, 0x0f0f0f0f
s_mov_b32 s{mU0+1}, 0x0f0f0f0f
s_mov_b32 s{mU1}, 0xf0f0f0f0
s_mov_b32 s{mU1+1}, 0xf0f0f0f0
s_mov_b32 s{sMASK}, 0xfffffc00
s_mov_b32 s{sDUM}, {hex(DUMMY)}
s_mov_b32 s{sEFM}, 0xffe0
s_mov_b32 s{sW0}, 0
s_mov_b32 s{sMAXC}, 0""")
    for i in range(40): e(f"v_mov_b32 v{ACC+i}, 0")
    for i in range(8): e(f"v_mov_b32 v{EFA+i}, 0")
    e(f"v_mov_b32 v{vMAP}, 0\nv_mov_b32 v{vPOS}, 0\ns_cmp_lt_u32 s{2 if SPR else sKB}, {N - 39*256}\ns_cbranch_scc1 L_map40")
    for r, p in enumerate(posmap(MAP39)): e(f"v_writelane_b32 v{vMAP}, {p}, {r}")
    e("s_branch L_mapd\nL_map40:")
    for r, p in enumerate(posmap(MAP40)): e(f"v_writelane_b32 v{vMAP}, {p}, {r}")
    e("L_mapd:")
    e(f"""v_and_b32 v2, 3, v{vL}
v_lshrrev_b32 v3, 2, v{vL}
v_lshl_add_u32 v{vQ}, v2, 4, v3
v_lshrrev_b32 v2, 5, v{vL}
v_lshlrev_b32 v{vH16}, 4, v2""")

def epi_addr():
    e(f"""s_and_b32 s{sT}, s{sW}, 3
s_lshl_b32 s58, s{sT}, 9
s_add_u32 s58, s58, {L_WM}
v_lshrrev_b32 v3, 4, v{vL}
v_mul_u32_u24 v2, {2048 - 256}, v3
v_add3_u32 v{vBA}, v2, s58, v{vL16}
s_lshr_b32 s58, s{sW}, 2
v_and_b32 v2, 15, v{vL}
v_mul_u32_u24 v{vAA}, {TROW}, v2
v_lshl_add_u32 v{vAA}, v3, 4, v{vAA}
s_mul_i32 s59, s58, {80*TROW}
v_add_u32 v{vAA}, s59, v{vAA}
v_lshlrev_b32 v{vOA}, 18, v3
v_lshl_add_u32 v{vOA}, v2, 4, v{vOA}
s_mul_i32 s58, s58, {20*256*1024}
s_lshl_b32 s59, s{2 if SPR else sKB}, 10
s_add_u32 s58, s58, s59
s_lshl_b32 s59, s{sT}, 8
s_add_u32 s58, s58, s59
v_add_u32 v{vOA}, s58, v{vOA}
v_mov_b32 v{vCA}, {L_CNT}""")

def build_cg():
    e(f"""v_and_b32 v2, 0x30, v{vL}
v_and_b32 v3, 3, v{vL}
v_lshl_add_u32 v2, v3, 2, v2
v_bfe_u32 v7, v{vL}, 2, 2
v_add_lshl_u32 v2, v2, v7, 1
ds_write_b16 v2, v{X+9} offset:{L_CG}
v_lshlrev_b32 v3, 3, v3""")
    for k in range(4): e(f"ds_read_b64 {vr(CG+2*k,2)}, v3 offset:{L_CG + 32*k}")

def build_wm(fM=T0 + 32):
    wM = TP + 16
    e(f"""v_lshrrev_b32 v7, 5, v0
v_and_b32 v3, 31, v{vL}
v_lshlrev_b32 v7, 11, v7
v_add_u32 v7, {L_WM}, v7
v_lshl_add_u32 v2, v3, 3, v7""")
    for m in range(8): e(f"ds_read_b64 {vr(wM+2*m,2)}, v2 offset:{256*m}")
    e(f"""s_mov_b32 s58, 0x05040100
s_mov_b32 s59, 0x07060302
v_bfe_u32 v3, v0, 3, 2
v_lshl_add_u32 v7, v3, 9, v7
v_and_b32 v3, 7, v0
v_lshl_add_u32 v7, v3, 5, v7
v_mov_b32 v5, {L_CNT}
v_mov_b32 v6, 1
s_waitcnt lgkmcnt(0)""")
    for q in range(4):
        for mp in range(4):
            e(f"v_perm_b32 v{fM+4*q+mp}, v{wM+2*(2*mp+1)+q//2}, v{wM+2*(2*mp)+q//2}, s{58 + q%2}")
        e(f"ds_write_b128 v7, {vr(fM+4*q,4)} offset:{256*(q%2) + 16*(q//2)}")
    e("s_mov_b64 exec, 1\nds_add_u32 v5, v6\ns_mov_b64 exec, -1")

def build_wb(wR=TP, t2=TP + 16):
    e(f"""v_and_b32 v3, 31, v{vL}
v_lshlrev_b32 v2, 7, v{vH16}
v_lshl_add_u32 v2, v3, 2, v2
v_add_u32 v3, 128, v2""")
    for u in range(2):
        for m in range(0, 8, 2): e(f"ds_read2st64_b32 {vr(wR+8*u+m,2)}, v{2+u} offset0:{L_WR//256 + m} offset1:{L_WR//256 + m + 1}")
    e(f"s_mov_b32 s{sK}, {f32(-LOG2E)}\ns_mov_b32 s{sK+1}, {f32(-LOG2E)}")
    for u in range(2):
        for mp in range(4):
            a0, a1 = wR + 8*u + 2*mp, wR + 8*u + 2*mp + 1
            e(f"""s_waitcnt lgkmcnt({7 - 4*u - mp})
v_lshlrev_b32 v{t2}, 16, v{a0}
v_lshlrev_b32 v{t2+1}, 16, v{a1}
v_and_b32 v{t2+2}, 0xffff0000, v{a0}
v_and_b32 v{t2+3}, 0xffff0000, v{a1}
v_pk_mul_f32 {vr(t2,2)}, {vr(t2,2)}, {P(sK)}
v_pk_mul_f32 {vr(t2+2,2)}, {vr(t2+2,2)}, {P(sK)}
v_cvt_pk_bf16_f32 v{WB+4*(2*u)+mp}, v{t2}, v{t2+1}
v_cvt_pk_bf16_f32 v{WB+4*(2*u+1)+mp}, v{t2+2}, v{t2+3}""")

def poll():
    e(f"""L_pa:
buffer_load_dword v6, v{vTA}, {S(WS)}, 0 offen sc1
s_waitcnt vmcnt(0)
L_pw:
v_xor_b32 v{TP}, v6, v{vREF}
v_cmpx_gt_u32 vcc, {"0x20000000" if E2 >= 0 else "0x40000000"}, v{TP}
s_cbranch_execz L_pda
{f"s_sleep {PSL}" if PSL else ""}
s_sub_u32 s{sRem}, s{sRem}, 1
s_cbranch_scc0 L_pa
s_endpgm
L_exp_more:
v_add_u32 v6, {8*UNR}, v6
v_subrev_u32 v4, {2*UNR}, v4
s_branch L_exp
L_pda:
s_mov_b64 exec, -1""")

def second_row(tag):
    e(f"""s_cmp_eq_u32 s{sW0}, s{sEW}
s_cbranch_scc0 L_no2
buffer_store_dwordx4 {vr(vROW,4)}, v{vRW}, {S(WS)}, s{sFIN} offen sc1
L_no2:""")

def phase_a():
    SA, SB, SC, SD = 64, 68, 72, 76
    m2, mE = 60, 62; mT = 34; mY = 35
    aD, aS = TP, TP + 3
    aR = TP + 8
    aK, aB = TP + 20, TP + 23
    aC, aST = TP + 28, X
    aE, aO, aE1 = X + 12, X + 16, X + 20
    vE4, vE8, vY16, vP16 = X + 5, X + 6, X + 7, X + 8
    e(f""".globl {KNAME}
.p2align 8
.type {KNAME},@function
{KNAME}:
s_cmp_ge_u32 s2, 256
s_cbranch_scc1 L_end""")
    if STAMP: e("s_memrealtime s[84:85]")
    if SLOWT:
        e(f"s_and_b32 s58, s2, 15\ns_cmp_eq_u32 s58, {SLOWT-1}\ns_cbranch_scc0 L_slt\ns_sleep 127\ns_sleep 127\ns_lshr_b32 s58, s2, 7\ns_cbranch_scc0 L_slt\ns_sleep 127\ns_sleep 127\nL_slt:")
    e(f"""s_load_dwordx16 s[36:51], s[0:1], 0
s_load_dwordx2 s[52:53], s[0:1], 64
s_load_dwordx2 s[56:57], s[0:1], 80
v_lshrrev_b32 v2, 6, v0
v_and_b32 v{vL}, 63, v0
v_readfirstlane_b32 s{sW}, v2
s_and_b32 s{sKB}, s2, 7
s_lshl_b32 s{sKB}, s{sKB}, 5
s_lshr_b32 s{sT}, s2, 3
s_or_b32 s{sKB}, s{sKB}, s{sT}
v_lshlrev_b32 v7, 3, v0
v_mov_b32 v2, 0
v_mov_b32 v3, 0
v_mov_b32 v4, {L_CNT}
ds_write_b64 v7, v[2:3]
ds_write_b32 v4, v2
v_lshlrev_b32 v{vL16}, 4, v{vL}
s_mul_i32 s{sT}, s{sW}, 160
v_add_u32 v6, s{sT}, v{vL}
v_lshlrev_b32 v{vE4}, 2, v6
v_lshlrev_b32 v{vE8}, 3, v6
s_mul_i32 s{sT}, s{sW}, {120*16}
v_add_u32 v{vY16}, s{sT}, v{vL16}
s_mul_i32 s{sT}, s{sW}, {320*16}
v_add_u32 v{vP16}, s{sT}, v{vL16}
s_cmp_lt_u32 s{sW}, 7
s_cselect_b32 s{m2}, -1, 3
s_mov_b32 s{m2+1}, 0
s_cselect_b64 {P(mE)}, -1, 15
s_cselect_b32 s{mT}, -1, 0xff
s_cselect_b32 s{mY}, 0xffffff, s{mT}
s_mul_i32 s58, s{sKB}, {CH*4}
s_mul_i32 s59, s{sKB}, {CH*8}
s_lshl_b32 s{sS0}, s{sKB}, 6
s_add_u32 s{sS0}, s{sS0}, {WS_TBL}
s_waitcnt lgkmcnt(0)""")
    def ld3(op, d, n, va, Sd, so, step):
        for k in range(3):
            if k == 2: e(f"s_mov_b64 exec, {P(m2)}")
            e(f"{op} {vr(d[k], n)}, v{va}, {S(Sd)}, s{so} offen offset:{step*k} {INS}")
        e("s_mov_b64 exec, -1")
    def cpf():
        e(f"""s_getpc_b64 s[82:83]
L_pc:
s_lshr_b32 s80, s2, 3
s_lshl_b32 s80, s80, 3
s_add_u32 s80, s80, s{sW}
s_lshl_b32 s81, s80, 6
s_min_u32 s81, s81, L_end-L_pc
s_load_dword s3, s[82:83], s81""")
        if RTCH: e(f"""s_and_b32 s81, s2, 7
s_lshl_b32 s81, s81, 8
s_add_u32 s81, s81, s80
s_lshl_b32 s81, s81, 7
s_add_u32 s81, s81, {WS_TBL}
s_load_dword s3, s[56:57], s81
s_add_u32 s81, s81, 64
s_load_dword s3, s[56:57], s81""")
        if CPF & 2: e(f"""s_lshl_b32 s81, s80, 7
s_load_dword s3, s[50:51], s81
s_add_u32 s81, s81, 64
s_load_dword s3, s[50:51], s81""")
        if RPOS >= 3 and not WBE and CPF & 4: e("""s_lshl_b32 s81, s80, 4
s_load_dword s3, s[46:47], s81
s_and_b32 s81, s80, 64
s_load_dword s3, s[48:49], s81""")
    if TLB & 1:
        e(f"""s_mul_i32 s80, s{sKB}, {CH*32}
s_load_dword s3, s[44:45], s80
s_load_dword s3, s[42:43], s59
s_load_dword s3, s[38:39], s58""")
    if TLB & 2:
        e(f"""s_mul_i32 s80, s{sKB}, {CHP*32}
s_load_dword s3, s[56:57], s80
s_load_dword s3, s[56:57], s{sS0}""")
    srd(SA, 40, E * 4)
    ld3("buffer_load_dword", [aD, aD+1, aD+2], 1, vE4, SA, 58, 256)
    if CPF and CPOS == 2: cpf()
    srd(SB, 38, E * 4)
    ld3("buffer_load_dword", [aS, aS+1, aS+2], 1, vE4, SB, 58, 256)
    srd(SC, 42, E * 8)
    ld3("buffer_load_dwordx2", [aR, aR+4, aR+8], 2, vE8, SC, 59, 512)
    if CPF and CPOS == 0: cpf()
    srd(WS, 56, WS_SIZE)
    TA = [f"v_lshrrev_b32 v5, 1, v0", f"s_lshr_b32 s59, s{sKB}, 4", f"s_mul_i32 s59, s59, {16384 - 64}", f"s_lshl2_add_u32 s59, s{sKB}, s59",
          f"s_add_u32 s59, s59, {WS_TBL}", f"v_lshl_add_u32 v{vTA}, v5, 6, s59"]
    def side_a():
        if GPOS == 2:
            for x in TA: e(x)
            e(f"buffer_load_dword v{vREF}, v{vTA}, {S(WS)}, 0 offen {RSC}")
        e(f"""v_lshrrev_b32 v7, 2, v{vL}
v_mul_u32_u24 v7, {16384 - 64}, v7
v_add_u32 v{vRW}, v7, v{vL16}
s_cmp_eq_u32 s{sW}, 7
s_cselect_b32 s59, s{sS0}, 0x40000000
v_add_u32 v7, s59, v{vRW}
buffer_load_dwordx4 {vr(aO,4)}, v7, {S(WS)}, 0 offen {RSC}""")
    def side_b():
        srd(SB, 46, 16 * C * 2); srd(SA, 48, 128)
        e(f"""v_lshlrev_b32 v7, 1, v{vL}
s_lshl_b32 s58, s{sW}, 9
s_add_u32 m0, s58, {L_WR}
s_mov_b32 exec_hi, 0
buffer_load_dwordx4 v{vL16}, {S(SB)}, s58 offen lds
s_mov_b32 exec_hi, -1
buffer_load_ushort v{X+9}, v7, {S(SA)}, 0 offen""")
    def side_loads(): side_a(); side_b()
    nS = 0 if RPOS == 3 else 1 if RPOS >= 4 else 3 + (GPOS == 2)
    if WBE: assert RPOS == 4 and GPOS == 1; nS = 3
    if RPOS == 0: side_loads()
    if RPOS == 5: side_a()
    srd(SD, 44, E * 32)
    if not EFF: e("s_barrier")
    if RPOS == 1: side_loads()
    if WBE: side_b()
    e(f"s_add_u32 m0, s{sT}, {A_EF}\ns_mul_i32 s58, s{sKB}, {CH*32}")
    for k in range(4):
        if EFF and k == EFF: e("s_barrier")
        e(f"buffer_load_dwordx4 v{vP16}, {S(SD)}, s58 offen offset:{1024*k} {INT} lds")
    e(f"""s_add_u32 m0, s{sT}, {A_EF + 4096}
s_add_u32 s58, s58, 4096
s_mov_b64 exec, {P(mE)}
buffer_load_dwordx4 v{vP16}, {S(SD)}, s58 offen {INT} lds
s_mov_b64 exec, -1
v_mov_b32 v6, 1""")
    if RPOS == 2: side_loads()
    if RPOS == 4: side_a()
    if CPF and CPOS == 1: cpf()
    stamp((1, 2))
    e(f"s_waitcnt vmcnt({11+nS})")
    stamp((2, 2))
    for k in range(3):
        if k == 2: e(f"s_mov_b64 exec, {P(m2)}")
        e((f"v_bfe_u32 v2, v{aD+k}, 3, 5\nv_and_b32 v3, 7, v{aD+k}\nv_lshl_or_b32 v2, v3, 5, v2" if SPR else f"v_and_b32 v2, 255, v{aD+k}") + f"\nv_lshlrev_b32 v{aB+k}, 2, v2\nds_add_rtn_u32 v{aK+k}, v{aB+k}, v6 offset:{A_HIST}")
    e(f"s_mov_b64 exec, -1\ns_movk_i32 s{sT2}, {RMUL}\ns_waitcnt vmcnt({8+nS})")
    if NF:
        k1 = (1 << 22) // W1; k2 = int((1 << 22) * (R - NF) / (N - NF * W1)) if not WL else int((1 << 22) * (R - NF - 1) / (N - NF * W1 - WL)); c2 = NF * (1 << 22) - NF * W1 * k2
        assert min(9999 * k1, 9999 * k2 + c2) >> 22 == R - 1 and c2 > 0
        e(f"s_movk_i32 s{sT2}, {k2}\nv_mov_b32 v5, {c2}")
    e(f"s_movk_i32 s59, {-RSTEP}")
    for k in range(3):
        t = aS + k
        if ROT == 2:
            e(f"v_bfe_u32 v3, v{aB+k}, {RG}\nv_mad_i32_i24 v2, v3, s59, v{aS+k}\nv_add_u32 v3, {N}, v2\nv_min_u32 v2, v2, v3")
            t = 2
        if NF: e(f"v_mul_u32_u24 v3, {k1}, v{t}\nv_mad_u32_u24 v2, v{t}, s{sT2}, v5\nv_min_u32 v2, v2, v3\nv_lshrrev_b32 v2, 22, v2")
        else: e(f"v_mul_u32_u24 v2, s{sT2}, v{t}\nv_lshrrev_b32 v2, {RSH}, v2")
        e(f"""v_lshrrev_b32 v3, 8, v{aD+k}
v_mad_u32_u24 v2, v3, {R}, v2
v_lshl_or_b32 v{aR+4*k+2}, v{aS+k}, 10, v2""")
    e(f"""s_waitcnt lgkmcnt(0)
s_barrier
ds_read_b128 {vr(aC,4)}, v{vL16} offset:{A_HIST}
s_waitcnt lgkmcnt(0)
v_add_u32 v{aST+2}, v{aC}, v{aC+1}
v_add_u32 v{aST+3}, v{aST+2}, v{aC+2}
v_add_u32 v2, v{aST+3}, v{aC+3}
v_mov_b32 v3, v2""")
    scan(3, [f"v_lshlrev_b32 v4, 2, v{vE8}"] + (TA if GPOS != 2 else []))
    e(f"""v_sub_u32 v{aST}, v3, v2
v_add_u32 v{aST+1}, v{aST}, v{aC}
v_add_u32 v{aST+2}, v{aST}, v{aST+2}
v_add_u32 v{aST+3}, v{aST}, v{aST+3}
ds_write_b128 v{vL16}, {vr(aST,4)} offset:{A_START}""")
    for k in range(3):
        if k == 2: e(f"s_mov_b64 exec, {P(m2)}")
        e(f"ds_read_b32 v{aB+k}, v{aB+k} offset:{A_START}")
    e("s_mov_b64 exec, -1")
    if GPOS == 0: e(f"buffer_load_dword v{vREF}, v{vTA}, {S(WS)}, 0 offen {RSC}")
    for k in range(4): e(f"v_lshl_or_b32 v{aE+k}, v{aC+k}, 16, v{aST+k}")
    e(f"s_mov_b32 s{sT2}, {A_YM}\ns_waitcnt vmcnt({6 if WBE else 5 + nS + (GPOS == 0)}) lgkmcnt(0)")
    for k in range(3):
        if k == 2: e(f"s_mov_b64 exec, {P(m2)}")
        e(f"""v_add_lshl_u32 v2, v{aB+k}, v{aK+k}, 1
v_add_u32 v3, {2048*k}, v4
ds_write_b16 v2, v3 offset:{A_INV}
v_mad_u32_u24 v2, v2, 6, s{sT2}
ds_write2_b32 v2, v{aR+4*k}, v{aR+4*k+1} offset0:0 offset1:1
ds_write_b32 v2, v{aR+4*k+2} offset:8""")
    e(f"""s_mov_b64 exec, -1
v_lshrrev_b32 v2, 4, v{vP16}
v_and_b32 v2, 0xffe, v2
v_and_b32 v5, 1, v{vL}
v_lshlrev_b32 v5, 4, v5
s_waitcnt lgkmcnt(0)
s_barrier""")
    stamp((1, 1), (3, 2))
    aI = TP + 20
    if GPOS == 1: e(f"buffer_load_dword v{vREF}, v{vTA}, {S(WS)}, 0 offen {RSC}")
    if RPOS == 3: side_a()
    if RPOS >= 3 and BPOS == 1 and not WBE: side_b()
    for k in range(2): e(f"ds_read_b128 {vr(aR+4*k,4)}, v{vY16} offset:{A_YM + 1024*k}")
    for k in range(5): e(f"ds_read_u16 v{aI+k}, v2 offset:{A_INV + 64*k}")
    srd(XS, 36, N * 1024); srd(OS, 52, 0 if NOST else N * 1024)
    common_init()
    if IPOS & 1 and not DLY & 1: lane_helpers()
    if IPOS & 2 and not DLY & 2: epi_addr()
    if RPOS >= 3 and BPOS == 0: side_b()
    srd(SC, 50, C * C * 2)
    e("s_waitcnt lgkmcnt(0)")
    for k in range(5): e(f"v_or_b32 v{aI+k}, v{aI+k}, v5")
    if WBE: build_wb(T0, T0 + 16); build_cg()
    e(f"""s_mul_i32 s{sT2}, s{sKB}, {CHP*12}
s_add_u32 s{sT2}, s{sT2}, {WS_YM}
s_mul_i32 s58, s{sKB}, {CHP*32}
s_add_u32 s59, s58, 4096
s_waitcnt vmcnt({EW if EW >= 0 else 2 if WBE else 3 if RPOS == 5 else 4 if RPOS >= 2 else int(GPOS != 2)})
s_barrier""")
    stamp((4, 2))
    aF = T0
    for k in range(5):
        if k == 4: e(f"s_mov_b64 exec, {P(mE)}")
        e(f"ds_read_b128 {vr(aF+4*k,4)}, v{aI+k} offset:{A_EF}")
    e("s_mov_b64 exec, -1")
    if DLY & 1: lane_helpers()
    if DLY & 2: epi_addr(); e(f"s_mul_i32 s58, s{sKB}, {CHP*32}\ns_add_u32 s59, s58, 4096")
    if EWL >= 0: e(f"s_waitcnt vmcnt({0 if WBE else EWL})")
    e(f"""buffer_store_dwordx4 {vr(aR,4)}, v{vY16}, {S(WS)}, s{sT2} offen {PST}
s_mov_b32 exec_hi, s{mY}
{"s_waitcnt vmcnt(0)" if SCAP == 1 else ""}
buffer_store_dwordx4 {vr(aR+4,4)}, v{vY16}, {S(WS)}, s{sT2} offen offset:1024 {PST}
s_mov_b32 exec_hi, -1""")
    for k in range(5):
        if k == E2:
            assert 0 <= EWL <= 2
            e("s_mov_b32 s3, 0xe0000000")
            for j in range(4):
                e(f"v_and_or_b32 v{aE+j}, v{aO+j}, s3, v{aE+j}\nv_xor_b32 v{vROW+j}, s3, v{aE+j}\nv_xor_b32 v{aE1+j}, 0x80000000, v{aE+j}\nv_xor_b32 v{aE+j}, 0xc0000000, v{aE+j}")
            e(f"""s_cmp_eq_u32 s{sW}, 7
s_waitcnt vmcnt({E2})
s_barrier
s_cbranch_scc0 L_nrow1
buffer_store_dwordx4 {vr(aE1,4)}, v{vRW}, {S(WS)}, s{sS0} offen sc1
L_nrow1:""")
            if TBAR: e("s_barrier")
        if k == 4: e(f"s_mov_b32 exec_lo, s{mT}\ns_mov_b32 exec_hi, s{mE+1}")
        if SCAP and k + 2 >= SCAP: e(f"s_waitcnt vmcnt({SCAP-1})")
        e(f"s_waitcnt lgkmcnt({4-k})\nbuffer_store_dwordx4 {vr(aF+4*k,4)}, v{vP16}, {S(WS)}, s{58 + k//4} offen offset:{1024*(k%4)} {PST}")
    e("s_mov_b64 exec, -1")
    stamp((5, 2))
    e(f"s_mov_b32 s{sRem}, {SPIN}\ns_mov_b32 s{sFIN}, s{sS0}\ns_mov_b32 s59, 0xc0000000\ns_waitcnt vmcnt(7)")
    for k in range(4 if E2 < 0 else 0):
        e(f"v_and_or_b32 v{aE+k}, v{aO+k}, s59, v{aE+k}\nv_xor_b32 v{vROW+k}, 0x40000000, v{aE+k}\nv_xor_b32 v{aE+k}, 0x80000000, v{aE+k}")
    if not WBE: build_cg()
    if not IPOS & 1 and not PD & 1 and not POLL2 & 2: lane_helpers()
    if not IPOS & 2 and not PD & 2 and not POLL2 & 4: epi_addr()
    e(f"s_lshl_b32 s58, s{sW}, 12\ns_add_u32 m0, s58, {L_WM}\ns_cmp_eq_u32 s{sW}, 7\ns_waitcnt vmcnt(0) lgkmcnt(0)")
    stamp((6, 2))
    e(f"""s_barrier
s_cbranch_scc0 L_nrow2
buffer_store_dwordx4 {vr(aE,4)}, v{vRW}, {S(WS)}, s{sS0} offen sc1
L_nrow2:""")
    if TBAR: e("s_barrier")
    stamp((2, 1))
    def wdma_m():
        for k in range(4): e(f"buffer_load_dwordx4 v{vL16}, {S(SC)}, s58 offen offset:{1024*k} lds")
    def xgap():
        m = ((1 << XG) - 1) << XP
        e(f"s_mov_b32 exec_lo, {hex(m & 0xffffffff)}\ns_mov_b32 exec_hi, {hex(m >> 32)}\nbuffer_load_dword v{vJUNK}, v{vXA}, {S(XS)}, 0 offen\ns_mov_b64 exec, -1")
    if E2 >= 0: e(f"buffer_load_dword v6, v{vTA}, {S(WS)}, 0 offen sc1")
    if XG and XGP == 0: xgap()
    if WMD == 0: wdma_m()
    if XG and XGP == 1: xgap()
    if not WBE: build_wb()
    if WMD == 1: wdma_m()
    if PD & 1: lane_helpers()
    if PD & 2: epi_addr()
    if PD & 4: e(f"s_waitcnt vmcnt({1 if XG and XGP == 1 else 0})"); build_wm(T0)
    list_fill()
    e(f"v_and_b32 v7, 1, v{vL}")
    if PSF: e(f"s_sleep {PSF}")
    if E2 >= 0: e("s_waitcnt vmcnt(4)\ns_branch L_pw")
    poll()
    if E2 >= 0: e(f"buffer_load_dword v{vP2}, v{vTA}, {S(WS)}, 0 offen sc1")
    stamp((1, 3), (3, 1))
    if E2 < 0: stamp((2, 8))
    e(f"v_bfe_u32 v{vPE}, v6, 16, 11\nv_and_b32 v5, 0xffff, v6\nv_sub_u32 v2, v{vPE}, v7")
    fill = [[], [f"v_add_u32 v5, v5, v{vCH}"], [], [], []]
    for m, f in zip(DPPS[1:], fill):
        if m is not DPPS[1]:
            for x in f: e(x)
            e(f"s_nop {1 - len(f)}")
        e(f"v_add_u32_dpp v{vPE}, v{vPE}, v{vPE} {m} bank_mask:0xf")
    e(f"""v_sub_u32 v3, v{vPE}, v2
v_min_u32 v4, {CAPW}, v{vPE}
v_lshl_add_u32 v6, v3, 2, s{sLB}
v_sub_u32 v4, v4, v3
v_sub_u32 v{vDL}, v5, v3
v_sub_u32 v{vPS}, v3, v7""")

NEF = (CAPW + 31) // 32
def phase_b():
    e("L_exp:")
    for k in range(UNR):
        e(f"v_cmpx_lt_i32 vcc, {2*k}, v4\nds_write_b32 v6, v5 offset:{8*k}\nv_add_u32 v5, 2, v5")
    e(f"""v_cmpx_lt_i32 vcc, {2*UNR}, v4
s_cbranch_execnz L_exp_more
L_exp_done:
s_mov_b64 exec, -1""")
    for k in (3, 2, 1, 0): e(f"ds_read_b32 v{tI+k}, v{vLY} offset:{256*k}")
    e(f"""v_readlane_b32 s{sCW}, v{vPE}, 63
s_mov_b32 s{sT}, {WS_YM}
s_sub_i32 s{sNT}, s{sCW}, s{sW0}
s_cmp_le_i32 s{sNT}, 192""")
    stamp((2, 3))
    for i, k in enumerate((3, 2, 1, 0)):
        if k == 3: e("s_cbranch_scc1 L_sk3")
        e(f"s_waitcnt lgkmcnt({3-i})\nv_mul_u32_u24 v{tI+k}, 12, v{tI+k}\nbuffer_load_dwordx3 {vr(tY+4*k,3)}, v{tI+k}, {S(WS)}, s{sT} offen {PSC}")
        if k == 3: e("L_sk3:")
    if YBAR == 2: e("s_barrier")
    for k in range(NEF): e(f"ds_read_b32 v{tI+4+k}, v{vLE} offset:{128*k}")
    e(f"s_max_i32 s{sNT}, s{sNT}, 0\ns_min_i32 s{sNT}, s{sNT}, {CAPW}")
    if E2 >= 0:
        e(f"""s_cmp_lg_u32 s{sW0}, 0
s_cbranch_scc1 L_p2d
s_waitcnt vmcnt(3)
L_p2:
v_xor_b32 v{TP}, v{vP2}, v{vREF}
v_lshlrev_b32 v{TP}, 1, v{TP}
v_cmpx_gt_u32 vcc, 0x40000000, v{TP}
s_cbranch_execz L_p2d
buffer_load_dword v{vP2}, v{vTA}, {S(WS)}, 0 offen sc1
s_sub_u32 s{sRem}, s{sRem}, 1
s_waitcnt vmcnt(0)
s_cbranch_scc0 L_p2
s_endpgm
L_p2d:
s_mov_b64 exec, -1""")
        stamp((2, 8))
    if YBAR == 1 and (E2 < 0 or Y2): e("s_barrier")
    assert YBAR == 1
    def ef_dma(k):
        part = k == NEF - 1 and CAPW % 32
        e(f"s_add_u32 m0, s{sEB}, {L_EF + 1024*k}\ns_cmp_le_u32 s{sNT}, {32*(k+1)}")
        if part:
            assert CAPW % 32 > 16
            e(f"s_mov_b32 exec_hi, {hex((1 << (2 * (CAPW % 32) - 32)) - 1)}")
        e(f"buffer_load_dwordx4 v{tI+4+k}, {S(WS)}, 0 offen {PSC} lds")
        if part: e("s_mov_b32 exec_hi, -1")
    for k in range(EF1):
        e(f"s_waitcnt lgkmcnt({NEF-1-k})\nv_lshl_or_b32 v{tI+4+k}, v{tI+4+k}, 5, v{vHP}")
        ef_dma(k)
    e("s_waitcnt lgkmcnt(0)")
    for k in range(EF1, NEF): e(f"v_lshl_or_b32 v{tI+4+k}, v{tI+4+k}, 5, v{vHP}")
    for k in range(4):
        e(f"s_sub_i32 s{sT2}, s{sNT}, {64*k}\nv_cmp_gt_i32 {P(mV+2*k)}, s{sT2}, v{vL}")
    e(f"v_mov_b32 v3, s{sCW}\nv_mov_b32 v4, {L_MAXC}\nds_max_u32 v4, v3\nv_mov_b32 v6, 1")
    if TH: e("s_mov_b64 exec, 1\nds_add_u32 v4, v3 offset:4\ns_mov_b64 exec, -1")
    if SLIM: e(f"v_lshrrev_b32 v5, 2, v{vFA}\nv_add_u32 v5, {L_YI}, v5")
    for i, k in enumerate((3, 2, 1, 0)):
        e(f"""s_waitcnt vmcnt({EF1 + 3 - i})
s_mov_b64 exec, {P(mV+2*k)}
v_and_b32 v2, 0x3ff, v{tY+4*k+2}
v_lshlrev_b32 v{tY+4*k+3}, 2, v2
ds_add_rtn_u32 v{tR+k}, v{tY+4*k+3}, v6 offset:{L_HIST}""")
        if SLIM: e(f"ds_write_b64 v5, {vr(tY+4*k,2)} offset:{512*k}")
    e("s_mov_b64 exec, -1")
    if SLIM:
        for k in range(4): e(f"v_lshrrev_b32 v2, 7, v{tY+4*k+2}\nv_add_u32 v3, {2048*k}, v{vFA}\nv_lshl_or_b32 v{tY+4*k+2}, v3, 12, v2")
    e("s_waitcnt lgkmcnt(0)\ns_barrier")
    stamp((3, 3))
    dg = TP + 4
    for j in range(R // 4): e(f"ds_read_b128 {vr(dg+4*j,4)}, v{vN48} offset:{L_HIST + 16*j}")
    e("ds_read_b64 v[4:5], v4" if TH else "ds_read_b32 v4, v4")
    if BP == 0: second_row("a")
    e(f"s_cmp_le_u32 s{sNT}, {32*EF1}")
    global ef_late
    def ef_late():
        e(f"s_mul_i32 s58, s{sW}, {CAPW*32}")
        for k in range(EF1, 5): e(f"s_add_u32 m0, s58, {L_EF + 1024*k}\ns_nop 0\nbuffer_load_dwordx4 v{vROW + k - EF1}, {S(WS)}, 0 offen {PSC} lds")
    if DEF:
        e("s_nop 1")
        for k in range(EF1, 5): e(f"v_mov_b32 v{vROW + k - EF1}, v{tI+4+k}")
    for k in range(5 if DEF else EF1, NEF):
        if DEF and k == 5: e(f"s_cmp_le_u32 s{sNT}, 160")
        e("s_cbranch_scc1 L_efd")
        ef_dma(k)
    e("L_efd:")
    def xpf(pos):
        if XP and XPOS == pos:
            if XL:
                assert pos == 1 and TH
                e(f"s_cmp_lt_u32 s{sT2}, {XL}\ns_cselect_b32 s{sT}, 0, 0x40000000\nv_add_u32 v{vXA}, s{sT}, v{vXA}")
            e(f"""s_mov_b32 exec_lo, {hex((1 << min(XP, 32)) - 1)}
s_mov_b32 exec_hi, {hex((1 << max(XP - 32, 0)) - 1)}
buffer_load_dword v{vJUNK}, v{vXA}, {S(XS)}, 0 offen
s_mov_b64 exec, -1""")
    xpf(0)
    e(f"v_cmp_gt_u32 vcc, 40, v{vL}\ns_waitcnt lgkmcnt(0)\nv_readfirstlane_b32 s{sT}, v4")
    if TH: e(f"v_readfirstlane_b32 s{sT2}, v5")
    e(f"v_add_u32 v3, v{dg}, v{dg+1}")
    for j in range(2, R, 2): e(f"v_add3_u32 v3, v3, v{dg+j}, v{dg+j+1}")
    e(f"""v_lshl_or_b32 v3, v3, 6, v{vNODE}
v_cndmask_b32 v3, 0, v3, vcc
s_max_u32 s{sMAXC}, s{sMAXC}, s{sT}
s_cmp_lg_u32 s{sW0}, 0
s_cbranch_scc1 L_havepos""")
    for j in range(5): e(f"v_readlane_b32 s{64+j}, v3, {j}")
    for j in range(5): e(f"v_cmp_lt_u32 {P(70+2*j)}, s{64+j}, v3")
    for j in range(5): e(f"s_bcnt1_i32_b64 s{64+j}, {P(70+2*j)}")
    for j in range(5): e(f"v_readlane_b32 s{70+j}, v{vMAP}, s{64+j}")
    for j in range(5): e(f"v_writelane_b32 v{vPOS}, s{70+j}, {j}")
    e(f"""v_lshlrev_b32 v{vPOS}, 2, v{vPOS}
L_havepos:
s_mov_b64 exec, 31
ds_write_b32 v{vPOS}, v3 offset:{L_ENTRY}
s_mov_b64 exec, -1
v_lshlrev_b32 v4, 2, v{vL}
v_and_b32 v6, 7, v{vL}
v_cmp_gt_u32 s[34:35], s{sW}, v6
s_and_b64 s[34:35], s[34:35], vcc
v_cmp_gt_u32 vcc, {5*R}, v{vL}""")
    if TH:
        e(f"s_cmp_gt_u32 s{sT2}, {TH}\ns_cselect_b32 s{sT}, {4*(R-TS)}, 0")
        if TH2: e(f"s_cmp_gt_u32 s{sT2}, {TH2}\ns_cselect_b32 s{sT}, {4*(R-TS-1)}, s{sT}")
        if TL: e(f"s_cmp_lt_u32 s{sT2}, {TL}\ns_cselect_b32 s{sT}, 4, s{sT}")
        e(f"v_add_u32 v{vR4}, s{sT}, v{vR4}\nv_subrev_u32 v2, {4*R}, v{vR4}\nv_min_u32 v{vR4}, v{vR4}, v2")
    xpf(1)
    e("s_waitcnt lgkmcnt(0)\ns_barrier")
    stamp((4, 3), (1, 7))
    if STAMP == 7: e("s_waitcnt vmcnt(0)")
    stamp((2, 7))
    xpf(4)
    c0, c1, c2, c3 = T0 + 36, T0 + 37, T0 + 38, T0 + 39
    e(f"""ds_read_b32 v{c3}, v{vEN} offset:{L_ENTRY}
ds_read_b32 v4, v4 offset:{L_ENTRY}
s_waitcnt lgkmcnt(1)
v_and_b32 v{c3}, 63, v{c3}
v_mad_u32_u24 v3, v{c3}, {4*R}, v{vR4}
ds_read_b32 v{c0}, v3 offset:{L_HIST}
s_waitcnt lgkmcnt(1)
v_lshrrev_b32 v4, 6, v4
v_cndmask_b32 v{c2}, 0, v4, s[34:35]
v_mul_u32_u24 v{c3}, {4*TROW}, v{c3}
s_waitcnt lgkmcnt(0)
v_cndmask_b32 v{c0}, 0, v{c0}, vcc
v_mov_b32 v{c1}, v{c0}""")
    scan2(c1, c2, [f"v_readlane_b32 s{sROW+j}, v{c3}, {j}" for j in range(5)] + [f"v_lshlrev_b32 v4, {0 if SLIM else 3}, v{vS}", f"s_min_u32 s{sMAXC}, s{sMAXC}, {32*CH}"])
    e(f"""v_sub_u32 v{c0}, v{c1}, v{c0}
v_readlane_b32 s{sS0}, v{c2}, 63
v_readlane_b32 s{sN}, v{c1}, 63
s_lshl_b32 s{sT}, s{sS0}, {ES}
s_add_u32 s{sT}, s{sT}, {L_SW if SLIM else L_ST}
v_lshl_add_u32 v{c0}, v{c0}, {ES}, s{sT}
v_lshl_or_b32 v{c0}, v{c0}, 10, v4
s_mov_b64 exec, vcc
ds_write_b32 v3, v{c0} offset:{L_TBL}
s_mov_b64 exec, -1
s_min_u32 s{sN}, s{sN}, {8*CAPW}
v_lshl_add_u32 v{vEntA}, v{vQ}, {ES}, s{sT}
v_and_b32 v2, 3, v{vL}
v_bfe_u32 v3, v{vL}, 3, 2
v_lshl_add_u32 v2, v3, 2, v2
v_lshl_add_u32 v{vEfA}, v2, {ES}, s{sT}
s_movk_i32 s{sT2}, {7 if SLIM else 0x3ff}""")
    xpf(2)
    e("s_waitcnt lgkmcnt(0)\ns_barrier")
    stamp((5, 3))
    xpf(3)
    for k in range(4): e(f"s_mov_b64 exec, {P(mV+2*k)}\nds_read_b32 v{tI+k}, v{tY+4*k+3} offset:{L_TBL}")
    e("s_mov_b64 exec, -1")
    for k in range(0 if SLIM else 4): e(f"v_add_u32 v{tY+4*k+3}, {2048*k}, v{vFA}")
    e("s_waitcnt lgkmcnt(0)")
    for k in range(4):
        e(f"""s_mov_b64 exec, {P(mV+2*k)}
v_bfi_b32 v{tY+4*k+2}, s{sT2}, v{tI+k}, v{tY+4*k+2}
v_lshrrev_b32 v{tI+k}, 10, v{tI+k}
v_lshl_add_u32 v{tI+k}, v{tR+k}, {ES}, v{tI+k}""")
        e(f"ds_write_b32 v{tI+k}, v{tY+4*k+2}" if SLIM else f"ds_write_b128 v{tI+k}, {vr(tY+4*k,4)}")
    e(f"""s_mov_b64 exec, -1
v_cmp_gt_i32 vcc, s{sN}, v{vQ}
v_mov_b32 v4, s{sDUM}
s_waitcnt lgkmcnt(0)
s_barrier""")
    if BP == 2: second_row("c")
    stamp((4, 1), (6, 3), (5, 8))

if DX: T = [T0, T0]
XB = lambda q: X + 4 * (q % D) if q % D < 8 else T0 + 32 + 4 * (q % D - 8)
lane_of = lambda q: 4 * (q % 16) + (q % 64) // 16
ring = lambda q: RING + q % 16
def xload(q, so): return f"buffer_load_dwordx4 {vr(XB(q),4)}, v{vL16}, {S(XS)}, s{so} offen {XSC}"
def rd_efa(us):
    for u in us: e(f"s_mov_b64 exec, {P((mU0,mU1)[u])}\nds_read_b128 {vr(EFA+4*u,4)}, v{EFAD} offset:{L_EF}")
    e("s_mov_b64 exec, -1")
def rmfma(buf, j):
    u, par = j // 2, j % 2
    d = T[buf] + 16 * par
    return f"v_mfma_f32_32x32x16_bf16 {vr(d,16)}, {vr(EFA+4*u,4)}, {vr(WB+4*(2*u+par),4)}, {'0' if u == 0 else vr(d,16)}"
BST = 16 << ES; EO = 0 if SLIM else 12
rd_ent = lambda: f"ds_read_b32 v{ENT+3}, v{vEntA}" if SLIM else f"ds_read_b128 {vr(ENT,4)}, v{vEntA}"
def mk_efad(src):
    if SLIM: e(f"v_lshrrev_b32 v{src}, 12, v{src}")
    e(f"v_and_or_b32 v{EFAD}, v{src}, s{sEFM}, v{vH16}")
def mk_meta():
    e(f"v_bfe_u32 v3, v{ENT+3}, 3, 14\nv_and_b32 v{ENT+2}, 7, v{ENT+3}\nv_lshlrev_b32 v{ENT+2}, 3, v{ENT+2}\nv_lshl_or_b32 v{ENT+2}, v3, 10, v{ENT+2}")
def rd_y():
    e(f"v_bfe_u32 v3, v{ENT+3}, 17, 11\nv_lshl_add_u32 v3, v3, 3, s{sYI}\nds_read_b64 {vr(ENT,2)}, v3")
def loop():
    e(f"""{rd_ent()}
ds_read_b32 v{EFAD}, v{vEfA} offset:{EO}
ds_read_b32 v2, v{vEfA} offset:{BST+EO}
s_mov_b32 s{sYI}, {L_YI}
s_waitcnt lgkmcnt({2 if SLIM else 0})""")
    if SLIM: mk_meta()
    e(f"v_cndmask_b32 v{META}, v4, v{ENT+2}, vcc")
    if SLIM: e("s_nop 0")
    else: mk_efad(EFAD)
    for q in range(DIST): e(f"v_readlane_b32 s{ring(q)}, v{META}, {lane_of(q)}")
    def dst():
        e(f"s_lshl_b32 s58, s2, 3\ns_add_u32 s58, s58, s{sW}\ns_lshl_b32 s58, s58, 10\ns_add_u32 s58, s58, 0x1100000\nv_lshlrev_b32 v3, 2, v{vL}")
        if DST & 4: e(f"buffer_store_dwordx4 {vr(ENT,4)}, v{vL16}, {S(WS)}, s58 offen")
        else:
            for k in range(3): e(f"buffer_store_dword v{META}, v3, {S(WS)}, s58 offen offset:{256*k}")
    nD = 0 if not DST & 3 else 1 if DST & 4 else 3
    if DST & 3 == 1: dst()
    for q in range(PRE): e(f"s_and_b32 s{sOFF+q%4}, s{ring(q)}, s{sMASK}\n{xload(q, sOFF+q%4)}")
    if SLIM: e("s_waitcnt lgkmcnt(0)"); mk_efad(EFAD); rd_y()
    if DST & 3 == 2: dst()
    e(f"s_waitcnt vmcnt({PRE + (1 if XP else 0) + (nD if DST & 3 in (1, 2) else 0)})\ns_barrier")
    if DST & 3 == 3: dst()
    if BP == 1: second_row("b")
    stamp((5, 1), (5, 5))
    if STAMP: e("s_memtime s[60:61]")
    rd_efa((0, 1))
    mk_efad(2)
    for q in range(PRE, 4): e(f"s_and_b32 s{sOFF+q%4}, s{ring(q)}, s{sMASK}\n{xload(q, sOFF+q%4)}")
    e("s_waitcnt lgkmcnt(0)")
    for j in range(4): e(rmfma(0, j))
    if DEF == 1: ef_late()
    def rest_loads():
        for q in range(max(PRE, 4), DIST): e(f"s_and_b32 s{sOFF+q%4}, s{ring(q)}, s{sMASK}\n{xload(q, sOFF+q%4)}")
    if not WMP: rest_loads()
    else: e("s_nop 7")
    rd_efa((0,))
    if not PD & 4:
        e(f"s_cmp_lg_u32 s{sW0}, 0\ns_cbranch_scc1 L_wdone")
        build_wm()
    e(f"L_wdone:\ns_mov_b32 s{sYI}, {L_YI}")
    if WMP: rest_loads()
    e(f"s_mov_b32 s{sRem}, s{sN}\ns_waitcnt lgkmcnt(0)")
    if AL >= 0:
        e("s_branch L_sb\n.p2align 6")
        for _ in range(AL): e("s_nop 0")
    e("L_sb:")
    if STAMP == 5: e("s_mov_b32 s86, s88\ns_mov_b32 s88, s90\ns_memrealtime s[90:91]")
    for i in range(4): e(f"v_mfma_f32_4x4x4_16b_bf16 {vr(TP+4*i,4)}, {vr(ENT,2)}, {vr(CG+2*i,2)}, 0")
    e(f"v_add_u32 v{vEntA}, {4*BST}, v{vEntA}\ns_sub_u32 s{sT}, s{sRem}, 64\nv_cmp_gt_i32 s[34:35], s{sT}, v{vQ}\ns_cmp_le_i32 s{sRem}, 0\ns_nop 0")
    for r in range(4):
        e(f"v_cvt_pk_bf16_f32 v{AE+2*r}, v{TP+r}, v{TP+4+r}\nv_cvt_pk_bf16_f32 v{AE+2*r+1}, v{TP+8+r}, v{TP+12+r}")
    e(f"{rd_ent()}\nds_read_b32 v{vCNT}, v{vCA}")
    for q in range(0, 64, 4):
        b, p = q // 16, (q % 16) // 4
        cur = b % 2
        te, to = T[cur] + q % 16, T[cur] + 16 + q % 16
        e(f"; ---- edges {q}..{q+3}")
        mf = lambda d, x, qq: f"v_mfma_f32_4x4x4_16b_bf16 {vr(d,4)}, {vr(AE+2*b,2)}, {vr(x,2)}, 0 cbsz:4 abid:{qq%16}"
        e("s_cbranch_scc1 L_exit")
        if STAMP == 5 and q == SQ: e(f"s_cmp_eq_u32 s{sRem}, s{sN}\ns_cbranch_scc0 L_nst\ns_memrealtime s[92:93]\nL_nst:")
        if PRIO == 2 and p == 0: e(f"s_setprio {3-b}")
        lp = LP.split(","); ps = PS.split(",")
        def at(tag):
            if PRIO == 3 and tag in ps: e(f"s_setprio {3 - ((q // 4) * len(ps) + ps.index(tag)) % 4}")
            for j, t in enumerate(lp):
                if t == tag and SA == 2: e(f"s_and_b32 s{sOFF+j}, s{ring(q+DIST+j)}, s{sMASK}")
            for j, t in enumerate(lp):
                if t == tag:
                    if SA == 1: e(f"s_and_b32 s{sOFF+j}, s{ring(q+DIST+j)}, s{sMASK}")
                    e(xload(q + DIST + j, sOFF + j))
        at("Q")
        if PRIO == 5: e(f"s_setprio {1 - p % 2}")
        if PRIO == 4 and p % 2 == 0: e(f"s_setprio {3 - (q // 8) % 4}")
        if q + DIST == 64: e(f"v_cndmask_b32 v{META}, v4, v{ENT+2}, s[34:35]")
        RL = [f"v_readlane_b32 s{ring(q+DIST+j)}, v{META}, {lane_of(q+DIST+j)}" for j in range(4)]
        EX = [f"v_exp_f32 v{TMP+j}, v{te+j}" for j in range(4)] + [f"v_exp_f32 v{TMP+4+j}, v{to+j}" for j in range(4)]
        AD = [f"v_pk_fma_f32 {vr(TMP+2*j,2)}, {vr(TMP+2*j,2)}, {P(sK)}, {P(sK)}" for j in range(4)]
        RC = [f"v_rcp_f32 v{TMP+j}, v{TMP+j}" for j in range(8)]
        MF = []
        for j in range(4):
            x = XB(q + j)
            MF += [mf(TP+8*j, x, q+j), mf(TP+8*j+4, x+2, q+j)]
        if SCH in (2, 3, 4):
            assert SA
            if SCH == 4:
                e(EX[0]); e(rmfma(1 - cur, p))
                for x in EX[1:]: e(x)
            else:
                e(rmfma(1 - cur, p))
                for x in EX: e(x)
            if SCH == 3:
                for x in RL[:3]: e(x)
            for x in AD: e(x)
            at("W")
            e(f"s_waitcnt vmcnt({DIST-(2 if W2 else 4)})")
            for j in range(8):
                if W2 and j == 4: e(f"s_waitcnt vmcnt({DIST-4})")
                e(MF[j]); e(RC[j])
            for x in (RL[3:] if SCH == 3 else RL): e(x)
            if p == 2: mk_efad(2)
            if SLIM and q == 16: mk_meta(); rd_y()
            at("R7")
        if SCH == 1:
            e(f"s_waitcnt vmcnt({DIST-(2 if W2 else 4)})")
            for j in range(4):
                x = XB(q + j)
                if W2 and j == 2: e(f"s_waitcnt vmcnt({DIST-4})")
                e(f"""{mf(TP+8*j, x, q+j)}
v_exp_f32 v{TMP+j}, v{te+j}
{mf(TP+8*j+4, x+2, q+j)}
v_exp_f32 v{TMP+4+j}, v{to+j}""")
            at("E")
            for j in range(4): e(f"v_readlane_b32 s{ring(q+DIST+j)}, v{META}, {lane_of(q+DIST+j)}")
            if p == 2: mk_efad(2)
            if SLIM and q == 16: mk_meta(); rd_y()
            for j in range(4):
                if SA == 0: e(f"s_and_b32 s{sOFF+j}, s{ring(q+DIST+j)}, s{sMASK}")
                e(f"v_pk_fma_f32 {vr(TMP+2*j,2)}, {vr(TMP+2*j,2)}, {P(sK)}, {P(sK)}")
                at(f"A{j}")
            e(rmfma(1 - cur, p))
            for j in range(8):
                e(f"v_rcp_f32 v{TMP+j}, v{TMP+j}")
                at(f"R{j}")
        def side():
            if q < 60: e(f"s_cmp_le_i32 s{sRem}, {q+4}")
            if p == 0: rd_efa((1,)); e(f"ds_read_b32 v2, v{vEfA} offset:{BST*(b+2)+EO}")
            if p == 2: rd_efa((0,))
            if p in (1, 3): e("s_waitcnt lgkmcnt(0)")
        if SP == 'R': side()
        for j in range(2): e(f"v_pk_mul_f32 {vr(TMP+2*j,2)}, {vr(TMP+2*j,2)}, {vr(te+2*j,2)}")
        for j in range(2): e(f"v_pk_mul_f32 {vr(TMP+4+2*j,2)}, {vr(TMP+4+2*j,2)}, {vr(to+2*j,2)}")
        for s in range(4):
            at(f"F{s}")
            e(f"s_set_gpr_idx_on s{ring(q+s)}, gpr_idx(SRC2,DST)" if s == 0 else f"s_set_gpr_idx_idx s{ring(q+s)}")
            for j in range(4):
                e(f"v_pk_fma_f32 {vr(ACC+2*j,2)}, {vr(TMP+4*(j//2)+2*(s//2),2)}, {vr(TP+8*s+2*j,2)}, {vr(ACC+2*j,2)} op_sel:[{s%2},0,0] op_sel_hi:[{s%2},1,1]")
        e("s_set_gpr_idx_off")
        if DEF > 1 and q == DEF:
            e(f"s_cmp_eq_u32 s{sRem}, s{sN}\ns_cbranch_scc0 L_nodef"); ef_late(); e("L_nodef:")
        at("F4")
        if SP == 'F': side()
    e(f"""v_add_u32 v{vEfA}, {4*BST}, v{vEfA}
s_sub_u32 s{sRem}, s{sRem}, 64
s_branch L_sb
L_exit:""")
    if PRIO: e("s_setprio 0")
    stamp((6, 1), (6, 5), (1, 6), (6, 8))
    if STAMP: e("s_memtime s[62:63]")
    e(f"""s_add_u32 s{sW0}, s{sW0}, {CAPW}
s_cmp_lt_u32 s{sW0}, s{sMAXC}
s_cbranch_scc1 L_next""")

def next_round():
    e(f"""L_next:
s_waitcnt vmcnt(0) lgkmcnt(0)
v_lshlrev_b32 v7, 3, v0
v_mov_b32 v2, 0
v_mov_b32 v3, 0
ds_write_b64 v7, v[2:3]
s_nop 15""")
    lane_helpers()
    list_fill()
    e(f"""s_waitcnt lgkmcnt(0)
s_barrier
v_and_b32 v2, 1, v0
v_max_u32 v3, s{sW0}, v{vPS}
v_add_u32 v3, v3, v2
s_add_u32 s{sT2}, s{sW0}, {CAPW}
v_min_u32 v4, s{sT2}, v{vPE}
v_add_u32 v5, v{vDL}, v3
s_lshl_b32 s{sT2}, s{sW0}, 2
s_sub_u32 s{sT2}, s{sLB}, s{sT2}
v_lshl_add_u32 v6, v3, 2, s{sT2}
v_sub_u32 v4, v4, v3
s_branch L_exp""")

def epilogue():
    FB = EFA; FD = ACC; FO = TP + 16
    FA = lambda t: T0 + 16 * t
    assert CG + 8 == EFA + 32 and TP == T0 + 64
    def rdB():
        for ks in range(4):
            for par in range(2): e(f"ds_read_b128 {vr(FB+16*par+4*ks,4)}, v{vBA} offset:{8192*ks + 256*par}")
    if not EP: e(f"s_waitcnt lgkmcnt(0)\nv_readfirstlane_b32 s38, v{vCNT}")
    e(f"v_lshlrev_b32 v5, 2, v{vL}")
    for s in range(5):
        e(f"v_add_u32 v3, s{sROW+s}, v5")
        for o in range(4): e(f"v_cvt_pk_bf16_f32 v{ACC+8*s+o}, v{ACC+8*s+o}, v{ACC+8*s+4+o}")
        for o in range(0, 4, 2): e(f"ds_write2_b32 v3, v{ACC+8*s+o}, v{ACC+8*s+o+1} offset0:{o*TROW//4} offset1:{(o+1)*TROW//4}")
    if EP: e(f"s_waitcnt lgkmcnt(10)\nv_readfirstlane_b32 s38, v{vCNT}")
    e("s_cmp_eq_u32 s38, 8\ns_cbranch_scc0 L_nob")
    rdB()
    e("s_waitcnt lgkmcnt(8)")
    stamp((2, 6))
    e("s_barrier\ns_branch L_haveb\nL_nob:\ns_waitcnt lgkmcnt(0)\ns_barrier")
    rdB()
    e("L_haveb:")
    stamp((3, 6))
    def rdA(t):
        for ks in range(4): e(f"ds_read_b128 {vr(FA(t)+4*ks,4)}, v{vAA} offset:{L_TILE + t*16*TROW + 64*ks}")
    def fin(t):
        d = FD + 8 * t; o = FO + 4 * (t % 4)
        for j in range(4): e(f"v_cvt_pk_bf16_f32 v{o+j}, v{d+2*j}, v{d+2*j+1}")
        e(f"buffer_store_dwordx4 {vr(o,4)}, v{vOA}, {S(OS)}, 0 offen {OUTST}")
        if t < 4: e(f"v_add_u32 v{vOA}, {4*256*1024}, v{vOA}")
    def rd1(i): e(f"ds_read_b128 {vr(FA(i//4)+4*(i%4),4)}, v{vAA} offset:{L_TILE + (i//4)*16*TROW + 64*(i%4)}")
    if EG:
        for i in range(EG): rd1(i)
        issued = EG
        for t in range(5):
            d = FD + 8 * t
            for ks in range(4):
                e(f"s_waitcnt lgkmcnt({issued - 4*t - ks - 1})")
                for par in range(2):
                    e(f"v_mfma_f32_16x16x32_bf16 {vr(d+4*par,4)}, {vr(FA(t)+4*ks,4)}, {vr(FB+16*par+4*ks,4)}, {'0' if ks == 0 else vr(d+4*par,4)}")
                    if par == 0 and issued < 20: rd1(issued); issued += 1
                if ks == (1 if 4*t + 1 + EG < 20 else 2) and t >= 1: fin(t - 1)
    else:
        rdA(0); rdA(1); rdA(2)
        issued = 12
        for t in range(5):
            d = FD + 8 * t
            for ks in range(4):
                e(f"s_waitcnt lgkmcnt({issued - 4*t - ks - 1})")
                for par in range(2):
                    e(f"v_mfma_f32_16x16x32_bf16 {vr(d+4*par,4)}, {vr(FA(t)+4*ks,4)}, {vr(FB+16*par+4*ks,4)}, {'0' if ks == 0 else vr(d+4*par,4)}")
                if ks == 0 and t + 3 < 5: rdA(t + 3); issued += 4
                if ks == 2 and t >= 1: fin(t - 1)
    e("s_nop 7")
    fin(4)
    stamp((4, 6))
    if BP == 3: e(f"s_mov_b32 s{sW0}, 0"); second_row("d")
    if STAMP:
        e("s_waitcnt vmcnt(0)"); stamp((7, 0))
        e(f"""s_lshl_b32 s34, s2, 3
s_add_u32 s34, s34, s{sW}
s_add_u32 s34, s34, 4096
s_getreg_b32 s59, hwreg(HW_REG_HW_ID)
s_getreg_b32 s58, hwreg(HW_REG_XCC_ID)
s_mov_b64 exec, 1
s_lshl_b32 s34, s34, 6
s_add_u32 s34, s34, {WS_STAMP}
v_mov_b32 v2, 0""")
        for i, r in enumerate([84 + 2*i for i in range(8)] + [60, 62, sN, 59, 58]):
            e(f"v_mov_b32 v3, s{r}\nbuffer_store_dword v3, v2, {S(WS)}, s34 offen offset:{4*i}")
    e("L_end:\ns_endpgm")

ref = open("standalone__tensor_product_equiv_tfn__graph.s.ref").read().splitlines()
for l in ref:
    if l.startswith("; Override"): break
    out.append(l)
out.append("; Generated by gen/gen2.py " + " ".join(sys.argv[2:]))
out.append(f"; @launch grid=(256,1,1) block=(512,1,1) lds={M_LDS}")
e(""";
; One workgroup per CU (all 256 resident). Workgroup g owns the nodes n with n % 256 == g.
;  phase A : counting sort of one chunk of 1250 edges by owner, records {Y, src, key} and edge_feat go to d_ws with
;  epilogue: out = agg . w_mix by MFMA 16x16x32.""")
e('.amdgcn_target "amdgcn-amd-amdhsa--gfx950"\n.text')
phase_a(); e("; ==== phase B"); phase_b(); e("; ==== main loop"); loop(); e("; ==== epilogue"); epilogue(); e("; ==== set-up of a further round (only when a wave collected more than 216 records)"); next_round()
e(f""".section .rodata,"a"
.p2align 6
.amdhsa_kernel {KNAME}
.amdhsa_next_free_vgpr {NV}
.amdhsa_next_free_sgpr 100
.amdhsa_accum_offset {(NV+3)//4*4}
.amdhsa_group_segment_fixed_size 0
.amdhsa_kernarg_size 88
.amdhsa_user_sgpr_count 2
.amdhsa_user_sgpr_kernarg_segment_ptr 1
.amdhsa_system_sgpr_workgroup_id_x 1
.amdhsa_float_denorm_mode_32 3
.end_amdhsa_kernel""")
if NOLOAD or NOV:
    i0 = out.index("L_sb:"); i1 = out.index("L_exit:")
    rm = tuple((["buffer_load"] if NOLOAD else []) + (NOV.split(",") if NOV else []))
    out[i0:i1] = [l for l in out[i0:i1] if not l.strip().startswith(rm)]
if E64:
    i0 = out.index("L_sb:"); i1 = out.index("L_exit:")
    for i in range(i0, i1):
        l = out[i].strip()
        if (E64 & 1) and l.startswith("v_exp_f32"): out[i] = out[i].replace("v_exp_f32", "v_exp_f32_e64")
        if (E64 & 2) and l.startswith("v_rcp_f32"): out[i] = out[i].replace("v_rcp_f32", "v_rcp_f32_e64")
text = "\n".join(out) + "\n"
errs = hazard.check(text) + hazard.check_waits(text)
for x in errs[:(0 if DX else 99)]: print("HAZARD", x)
open(sys.argv[1], "w").write(text)
print(f"wrote {sys.argv[1]}: NV={NV} LDS={M_LDS} hazards={len(errs)}")
```
